```python
import torch

def _softmax(x, axis=-1):
    return torch.softmax(x, dim=axis)
def _gelu(x):
    return torch.nn.functional.gelu(x, approximate="tanh")
def _silu(x):
    return torch.nn.functional.silu(x)
def _sigmoid(x):
    return torch.sigmoid(x)
def _layernorm(x, axis=-1, eps=1e-5):
    m = x.mean(dim=axis, keepdim=True)
    v = x.var(dim=axis, keepdim=True, unbiased=False)
    return (x - m) / torch.sqrt(v + eps)
def _scatter_add(tgt, idx, src, axis=0):
    return tgt.clone().index_add_(axis, idx, src)
def _segment_sum(src, seg, n):
    out = torch.zeros((n,) + src.shape[1:], dtype=src.dtype)
    return out.index_add_(0, seg, src)
def _pad(x, pw):
    flat = tuple(v for pair in reversed(pw) for v in pair)
    return torch.nn.functional.pad(x, flat)

kernel_name = 'gated_mix__spectral_fnet__sliding_block__prompt'

def setup_inputs():

    _w = (lambda a: (lambda t: t.to(torch.bfloat16) if t.is_floating_point() else t)(torch.as_tensor(a)))
    def _A_setup():
        B, S, D = 1, 2048, 512
        ns = torch.arange(S)[:, None] * torch.arange(S)[None, :]
        nd = torch.arange(D)[:, None] * torch.arange(D)[None, :]
        Ws_re = torch.cos(-2.0 * torch.pi * ns / S).to(float)
        Ws_im = torch.sin(-2.0 * torch.pi * ns / S).to(float)
        Wd_re = torch.cos(-2.0 * torch.pi * nd / D).to(float)
        Wd_im = torch.sin(-2.0 * torch.pi * nd / D).to(float)
        return {
            "x": _w((lambda *s: torch.randn(*s, dtype=torch.bfloat16) * 0.05)(B, S, D)),
            "dft_seq_re": _w(Ws_re),
            "dft_seq_im": _w(Ws_im),
            "dft_hid_re": _w(Wd_re),
            "dft_hid_im": _w(Wd_im),
        }
    _A_in = _A_setup()

    def _B_setup():
        B, S, D = 1, 2048, 512
        return {
            "x": _w((lambda *s: torch.randn(*s, dtype=torch.bfloat16) * 0.05)(B, S, D)),
            "wqkv": _w((lambda *s: torch.randn(*s, dtype=torch.bfloat16) * 1.6)(D, 3 * D)),
            "wo": _w((lambda *s: torch.randn(*s, dtype=torch.bfloat16) * 1.6)(D, D)),
        }
    _B_in = _B_setup()

    return {
        "A_x": _A_in["x"],
        "A_dft_seq_re": _A_in["dft_seq_re"],
        "A_dft_seq_im": _A_in["dft_seq_im"],
        "A_dft_hid_re": _A_in["dft_hid_re"],
        "A_dft_hid_im": _A_in["dft_hid_im"],
        "B_x": _B_in["x"],
        "B_wqkv": _B_in["wqkv"],
        "B_wo": _B_in["wo"],
        "gate_w": _w((lambda *s: torch.randn(*s, dtype=torch.bfloat16) * 0.05)(512) * 16.0),
    }

def reference(A_x, A_dft_seq_re, A_dft_seq_im, A_dft_hid_re, A_dft_hid_im, B_x, B_wqkv, B_wo, gate_w):
    def _A_ref(x, dft_seq_re, dft_seq_im, dft_hid_re, dft_hid_im):
        a = torch.einsum("bsd,ed->bse", x, dft_hid_re)
        b = torch.einsum("bsd,ed->bse", x, dft_hid_im)
        y = torch.einsum("ts,bse->bte", dft_seq_re, a) - torch.einsum("ts,bse->bte", dft_seq_im, b)
        return y

    def _B_ref(x, wqkv, wo):
        B, S, D = x.shape
        H = 32; Dh = D // H; W = 256
        qkv = (lambda x, *d: x.permute(*d))((x @ wqkv).reshape(B, S, 3, H, Dh), 2, 0, 3, 1, 4)
        q, k, v = qkv[0], qkv[1], qkv[2]
        scores = torch.einsum("bhqd,bhkd->bhqk", q, k) * (Dh ** -0.5)
        idx = torch.arange(S)
        mask = (idx[:, None] - idx[None, :] >= 0) & (idx[:, None] - idx[None, :] < W)
        scores = torch.where(mask[None, None], scores, -1e9)
        p = _softmax(scores, axis=-1)
        o = torch.einsum("bhqk,bhkd->bhqd", p, v)
        return (lambda x, *d: x.permute(*d))(o, 0, 2, 1, 3).reshape(B, S, D) @ wo

    x = A_x
    g = _sigmoid((x * gate_w).sum(-1, keepdims=True))
    a = _A_ref(x, A_dft_seq_re, A_dft_seq_im, A_dft_hid_re, A_dft_hid_im)
    b = _B_ref(x, B_wqkv, B_wo)
    return g * a + (1 - g) * b
```

```python
import re, struct

def f2u(x):
    return struct.unpack("<I", struct.pack("<f", x))[0]
def fhex(x):
    return "0x%08x" % f2u(x)

def vr(a, n=1):
    return f"v{a}" if n == 1 else f"v[{a}:{a+n-1}]"
def sr(a, n=1):
    return f"s{a}" if n == 1 else f"s[{a}:{a+n-1}]"

class Asm:
    def __init__(self):
        self.lines = []
    def __call__(self, s):
        for l in s.strip("\n").split("\n"):
            l = l.strip()
            if l: self.lines.append(l if (l.endswith(":") or l.startswith(".")) else "    " + l)
    def label(self, n): self.lines.append(n + ":")
    def nop(self, n):
        while n > 0:
            k = min(n, 16); self(f"s_nop {k-1}"); n -= k
    def text(self): return "\n".join(self.lines) + "\n"

_REG = re.compile(r"(?<![\w.])([vsa])(?:(\d+)|\[(\d+):(\d+)\])")
def regs(op):
    out = []
    for m in _REG.finditer(op):
        t = m.group(1)
        if m.group(2) is not None: out.append((t, int(m.group(2))))
        else: out += [(t, i) for i in range(int(m.group(3)), int(m.group(4)) + 1)]
    if re.search(r"\bvcc\b", op): out.append(("s", 106))
    if re.search(r"\bm0\b", op): out.append(("s", 124))
    if re.search(r"\bexec\b", op): out.append(("s", 126))
    return out

TRANS = ("v_exp_f32", "v_log_f32", "v_rcp_f32", "v_rsq_f32", "v_sqrt_f32", "v_sin_f32", "v_cos_f32")
def split_ops(s):
    out = []; depth = 0; cur = ""
    for ch in s:
        if ch == "[": depth += 1
        if ch == "]": depth -= 1
        if ch == "," and depth == 0: out.append(cur.strip()); cur = ""
        else: cur += ch
    if cur.strip(): out.append(cur.strip())
    return out

def check_hazards(lines):
    msgs = []
    hist = []
    st = 0
    for ln, raw in enumerate(lines):
        l = raw.split(";")[0].strip()
        if not l or l.endswith(":") or l.startswith("."): continue
        p = l.split(None, 1); mn = p[0]; ops = split_ops(p[1]) if len(p) > 1 else []
        if mn == "s_nop":
            st += int(ops[0], 0) + 1; continue
        if mn in ("s_endpgm", "s_branch"):
            hist = []; st += 1; continue
        is_mfma = mn.startswith("v_mfma"); is_valu = mn.startswith("v_") and not is_mfma
        is_vmem = mn.startswith(("buffer_", "global_", "flat_")); is_ds = mn.startswith("ds_")
        is_store = (is_vmem and ("store" in mn or "atomic" in mn)) or (is_ds and mn.startswith("ds_write"))
        is_dma = is_vmem and (" lds" in l or "_lds_" in mn)
        dst = []; src = []; srcC = []
        if is_store or is_dma or mn.startswith(("s_cmp", "s_cbranch", "s_waitcnt", "s_barrier", "buffer_wbl2", "buffer_inv", "s_setprio", "s_sleep")):
            for o in ops: src += regs(o)
        elif mn.startswith("v_permlane") and "swap" in mn:
            dst = regs(ops[0]) + regs(ops[1]); src = list(dst)
        else:
            if ops: dst = regs(ops[0])
            rest = ops[1:]
            if mn.startswith(("v_add_co", "v_addc_co", "v_sub_co")): dst += regs(ops[1]); rest = ops[2:]
            for o in rest: src += regs(o)
            if mn.startswith(("v_fmac", "v_dot2c")): src += dst
            if mn.startswith("v_cndmask") and len(ops) == 3: src.append(("s", 106))
            if is_mfma: srcC = regs(ops[3])
        if is_dma: src.append(("s", 124))
        S = set(src); D = set(dst)
        def need(n, h, why):
            d = st - h[0] - 1
            if d < n: msgs.append(f"line {ln}: [{l}] after [{h[4]}] dist {d} < {n}: {why}")
        for h in hist[-40:]:
            hk, hD, hS = h[1], h[2], h[3]
            if hk == "mfma":
                big = "32x32" in h[4]
                nv = 12 if big else 8
                if (is_valu or is_vmem or is_ds) and (hD & (S | D)): need(nv, h, "mfma D -> valu/mem")
                if is_mfma:
                    ab = set(regs(ops[1]) + regs(ops[2]))
                    if hD & ab: need(nv, h, "mfma D -> mfma A/B")
                    if (hD & set(srcC)) and hD != set(srcC): need(10 if big else 6, h, "mfma D -> partial C")
                    if (hD & D) and hD != set(srcC): need(nv, h, "mfma D -> mfma D WAW (conservative)")
                if is_valu and (h[5] & D): need(7 if big else 3, h, "mfma srcC WAR")
            if hk in ("valu", "trans", "dot"):
                vD = {r for r in hD if r[0] != "s"}; sD = {r for r in hD if r[0] == "s"}
                if is_mfma and (vD & S): need(2, h, "valu -> mfma")
                if mn.startswith("v_permlane") and (vD & S): need(2, h, "valu -> permlane")
                if ("dpp" in mn or "quad_perm" in l or "row_" in l) and (vD & S): need(2, h, "valu -> dpp")
                if mn.startswith(("v_readfirstlane", "v_readlane")) and (vD & S): need(1, h, "valu -> readlane")
                if is_vmem and (sD & S): need(5, h, "valu sgpr -> vmem")
                if is_valu and (sD & S): need(2, h, "valu sgpr -> valu")
                if hk == "trans" and is_valu and not mn.startswith(TRANS) and (vD & S): need(1, h, "trans -> valu")
                if hk == "dot" and (is_valu or is_mfma) and (vD & (S | D)) and mn != h[4].split()[0]: need(3, h, "dot -> other")
            if hk == "salu" and is_dma and ("s", 124) in hD: need(1, h, "m0 -> dma")
            if hk == "wstore" and (is_valu or is_mfma) and (hS & D): need(2, h, "wide store data WAR")
        kind = "mfma" if is_mfma else ("trans" if mn.startswith(TRANS) else ("dot" if mn.startswith("v_dot") else ("valu" if is_valu else ("salu" if mn.startswith("s_") else "mem"))))
        if is_store and is_vmem and ("x4" in mn or "x3" in mn): kind = "wstore"
        hist.append((st, kind, D, S, l, set(srcC)))
        st += 1
    return msgs
```

```python
import sys, math
from asmlib import *

STAMP = "--stamp" in sys.argv
QF, KF, VF, TF, OF, GF = 0x000000, 0x200000, 0x400000, 0x600000, 0x900000, 0xB00000
STF = 0xC00000
WS_BYTES = 0x1000000
TP = 4224
MF = "v_mfma_f32_32x32x16_bf16"
QSCALE = 0.25 * math.log2(math.e)

def srd(a, d, ptr, nbytes):
    a(f"s_mov_b32 s{d}, s{ptr}\ns_mov_b32 s{d+1}, s{ptr+1}\ns_mov_b32 s{d+2}, {nbytes}\ns_mov_b32 s{d+3}, 0x00020000")

def entry(a, name):
    a(f".p2align 12\n{name}:")
    if STAMP: a("s_memrealtime s[90:91]")
    a("s_load_dwordx16 s[16:31], s[0:1], 0")
    a("s_load_dwordx8 s[32:39], s[0:1], 64")
    a(f"s_cmp_ge_u32 s2, 256\ns_cbranch_scc1 {name}_end")
    a("v_lshrrev_b32 v1, 6, v0\nv_and_b32 v0, 63, v0\nv_readfirstlane_b32 s3, v1")

def stamp(a, i):
    if STAMP: a(f"s_memrealtime s[{90+2*i}:{91+2*i}]")

def stamp_out(a, kidx, wsrd):
    if not STAMP: return
    a("s_memrealtime s[96:97]\ns_waitcnt vmcnt(0) lgkmcnt(0)\ns_memrealtime s[98:99]\ns_waitcnt lgkmcnt(0)")
    a(f"s_lshl_b32 s88, s2, 3\ns_add_u32 s88, s88, s3\ns_lshl_b32 s88, s88, 6\ns_add_u32 s88, s88, {STF + kidx * 131072}")
    a("s_mov_b64 exec, 1")
    for i in range(10): a(f"v_mov_b32 v{4+i}, s{90+i}")
    a("v_mov_b32 v2, s88")
    a(f"buffer_store_dwordx4 v[4:7], v2, s[{wsrd}:{wsrd+3}], 0 offen")
    a(f"buffer_store_dwordx4 v[8:11], v2, s[{wsrd}:{wsrd+3}], 0 offen offset:16")
    a(f"buffer_store_dwordx2 v[12:13], v2, s[{wsrd}:{wsrd+3}], 0 offen offset:32")

def k1(a):
    N = "k1_kernel"
    sX, sW, sWS, sG = 40, 44, 48, 52
    entry(a, N)
    a("""s_and_b32 s4, s2, 7
    s_lshr_b32 s7, s2, 3
    s_and_b32 s5, s4, 1
    s_lshl_b32 s5, s5, 3
    s_and_b32 s8, s7, 7
    s_add_u32 s5, s5, s8
    s_lshr_b32 s6, s7, 3
    s_lshr_b32 s4, s4, 1""")
    a(f"s_cmp_lt_u32 s3, 4\ns_cbranch_scc1 {N}_comp")
    a("s_sub_u32 s7, s3, 4")
    a("""v_lshrrev_b32 v1, 3, v0
    v_and_b32 v2, 7, v0
    v_lshrrev_b32 v3, 4, v0
    v_xor_b32 v2, v2, v3
    v_lshlrev_b32 v2, 4, v2
    v_xor_b32 v4, 64, v2""")
    a("""s_lshl_b32 s8, s5, 7
    s_lshl_b32 s9, s7, 5
    s_add_u32 s8, s8, s9
    s_lshl_b32 s9, s5, 2
    s_add_u32 s9, s9, s7
    s_movk_i32 s10, 7168
    s_cmp_eq_u32 s4, 3
    s_cselect_b32 s8, s9, s8
    s_cselect_b32 s9, 16, 10
    s_cselect_b32 s10, 523264, s10
    s_lshl_b32 s8, s8, 10""")
    a("""v_lshlrev_b32 v5, s9, v1
    v_add_u32 v5, s8, v5
    v_add_u32 v10, v5, v2
    v_add_u32 v5, s10, v5
    v_add_u32 v11, v5, v4
    v_add_u32 v5, s10, v5
    v_add_u32 v12, v5, v2
    v_add_u32 v5, s10, v5
    v_add_u32 v13, v5, v4""")
    a("s_mov_b64 s[12:13], -1")
    a(f"s_cmp_eq_u32 s4, 3\ns_cbranch_scc1 {N}_ldA")
    a("""s_mul_i32 s8, s7, 49152
    s_lshl_b32 s9, s4, 10
    s_add_u32 s8, s8, s9
    s_lshl_b32 s9, s6, 8
    s_add_u32 s8, s8, s9
    v_mul_u32_u24 v5, 3072, v3
    v_bfe_u32 v6, v0, 2, 2
    v_xor_b32 v6, v6, v3
    v_lshlrev_b32 v6, 6, v6
    v_and_b32 v7, 3, v0
    v_lshlrev_b32 v7, 4, v7
    v_add3_u32 v5, v5, v6, v7
    v_add_u32 v14, s8, v5
    v_add_u32 v15, 11264, v14
    v_add_u32 v16, 11264, v15
    v_add_u32 v17, 11264, v16
    s_mov_b32 s11, 196608
    s_waitcnt lgkmcnt(0)""")
    srd(a, sW, 28, 512 * 1536 * 2)
    a(f"s_branch {N}_ldgo")
    a.label(f"{N}_ldA")
    a("""s_lshl_b32 s8, s6, 6
    s_lshr_b32 s9, s7, 1
    s_lshl_b32 s9, s9, 5
    s_add_u32 s8, s8, s9
    s_lshl_b32 s8, s8, 10
    v_lshlrev_b32 v5, 10, v1
    v_add_u32 v5, s8, v5
    v_add_u32 v14, v5, v2
    v_add_u32 v5, 7168, v5
    v_add_u32 v15, v5, v4
    v_add_u32 v5, 7168, v5
    v_add_u32 v16, v5, v2
    v_add_u32 v5, 7168, v5
    v_add_u32 v17, v5, v4
    s_mov_b32 s11, 128
    s_lshl_b32 s8, s6, 2
    s_add_u32 s8, s8, s7
    s_cmp_eq_u32 s8, 1
    s_cselect_b32 s12, 0xffffff00, -1
    s_waitcnt lgkmcnt(0)
    s_bitcmp1_b32 s7, 0""")
    a(f"s_cselect_b32 s{sW}, s24, s22\ns_cselect_b32 s{sW+1}, s25, s23\ns_mov_b32 s{sW+2}, {512*512*2}\ns_mov_b32 s{sW+3}, 0x00020000")
    a.label(f"{N}_ldgo")
    srd(a, sX, 16, 2048 * 512 * 2)
    a("s_lshl_b32 s8, s7, 12\ns_mov_b32 s9, 0\ns_mov_b32 s10, 0\ns_mov_b32 s14, 0")
    a.label(f"{N}_ldloop")
    a(f"s_cmp_lt_u32 s14, 3\ns_cbranch_scc1 {N}_ldissue")
    a("s_waitcnt vmcnt(16)\ns_barrier")
    a.label(f"{N}_ldissue")
    a("s_mov_b32 m0, s8\ns_add_u32 s14, s14, 1")
    for i in range(4): a(f"buffer_load_dwordx4 v{10+i}, s[{sX}:{sX+3}], s9 offen offset:{1024*i} lds")
    a("s_add_u32 m0, s8, 16384\ns_mov_b64 exec, s[12:13]")
    a(f"buffer_load_dwordx4 v14, s[{sW}:{sW+3}], s10 offen lds")
    a("s_mov_b64 exec, -1")
    for i in range(1, 4): a(f"buffer_load_dwordx4 v{14+i}, s[{sW}:{sW+3}], s10 offen offset:{1024*i} lds")
    a("""s_add_u32 s9, s9, 128
    s_add_u32 s10, s10, s11
    s_add_u32 s8, s8, 32768
    s_and_b32 s8, s8, 0x1ffff""")
    a(f"s_cmp_lt_u32 s14, 8\ns_cbranch_scc1 {N}_ldloop")
    srd(a, sG, 32, 1024)
    srd(a, sWS, 38, WS_BYTES)
    a("""s_lshl_b32 s8, s2, 3
    s_lshl_b32 s9, s7, 1
    s_add_u32 s8, s8, s9
    s_lshl_b32 s9, s8, 10
    v_lshlrev_b32 v1, 5, v0
    v_and_b32 v2, 1023, v1""")
    a(f"""buffer_load_dwordx4 v[20:23], v1, s[{sX}:{sX+3}], s9 offen
    buffer_load_dwordx4 v[24:27], v1, s[{sX}:{sX+3}], s9 offen offset:16
    buffer_load_dwordx4 v[28:31], v2, s[{sG}:{sG+3}], 0 offen
    buffer_load_dwordx4 v[32:35], v2, s[{sG}:{sG+3}], 0 offen offset:16""")
    a("s_waitcnt vmcnt(20)\ns_barrier\ns_waitcnt vmcnt(12)\ns_barrier\ns_waitcnt vmcnt(4)\ns_barrier")
    a("v_mov_b32 v5, 0\ns_waitcnt vmcnt(0)")
    for i in range(8): a(f"v_dot2c_f32_bf16 v5, v{20+i}, v{28+i}")
    a("v_lshrrev_b32 v6, 5, v0\nv_add_u32 v6, s8, v6\nv_and_b32 v7, 31, v6")
    a("v_add_f32_dpp v5, v5, v5 quad_perm:[1,0,3,2] row_mask:0xf bank_mask:0xf")
    a("v_lshrrev_b32 v6, 5, v6\nv_lshlrev_b32 v7, 8, v7")
    a("v_add_f32_dpp v5, v5, v5 quad_perm:[2,3,0,1] row_mask:0xf bank_mask:0xf")
    a("v_lshl_add_u32 v6, v6, 2, v7\ns_nop 0")
    a("v_add_f32_dpp v5, v5, v5 row_half_mirror row_mask:0xf bank_mask:0xf\ns_nop 1")
    a("v_add_f32_dpp v5, v5, v5 row_mirror row_mask:0xf bank_mask:0xf\ns_nop 1")
    a("v_add_f32_dpp v5, v5, v5 row_bcast:15 row_mask:0xa bank_mask:0xf")
    a(f"v_mul_f32 v5, {fhex(-math.log2(math.e))}, v5\nv_exp_f32 v5, v5\ns_nop 0\nv_add_f32 v5, 1.0, v5\nv_rcp_f32 v5, v5")
    a("s_mov_b32 exec_lo, 0x80000000\ns_mov_b32 exec_hi, 0x80000000")
    a(f"s_mov_b32 s8, {GF}\nbuffer_store_dword v5, v6, s[{sWS}:{sWS+3}], s8 offen")
    stamp_out(a, 0, sWS)
    a.label(f"{N}_end")
    a("s_endpgm")

    ACC = 64
    FA, FB = 32, 48
    XA = 8
    WA = 12
    FP = 128
    a.label(f"{N}_comp")
    a("s_lshr_b32 s7, s3, 1\ns_and_b32 s8, s3, 1")
    a("""v_and_b32 v1, 31, v0
    v_lshrrev_b32 v2, 5, v0
    v_bfe_u32 v3, v0, 1, 3
    v_xor_b32 v3, v3, v2
    v_lshlrev_b32 v3, 4, v3
    v_lshl_add_u32 v3, v1, 7, v3""")
    a(f"s_lshl_b32 s9, s7, 13\nv_add_u32 v{XA}, s9, v3")
    for ks in range(1, 4): a(f"v_xor_b32 v{XA+ks}, {32*ks}, v{XA}")
    for i in range(0, 64, 2): a(f"v_mov_b64 v[{ACC+i}:{ACC+i+1}], 0")
    a("s_mov_b32 s14, 0\ns_mov_b32 s15, 32768\ns_waitcnt lgkmcnt(0)")
    srd(a, sWS, 38, WS_BYTES)
    a(f"s_cmp_eq_u32 s4, 3\ns_cbranch_scc1 {N}_A")
    a(f"""v_bfe_u32 v4, v0, 2, 2
    v_lshl_add_u32 v5, v2, 3, v4
    v_lshlrev_b32 v5, 8, v5
    s_lshl_b32 s9, s8, 1
    v_xor_b32 v4, s9, v4
    v_lshl_add_u32 v5, v4, 6, v5
    v_bfe_u32 v4, v0, 4, 1
    v_lshl_add_u32 v5, v4, 5, v5
    v_and_b32 v4, 3, v0
    v_lshl_add_u32 v{WA}, v4, 3, v5
    v_xor_b32 v{WA+1}, 64, v{WA}""")
    a(f"s_cmp_eq_u32 s4, 2\ns_cbranch_scc1 {N}_V")

    def mainloop(tag, tr, swap):
        nrd = 6 if tr else 4
        naddr = [XA + i for i in range(4)] + [WA + i for i in range(2 if tr else 4)]
        def rd(F, ks):
            for mt in range(2): a(f"ds_read_b128 v[{F+4*mt}:{F+4*mt+3}], v{XA+ks} offset:{4096*mt}")
            for nt in range(2):
                if tr:
                    for h in range(2): a(f"ds_read_b64_tr_b16 v[{F+8+4*nt+2*h}:{F+9+4*nt+2*h}], v{WA+nt} offset:{16384+4096*ks+1024*h}")
                else:
                    a(f"ds_read_b128 v[{F+8+4*nt}:{F+11+4*nt}], v{WA+ks} offset:{16384+4096*nt}")
        def mm(F):
            for mt in range(2):
                for nt in range(2):
                    x = vr(F + 4 * mt, 4); w = vr(F + 8 + 4 * nt, 4); c = vr(ACC + 16 * (2 * mt + nt), 16)
                    a(f"{MF} {c}, {w}, {x}, {c}" if swap else f"{MF} {c}, {x}, {w}, {c}")
        a("s_barrier")
        stamp(a, 1)
        rd(FA, 0)
        a.label(f"{N}_{tag}_loop")
        rd(FB, 1); a(f"s_waitcnt lgkmcnt({nrd})"); mm(FA)
        rd(FA, 2); a(f"s_waitcnt lgkmcnt({nrd})"); mm(FB)
        rd(FB, 3); a(f"s_waitcnt lgkmcnt({nrd})"); mm(FA)
        a("s_add_u32 s14, s14, 1\ns_and_b32 s9, s14, 3\ns_cselect_b32 s9, s15, -98304")
        for r in naddr: a(f"v_add_u32 v{r}, s9, v{r}")
        a(f"s_cmp_eq_u32 s14, 8\ns_waitcnt lgkmcnt(0)\ns_cbranch_scc1 {N}_{tag}_last")
        a("s_barrier")
        rd(FA, 0); mm(FB)
        a(f"s_branch {N}_{tag}_loop")
        a.label(f"{N}_{tag}_last")
        mm(FB)
        stamp(a, 2)

    mainloop("QK", True, True)
    a("""s_lshl_b32 s9, s4, 21
    s_lshl_b32 s10, s6, 19
    s_add_u32 s9, s9, s10
    s_lshl_b32 s10, s8, 18
    s_add_u32 s9, s9, s10
    s_lshl_b32 s10, s5, 12
    s_add_u32 s9, s9, s10
    s_lshl_b32 s10, s7, 11
    s_add_u32 s9, s9, s10
    v_lshlrev_b32 v4, 4, v0""")
    a(f"s_cmp_eq_u32 s4, 0\ns_cselect_b32 s10, {fhex(QSCALE)}, 1.0\ns_mov_b32 s11, s10")
    for nt in range(2):
        for mt in range(2):
            c = ACC + 16 * (2 * mt + nt)
            for i in range(0, 16, 2): a(f"v_pk_mul_f32 v[{c+i}:{c+i+1}], v[{c+i}:{c+i+1}], s[10:11]")
            d = FA + 8 * (2 * nt + mt)
            for i in range(8): a(f"v_cvt_pk_bf16_f32 v{d+i}, v{c+2*i}, v{c+2*i+1}")
            if mt == 0: a("s_add_u32 s12, s9, 65536")
            a(f"buffer_store_dwordx4 v[{d}:{d+3}], v4, s[{sWS}:{sWS+3}], s9 offen offset:{1024*mt}")
            a(f"buffer_store_dwordx4 v[{d+4}:{d+7}], v4, s[{sWS}:{sWS+3}], s12 offen offset:{1024*mt}")
        if nt == 0: a("s_add_u32 s9, s9, 131072")
    stamp_out(a, 0, sWS)
    a("s_endpgm")

    a.label(f"{N}_V")
    mainloop("V", True, False)
    a(f"""s_lshl_b32 s9, s6, 19
    s_add_u32 s9, s9, {VF}
    s_lshl_b32 s10, s8, 18
    s_add_u32 s9, s9, s10
    s_lshl_b32 s10, s5, 12
    s_add_u32 s9, s9, s10
    s_lshl_b32 s10, s7, 11
    s_add_u32 s9, s9, s10
    v_bfe_u32 v4, v0, 4, 1
    v_lshlrev_b32 v4, 16, v4
    v_lshl_add_u32 v4, v2, 8, v4
    v_and_b32 v5, 15, v0
    v_lshl_add_u32 v4, v5, 4, v4""")
    for nt in range(2):
        for mt in range(2):
            c = ACC + 16 * (2 * mt + nt)
            d = FA + 8 * (2 * nt + mt)
            for i in range(8): a(f"v_cvt_pk_bf16_f32 v{d+i}, v{c+2*i}, v{c+2*i+1}")
            a(f"buffer_store_dwordx4 v[{d}:{d+3}], v4, s[{sWS}:{sWS+3}], s9 offen offset:{1024*mt}")
            a(f"buffer_store_dwordx4 v[{d+4}:{d+7}], v4, s[{sWS}:{sWS+3}], s9 offen offset:{1024*mt+512}")
        if nt == 0: a("s_add_u32 s9, s9, 131072")
    stamp_out(a, 0, sWS)
    a("s_endpgm")

    a(".p2align 12")
    a.label(f"{N}_A")
    a(f"s_lshl_b32 s9, s8, 13\nv_add_u32 v{WA}, s9, v3")
    for ks in range(1, 4): a(f"v_xor_b32 v{WA+ks}, {32*ks}, v{WA}")
    a(f"s_cmp_lg_u32 s6, 0\ns_cbranch_scc1 {N}_A1")
    a("""v_and_b32 v4, 31, v0
    v_lshlrev_b32 v4, 2, v4
    s_lshl_b32 s9, s3, 15
    v_add_u32 v4, s9, v4
    v_mov_b32 v5, 0xbf803f80
    ds_write_b32 v4, v5 offset:20480""")
    a.label(f"{N}_A1")
    a("""v_cvt_f32_u32 v4, v1
    s_lshl_b32 s9, s5, 2
    s_lshl_b32 s10, s7, 1
    s_add_u32 s9, s9, s10
    v_lshlrev_b32 v5, 8, v2
    v_add_u32 v5, s9, v5
    v_cvt_f32_u32 v5, v5
    v_mul_f32 v6, 0x3a000000, v4
    v_mul_f32 v5, v5, v6
    v_mul_f32 v4, 0x3d000000, v4""")
    for mt in range(2):
        if mt == 1: a("v_add_f32 v5, v5, v6")
        for ks in range(2):
            for p in range(4):
                j0 = 2 * p
                c0 = 16 * ks + (j0 & 3) + 8 * (j0 >> 2)
                a(f"v_fmamk_f32 v16, v4, {fhex(float(c0))}, v5")
                a("v_add_f32 v17, v16, v4")
                a("v_cos_f32 v18, v16\nv_cos_f32 v19, v17\nv_sin_f32 v20, v16\nv_sin_f32 v21, v17")
                b = FP + 24 * mt + 4 * ks + p
                a(f"v_cvt_pk_bf16_f32 v{b}, v18, v19")
                a(f"v_cvt_pk_bf16_f32 v{b+8}, v20, v21")
                a(f"v_cvt_pk_bf16_f32 v{b+16}, -v20, -v21")
    a("s_waitcnt lgkmcnt(0)")
    mainloop("A", False, False)
    a(f"""s_mul_i32 s9, s5, {TP}
    s_add_u32 s9, s9, {TF}
    s_lshl_b32 s10, s7, 3
    s_add_u32 s9, s9, s10
    s_lshl_b32 s10, s6, 10
    s_lshl_b32 s11, s8, 9
    s_add_u32 s10, s10, s11
    v_mul_u32_u24 v4, {4*16*TP}, v2
    v_lshl_add_u32 v5, v1, 4, v4
    v_add_u32 v5, s10, v5
    s_nop 1""")
    for mt in range(2):
        for nt in range(2):
            c = ACC + 16 * (2 * mt + nt); d = FA + 16 * mt + 8 * nt
            for i in range(8): a(f"v_cvt_pk_bf16_f32 v{d+i}, v{c+2*i}, v{c+2*i+1}")
    def store_T(va):
        for r in range(16):
            t1 = (r & 3) + 8 * (r >> 2)
            d = 16 + 2 * (r & 3)
            a(f"v_cvt_pk_bf16_f32 v{d}, v{ACC+r}, v{ACC+16+r}")
            a(f"v_cvt_pk_bf16_f32 v{d+1}, v{ACC+32+r}, v{ACC+48+r}")
            a(f"s_add_u32 s11, s9, {t1*16*TP}")
            a(f"buffer_store_dwordx2 v[{d}:{d+1}], v{va}, s[{sWS}:{sWS+3}], s11 offen")
    a(f"s_cmp_lg_u32 s10, 0\ns_cbranch_scc1 {N}_A2")
    for mt in range(2):
        bf = FA + 16 * mt + 8; F = FP + 24 * mt
        tr_, ti_ = vr(ACC + 32 * mt, 16), vr(ACC + 32 * mt + 16, 16)
        a(f"{MF} {tr_}, {vr(F,4)}, {vr(bf,4)}, 0")
        a(f"{MF} {ti_}, {vr(F+16,4)}, {vr(bf,4)}, 0")
        a(f"{MF} {tr_}, {vr(F+4,4)}, {vr(bf+4,4)}, {tr_}")
        a(f"{MF} {ti_}, {vr(F+20,4)}, {vr(bf+4,4)}, {ti_}")
    a("s_mov_b32 exec_lo, 1\ns_mov_b32 exec_hi, 1\nv_add_u32 v6, 4096, v4")
    for mt in range(2):
        for i in range(8): a(f"v_mov_b32 v{FA+16*mt+8+i}, 0")
    store_T(6)
    a("s_mov_b64 exec, -1\ns_nop 3")
    a.label(f"{N}_A2")
    for mt in range(2):
        af = FA + 16 * mt; bf = af + 8; F = FP + 24 * mt
        tr_, ti_ = vr(ACC + 32 * mt, 16), vr(ACC + 32 * mt + 16, 16)
        a(f"{MF} {tr_}, {vr(F,4)}, {vr(af,4)}, 0")
        a(f"{MF} {ti_}, {vr(F,4)}, {vr(bf,4)}, 0")
        a(f"{MF} {tr_}, {vr(F+4,4)}, {vr(af+4,4)}, {tr_}")
        a(f"{MF} {ti_}, {vr(F+4,4)}, {vr(bf+4,4)}, {ti_}")
        a(f"{MF} {tr_}, {vr(F+8,4)}, {vr(bf,4)}, {tr_}")
        a(f"{MF} {ti_}, {vr(F+16,4)}, {vr(af,4)}, {ti_}")
        a(f"{MF} {tr_}, {vr(F+12,4)}, {vr(bf+4,4)}, {tr_}")
        a(f"{MF} {ti_}, {vr(F+20,4)}, {vr(af+4,4)}, {ti_}")
    a.nop(12)
    store_T(5)
    stamp_out(a, 0, sWS)
    a("s_endpgm")
    return 176

def k2(a):
    N = "k2_kernel"
    sWS = 40
    Q, KR, VR, M8, M0, PM, SA, SB, CN, P, O = 8, 12, 48, 120, 136, 152, 160, 176, 192, 208, 224
    entry(a, N)
    a("""s_and_b32 s4, s2, 7
    s_lshl_b32 s4, s4, 2
    s_bfe_u32 s5, s2, 0x20003
    s_add_u32 s4, s4, s5
    s_lshr_b32 s5, s2, 5
    s_lshl_b32 s6, s4, 6
    s_lshl_b32 s7, s5, 3
    s_add_u32 s6, s6, s7
    v_lshlrev_b32 v1, 4, v0
    s_add_u32 s8, s6, s3
    s_lshl_b32 s8, s8, 10
    s_lshl_b32 s9, s3, 1
    s_add_u32 s10, s6, s9
    s_lshl_b32 s10, s10, 10""")
    a(f"s_add_u32 s10, s10, {KF - 8192}\ns_add_u32 s11, s10, {VF - KF}\ns_lshl_b32 m0, s3, 11")
    a("s_waitcnt lgkmcnt(0)")
    srd(a, sWS, 38, WS_BYTES)
    W = f"s[{sWS}:{sWS+3}]"
    a(f"buffer_load_dwordx4 v1, {W}, s10 offen lds\nbuffer_load_dwordx4 v1, {W}, s10 offen offset:1024 lds")
    a(f"buffer_load_dwordx4 v[{Q}:{Q+3}], v1, {W}, s8 offen")
    a("s_add_u32 m0, m0, 16384\ns_nop 0")
    a(f"buffer_load_dwordx4 v1, {W}, s11 offen lds\nbuffer_load_dwordx4 v1, {W}, s11 offen offset:1024 lds")
    a("""v_mov_b32 v4, 0x3f803f80
    v_mov_b32 v5, v4
    v_mov_b32 v6, v4
    v_mov_b32 v7, v4
    v_and_b32 v2, 31, v0
    v_lshlrev_b32 v3, 9, v2
    ds_write_b128 v3, v[4:7] offset:32768""")
    a("""v_lshrrev_b32 v3, 5, v0
    v_lshlrev_b32 v4, v2, -2
    v_lshlrev_b32 v5, 2, v3
    v_lshrrev_b32 v4, v5, v4
    s_mov_b32 s12, 0xff800000
    s_mov_b32 s13, 0xffff""")
    for r in range(16):
        c = (r & 3) + 8 * (r >> 2)
        a(f"v_bfe_i32 v{SA+r}, v4, {c}, 1")
        a(f"v_and_b32 v{M8+r}, s12, v{SA+r}")
        a(f"v_xor_b32 v{M0+r}, s12, v{M8+r}")
    for p in range(8): a(f"v_bfi_b32 v{PM+p}, s13, v{SA+2*p}, v{SA+2*p+1}")
    a("""s_lshl_b32 s9, s3, 10
    v_add_u32 v5, s9, v1
    v_and_b32 v6, 15, v0
    v_lshlrev_b32 v6, 4, v6
    v_lshl_add_u32 v6, v3, 8, v6
    v_add_u32 v6, s9, v6
    v_add_u32 v6, 16384, v6
    v_bfe_i32 v7, v0, 4, 1
    v_mov_b32 v4, 32768
    v_bfi_b32 v6, v7, v4, v6""")
    a("s_add_u32 s14, s3, 1\ns_cmp_eq_u32 s5, 0\ns_cselect_b32 s14, s14, 9")
    a(f"""s_add_u32 s7, s7, s3
    s_lshl_b32 s9, s4, 11
    s_lshr_b32 s15, s7, 5
    s_lshl_b32 s15, s15, 10
    s_add_u32 s9, s9, s15
    s_and_b32 s15, s7, 31
    s_lshl_b32 s15, s15, 4
    s_add_u32 s9, s9, s15
    s_add_u32 s9, s9, {OF}
    v_lshlrev_b32 v2, 16, v2
    v_lshl_add_u32 v2, v3, 9, v2""")
    for i in range(0, 16, 2): a(f"v_mov_b64 v[{O+i}:{O+i+1}], 0")
    a("s_waitcnt vmcnt(2) lgkmcnt(0)\ns_barrier")
    stamp(a, 1)
    order = list(range(8, -1, -1))
    for j in order: a(f"ds_read_b128 v[{KR+4*j}:{KR+4*j+3}], v5 offset:{1024*j}")
    q = vr(Q, 4)
    S = [SA, SB]
    m = 3
    a(f"v_mov_b32 v{m}, s12")
    def smf(n, C):
        j = order[n]
        a(f"{MF} {vr(S[n&1],16)}, {vr(KR+4*j,4)}, {q}, {C}")
    def c1(n):
        j = order[n]
        return vr(M8, 16) if j == 8 else (vr(M0, 16) if j == 0 else "0")
    a("s_waitcnt lgkmcnt(8)"); smf(0, c1(0))
    for n in range(9):
        if n < 8:
            a(f"s_waitcnt lgkmcnt({7-n})"); smf(n + 1, c1(n + 1))
        if n == 0: a.nop(10)
        if n == 8: a.nop(2)
        s = S[n & 1]
        for i in range(8): a(f"v_max3_f32 v{m}, v{m}, v{s+2*i}, v{s+2*i+1}")
        if n < 8: a(f"s_cmp_eq_u32 s14, {n+1}\ns_cbranch_scc1 {N}_p1done")
    a.label(f"{N}_p1done")
    a("s_waitcnt vmcnt(0)\ns_barrier")
    for j in order:
        for ks in range(2): a(f"ds_read_b128 v[{VR+8*j+4*ks}:{VR+8*j+4*ks+3}], v6 offset:{1024*j+512*ks}")
    a(f"v_mov_b32 v4, v{m}\ns_nop 1\nv_permlane32_swap_b32 v4, v{m}\ns_nop 0\nv_max_f32 v4, v4, v{m}")
    a(f"v_sub_f32 v{CN}, 0, v4\nv_sub_f32 v{CN+1}, 0, v4")
    for i in range(2, 16, 2): a(f"v_mov_b64 v[{CN+i}:{CN+i+1}], v[{CN}:{CN+1}]")
    stamp(a, 2)
    a("s_nop 1")
    cn = vr(CN, 16); o = vr(O, 16)
    smf(0, cn)
    for n in range(9):
        j = order[n]
        if n < 8: smf(n + 1, cn)
        if n == 0: a.nop(11)
        s = S[n & 1]; p = P + 8 * (n & 1)
        for i in range(16): a(f"v_exp_f32 v{s+i}, v{s+i}")
        for i in range(8): a(f"v_cvt_pk_bf16_f32 v{p+i}, v{s+2*i}, v{s+2*i+1}")
        if j == 8:
            for i in range(8): a(f"v_bfi_b32 v{p+i}, v{PM+i}, 0, v{p+i}")
        if j == 0:
            for i in range(8): a(f"v_and_b32 v{p+i}, v{PM+i}, v{p+i}")
        if n == 0: a("s_waitcnt lgkmcnt(0)")
        a(f"s_cmp_eq_u32 s14, {n+1}")
        a(f"{MF} {o}, {vr(VR+8*j,4)}, {vr(p,4)}, {o}")
        a(f"{MF} {o}, {vr(VR+8*j+4,4)}, {vr(p+4,4)}, {o}")
        if n < 8: a(f"s_cbranch_scc1 {N}_p2done")
    a.label(f"{N}_p2done")
    a.nop(12)
    a(f"v_rcp_f32 v4, v{O+8}\ns_nop 0")
    for i in range(8): a(f"v_mul_f32 v{O+i}, v{O+i}, v4")
    for i in range(4): a(f"v_cvt_pk_bf16_f32 v{P+i}, v{O+2*i}, v{O+2*i+1}")
    a(f"buffer_store_dwordx4 v[{P}:{P+3}], v2, {W}, s9 offen")
    stamp_out(a, 1, sWS)
    a.label(f"{N}_end")
    a("s_endpgm")
    return 240

def k3(a):
    N = "k3_kernel"
    sWS, sWO, sOUT = 40, 44, 48
    entry(a, N)
    a("""s_and_b32 s4, s2, 7
    s_lshl_b32 s4, s4, 2
    s_bfe_u32 s5, s2, 0x20003
    s_add_u32 s4, s4, s5
    s_lshr_b32 s5, s2, 5""")
    a(f"s_cmp_lt_u32 s3, 4\ns_cbranch_scc1 {N}_comp")
    W = f"s[{sWS}:{sWS+3}]"; WO = f"s[{sWO}:{sWO+3}]"
    a("s_sub_u32 s7, s3, 4")
    a("""v_lshlrev_b32 v1, 4, v0
    v_lshrrev_b32 v2, 3, v0
    v_lshlrev_b32 v2, 10, v2
    v_bfe_u32 v3, v0, 2, 1
    v_bfe_u32 v4, v0, 4, 1
    v_xor_b32 v3, v3, v4
    v_lshl_add_u32 v2, v3, 6, v2
    v_and_b32 v3, 3, v0
    v_lshl_add_u32 v10, v3, 4, v2
    v_add_u32 v11, 7168, v10
    v_add_u32 v12, 7168, v11
    v_add_u32 v13, 7168, v12""")
    a(f"""s_lshl_b32 s8, s4, 16
    s_lshl_b32 s9, s7, 12
    s_add_u32 s8, s8, s9
    s_add_u32 s8, s8, {OF}
    s_lshl_b32 s10, s7, 15
    s_lshl_b32 s11, s5, 7
    s_add_u32 s10, s10, s11
    s_waitcnt lgkmcnt(0)""")
    srd(a, sWS, 38, WS_BYTES)
    srd(a, sWO, 30, 512 * 512 * 2)
    def issue(q):
        a(f"s_add_u32 m0, s9, {16384*q}")
        if q: a("s_add_u32 s8, s8, 16384")
        else: a("s_nop 0")
        for i in range(4): a(f"buffer_load_dwordx4 v1, {W}, s8 offen offset:{1024*i} lds")
        a(f"s_add_u32 m0, s9, {65536+16384*q}")
        if q: a("s_add_u32 s10, s10, 131072")
        else: a("s_nop 0")
        for i in range(4): a(f"buffer_load_dwordx4 v{10+i}, {WO}, s10 offen offset:{1024*i} lds")
    issue(0); issue(1); issue(2)
    a("s_waitcnt vmcnt(16)\ns_barrier")
    issue(3)
    a(f"""s_lshl_b32 s11, s5, 10
    v_add_u32 v2, s11, v1
    v_sub_u32 v3, 8192, v2
    s_sub_u32 s12, 32, s4
    s_and_b32 s12, s12, 31
    s_cmp_ge_u32 s5, 4
    s_cselect_b32 s12, s12, s4
    s_cselect_b64 vcc, -1, 0
    s_lshl_b32 s12, s12, 4
    s_lshl_b32 s13, s7, 2
    s_add_u32 s12, s12, s13
    s_mul_i32 s12, s12, {TP}
    s_add_u32 s12, s12, {TF}
    v_cndmask_b32 v2, v2, v3, vcc
    s_waitcnt vmcnt(16)
    s_barrier
    s_add_u32 m0, s9, 131072
    s_nop 0""")
    for i in range(4):
        a(f"buffer_load_dwordx4 v2, {W}, s12 offen offset:{1024*i} lds")
        if i < 3: a(f"s_add_u32 s12, s12, {TP-1024}")
    a("s_waitcnt vmcnt(12)\ns_barrier\ns_waitcnt vmcnt(4)\ns_barrier\ns_waitcnt vmcnt(0)\ns_barrier")
    stamp_out(a, 2, sWS)
    a.label(f"{N}_end")
    a("s_endpgm")
    AB, AY, F, FR = 16, 32, 48, 80
    a.label(f"{N}_comp")
    a("s_lshr_b32 s7, s3, 1\ns_and_b32 s8, s3, 1")
    a("""v_and_b32 v1, 31, v0
    v_lshrrev_b32 v2, 5, v0
    s_lshl_b32 s9, s8, 5
    v_add_u32 v3, s9, v1""")
    a(f"""s_lshl_b32 s9, s4, 8
    s_add_u32 s9, s9, {GF}
    v_lshlrev_b32 v4, 2, v3
    s_waitcnt lgkmcnt(0)""")
    srd(a, sWS, 38, WS_BYTES)
    srd(a, sOUT, 34, 2048 * 512 * 2)
    a(f"buffer_load_dword v15, v4, {W}, s9 offen")
    a("""s_cmp_eq_u32 s4, 0
    s_cselect_b32 s9, 64, 63
    v_sub_u32 v4, s9, v3
    v_and_b32 v4, 63, v4
    s_cmp_ge_u32 s5, 4
    s_cselect_b64 vcc, -1, 0
    v_cndmask_b32 v4, v3, v4, vcc
    v_cvt_f32_u32 v4, v4
    v_mul_f32 v4, 0x3c800000, v4
    v_cvt_f32_u32 v5, v2
    v_mul_f32 v5, 4.0, v5
    v_mul_f32 v5, v5, v4""")
    for ks in range(8):
        for u in range(0, 4, 2):
            a(f"v_fmamk_f32 v6, v4, {fhex(float(8*ks+u))}, v5")
            a("v_add_f32 v7, v6, v4")
            a("v_cos_f32 v8, v6\nv_sin_f32 v9, v6\nv_cos_f32 v10, v7\nv_sin_f32 v11, v7")
            a(f"v_cvt_pk_bf16_f32 v{F+4*ks+u}, v8, v9")
            a(f"v_cvt_pk_bf16_f32 v{F+4*ks+u+1}, v10, v11")
    a("""s_lshl_b32 s9, s8, 10
    v_lshlrev_b32 v6, 4, v0
    v_add_u32 v6, s9, v6
    v_bfe_u32 v9, v0, 2, 2
    v_lshl_add_u32 v7, v2, 2, v9
    v_lshlrev_b32 v7, 7, v7
    v_lshrrev_b32 v9, 1, v9
    v_xor_b32 v9, s7, v9
    v_lshl_add_u32 v7, v9, 6, v7
    v_and_b32 v9, 1, v0
    v_lshl_add_u32 v7, v9, 5, v7
    v_bfe_u32 v9, v0, 4, 1
    v_lshl_add_u32 v7, v9, 4, v7
    v_bfe_u32 v9, v0, 1, 1
    v_lshl_add_u32 v7, v9, 3, v7
    v_add_u32 v7, 0x10000, v7
    v_bfe_u32 v9, v0, 2, 1
    v_lshlrev_b32 v8, 4, v9
    v_and_b32 v9, 3, v0
    v_add_u32 v8, v8, v9
    v_bfe_u32 v9, v0, 3, 2
    v_lshl_add_u32 v8, v9, 2, v8
    s_lshl_b32 s9, s7, 5
    v_add_u32 v8, s9, v8
    v_lshlrev_b32 v8, 4, v8
    v_lshl_add_u32 v8, v2, 10, v8
    v_add_u32 v8, 0x20000, v8""")
    a("""v_lshlrev_b32 v9, 15, v3
    v_lshl_add_u32 v9, v2, 5, v9
    s_lshl_b32 s9, s4, 10
    s_lshl_b32 s10, s5, 7
    s_add_u32 s9, s9, s10
    s_lshl_b32 s10, s7, 6
    s_add_u32 s9, s9, s10""")
    ab = vr(AB, 16); ay = vr(AY, 16)
    for i in range(0, 16, 2): a(f"v_mov_b64 v[{AB+i}:{AB+i+1}], 0")
    a("s_mov_b32 s14, 0")
    a.label(f"{N}_loop")
    a("s_barrier")
    def rd(h):
        f = FR + 8 * h
        a(f"ds_read_b64_tr_b16 v[{f}:{f+1}], v7 offset:{2048*h}")
        a(f"ds_read_b64_tr_b16 v[{f+2}:{f+3}], v7 offset:{2048*h+1024}")
        a(f"ds_read_b128 v[{f+4}:{f+7}], v6 offset:{2048*h}")
    for h in range(4): rd(h)
    for h in range(8):
        if h + 4 < 8:
            a("s_waitcnt lgkmcnt(9)")
        else:
            a(f"s_waitcnt lgkmcnt({3*(7-h)})")
        f = FR + 8 * h
        a(f"{MF} {ab}, {vr(f,4)}, {vr(f+4,4)}, {ab}")
        if h + 4 < 8: rd(h + 4)
    a("v_add_u32 v6, 16384, v6\nv_add_u32 v7, 16384, v7")
    a(f"s_add_u32 s14, s14, 1\ns_cmp_lt_u32 s14, 4\ns_cbranch_scc1 {N}_loop")
    a("s_barrier")
    stamp(a, 1)
    for ks in range(8): a(f"ds_read_b128 v[{FR+4*ks}:{FR+4*ks+3}], v8 offset:{2048*ks}")
    for ks in range(8):
        a(f"s_waitcnt lgkmcnt({7-ks})")
        a(f"{MF} {ay}, {vr(FR+4*ks,4)}, {vr(F+4*ks,4)}, {'0' if ks == 0 else ay}")
    stamp(a, 2)
    a("s_waitcnt vmcnt(0)")
    a.nop(11)
    for i in range(16):
        a(f"v_sub_f32 v{AY+i}, v{AY+i}, v{AB+i}")
        a(f"v_fmac_f32 v{AB+i}, v{AY+i}, v15")
    for i in range(8): a(f"v_cvt_pk_bf16_f32 v{F+i}, v{AB+2*i}, v{AB+2*i+1}")
    a(f"buffer_store_dwordx4 v[{F}:{F+3}], v9, s[{sOUT}:{sOUT+3}], s9 offen")
    a(f"buffer_store_dwordx4 v[{F+4}:{F+7}], v9, s[{sOUT}:{sOUT+3}], s9 offen offset:16")
    stamp_out(a, 2, sWS)
    a("s_endpgm")
    return 144

def desc(name, nv):
    return f""".p2align 6
.amdhsa_kernel {name}
  .amdhsa_next_free_vgpr {nv}
  .amdhsa_next_free_sgpr 102
  .amdhsa_accum_offset {(nv+3)//4*4}
  .amdhsa_group_segment_fixed_size 0
  .amdhsa_kernarg_size 96
  .amdhsa_user_sgpr_count 2
  .amdhsa_user_sgpr_kernarg_segment_ptr 1
  .amdhsa_system_sgpr_workgroup_id_x 1
.end_amdhsa_kernel
"""

a = Asm()
n1 = k1(a); n2 = k2(a); n3 = k3(a)
for m in check_hazards(a.lines): print("HAZARD", m, file=sys.stderr)
hdr = """; gated mix of FNet spectral mixing and sliding-window attention; generated by dev/gen.py
; @launch kernel=k1_kernel grid=(256,1,1) block=(512,1,1) lds=131072
; @launch kernel=k2_kernel grid=(256,1,1) block=(512,1,1) lds=49152
; @launch kernel=k3_kernel grid=(256,1,1) block=(512,1,1) lds=147456
.amdgcn_target "amdgcn-amd-amdhsa--gfx950"
.text
.globl k1_kernel
.type k1_kernel,@function
.globl k2_kernel
.type k2_kernel,@function
.globl k3_kernel
.type k3_kernel,@function
"""
out = hdr + a.text() + '.section .rodata,"a"\n' + desc("k1_kernel", n1) + desc("k2_kernel", n2) + desc("k3_kernel", n3)
fn = [x for x in sys.argv[1:] if not x.startswith("--")][0]
open(fn, "w").write(out)
```

```python
import sys, math
from asmlib import *

STAMP = "--stamp" in sys.argv
SF = ""
for x in sys.argv:
    if x.startswith("--sf="): SF = " " + x[5:].replace("+", " ")
NOLD = "--nold" in sys.argv
NOMM = "--nomm" in sys.argv
NORD = "--nord" in sys.argv
XS = 0
for x in sys.argv:
    if x.startswith("--xs="): XS = int(x[5:])
QF, KF, VF, TF, OF, GF = 0x000000, 0x200000, 0x400000, 0x600000, 0x900000, 0xB00000
STF = 0xC00000
WS_BYTES = 0x1000000
TP = 4224
MF = "v_mfma_f32_32x32x16_bf16"
QSCALE = 0.25 * math.log2(math.e)

def srd(a, d, ptr, nbytes):
    a(f"s_mov_b32 s{d}, s{ptr}\ns_mov_b32 s{d+1}, s{ptr+1}\ns_mov_b32 s{d+2}, {nbytes}\ns_mov_b32 s{d+3}, 0x00020000")

def entry(a, name):
    a(f".p2align 12\n{name}:")
    if STAMP: a("s_memrealtime s[90:91]\ns_memtime s[86:87]")
    a("s_load_dwordx16 s[16:31], s[0:1], 0")
    a("s_load_dwordx8 s[32:39], s[0:1], 64")
    a(f"s_cmp_ge_u32 s2, 256\ns_cbranch_scc1 {name}_end")
    a("v_lshrrev_b32 v1, 6, v0\nv_and_b32 v0, 63, v0\nv_readfirstlane_b32 s3, v1")

def stamp(a, i):
    if STAMP: a(f"s_memrealtime s[{90+2*i}:{91+2*i}]")

def stamp_out(a, kidx, wsrd):
    if not STAMP: return
    a("s_memrealtime s[96:97]\ns_waitcnt vmcnt(0) lgkmcnt(0)\ns_memrealtime s[98:99]\ns_memtime s[100:101]\ns_waitcnt lgkmcnt(0)\ns_sub_u32 s100, s100, s86\ns_mov_b32 s101, 0")
    a(f"s_lshl_b32 s88, s2, 3\ns_add_u32 s88, s88, s3\ns_lshl_b32 s88, s88, 6\ns_add_u32 s88, s88, {STF + kidx * 131072}")
    a("s_mov_b64 exec, 1")
    for i in range(12): a(f"v_mov_b32 v{4+i}, s{90+i}")
    a("v_mov_b32 v2, s88")
    a(f"buffer_store_dwordx4 v[4:7], v2, s[{wsrd}:{wsrd+3}], 0 offen")
    a(f"buffer_store_dwordx4 v[8:11], v2, s[{wsrd}:{wsrd+3}], 0 offen offset:16")
    a(f"buffer_store_dwordx4 v[12:15], v2, s[{wsrd}:{wsrd+3}], 0 offen offset:32")

def k1(a):
    N = "k1_kernel"
    sX, sW, sWS, sG = 40, 44, 48, 52
    entry(a, N)
    a("""s_and_b32 s4, s2, 7
    s_lshr_b32 s7, s2, 3
    s_and_b32 s5, s4, 1
    s_lshl_b32 s5, s5, 3
    s_and_b32 s8, s7, 7
    s_add_u32 s5, s5, s8
    s_lshr_b32 s6, s7, 3
    s_lshr_b32 s4, s4, 1""")
    a(f"s_cmp_lt_u32 s3, 4\ns_cbranch_scc1 {N}_comp")
    a("s_sub_u32 s7, s3, 4")
    a("""v_lshrrev_b32 v1, 3, v0
    v_and_b32 v2, 7, v0
    v_lshrrev_b32 v3, 4, v0
    v_xor_b32 v2, v2, v3
    v_lshlrev_b32 v2, 4, v2
    v_xor_b32 v4, 64, v2""")
    a("""s_lshl_b32 s8, s5, 7
    s_lshl_b32 s9, s7, 5
    s_add_u32 s8, s8, s9
    s_lshl_b32 s9, s5, 2
    s_add_u32 s9, s9, s7
    s_movk_i32 s10, 7168
    s_cmp_eq_u32 s4, 3
    s_cselect_b32 s8, s9, s8
    s_cselect_b32 s9, 16, 10
    s_cselect_b32 s10, 523264, s10
    s_lshl_b32 s8, s8, 10""")
    a("""v_lshlrev_b32 v5, s9, v1
    v_add_u32 v5, s8, v5
    v_add_u32 v10, v5, v2
    v_add_u32 v5, s10, v5
    v_add_u32 v11, v5, v4
    v_add_u32 v5, s10, v5
    v_add_u32 v12, v5, v2
    v_add_u32 v5, s10, v5
    v_add_u32 v13, v5, v4""")
    a("s_mov_b64 s[12:13], -1")
    a(f"s_cmp_eq_u32 s4, 3\ns_cbranch_scc1 {N}_ldA")
    a("""s_mul_i32 s8, s7, 49152
    s_lshl_b32 s9, s4, 10
    s_add_u32 s8, s8, s9
    s_lshl_b32 s9, s6, 8
    s_add_u32 s8, s8, s9
    v_mul_u32_u24 v5, 3072, v3
    v_bfe_u32 v6, v0, 2, 2
    v_xor_b32 v6, v6, v3
    v_lshlrev_b32 v6, 6, v6
    v_and_b32 v7, 3, v0
    v_lshlrev_b32 v7, 4, v7
    v_add3_u32 v5, v5, v6, v7
    v_add_u32 v14, s8, v5
    v_add_u32 v15, 11264, v14
    v_add_u32 v16, 11264, v15
    v_add_u32 v17, 11264, v16
    s_mov_b32 s11, 196608
    s_waitcnt lgkmcnt(0)""")
    srd(a, sW, 28, 512 * 1536 * 2)
    a(f"s_branch {N}_ldgo")
    a.label(f"{N}_ldA")
    a("""s_lshl_b32 s8, s6, 6
    s_lshr_b32 s9, s7, 1
    s_lshl_b32 s9, s9, 5
    s_add_u32 s8, s8, s9
    s_lshl_b32 s8, s8, 10
    v_lshlrev_b32 v5, 10, v1
    v_add_u32 v5, s8, v5
    v_add_u32 v14, v5, v2
    v_add_u32 v5, 7168, v5
    v_add_u32 v15, v5, v4
    v_add_u32 v5, 7168, v5
    v_add_u32 v16, v5, v2
    v_add_u32 v5, 7168, v5
    v_add_u32 v17, v5, v4
    s_mov_b32 s11, 128
    s_lshl_b32 s8, s6, 2
    s_add_u32 s8, s8, s7
    s_cmp_eq_u32 s8, 1
    s_cselect_b32 s12, 0xffffff00, -1
    s_waitcnt lgkmcnt(0)
    s_bitcmp1_b32 s7, 0""")
    a(f"s_cselect_b32 s{sW}, s24, s22\ns_cselect_b32 s{sW+1}, s25, s23\ns_mov_b32 s{sW+2}, {512*512*2}\ns_mov_b32 s{sW+3}, 0x00020000")
    a.label(f"{N}_ldgo")
    srd(a, sX, 16, 2048 * 512 * 2)
    a("s_lshl_b32 s8, s7, 12\ns_mov_b32 s9, 0\ns_mov_b32 s10, 0\ns_mov_b32 s14, 0")
    if XS == 1: a("s_add_u32 s15, s5, s6\ns_and_b32 s15, s15, 1\ns_lshl_b32 s15, s15, 1")
    if XS == 2: a("s_add_u32 s15, s5, s6\ns_and_b32 s15, s15, 3\ns_lshl_b32 s15, s15, 1")
    if XS == 3: a("s_add_u32 s15, s5, s6\ns_and_b32 s15, s15, 1\ns_lshl_b32 s15, s15, 2")
    a.label(f"{N}_ldloop")
    a(f"s_cmp_lt_u32 s14, 3\ns_cbranch_scc1 {N}_ldissue")
    a("s_waitcnt vmcnt(16)\ns_barrier")
    a.label(f"{N}_ldissue")
    if XS: a("s_xor_b32 s9, s14, s15\ns_mul_i32 s10, s9, s11\ns_lshl_b32 s9, s9, 7")
    a("s_mov_b32 m0, s8\ns_add_u32 s14, s14, 1")
    for i in range(4): a(f"buffer_load_dwordx4 v{10+i}, s[{sX}:{sX+3}], s9 offen offset:{1024*i} lds")
    a("s_add_u32 m0, s8, 16384\ns_mov_b64 exec, s[12:13]")
    a(f"buffer_load_dwordx4 v14, s[{sW}:{sW+3}], s10 offen lds")
    a("s_mov_b64 exec, -1")
    for i in range(1, 4): a(f"buffer_load_dwordx4 v{14+i}, s[{sW}:{sW+3}], s10 offen offset:{1024*i} lds")
    a("""s_add_u32 s9, s9, 128
    s_add_u32 s10, s10, s11
    s_add_u32 s8, s8, 32768
    s_and_b32 s8, s8, 0x1ffff""")
    a(f"s_cmp_lt_u32 s14, 8\ns_cbranch_scc1 {N}_ldloop")
    srd(a, sG, 32, 1024)
    srd(a, sWS, 38, WS_BYTES)
    a("""s_lshl_b32 s8, s2, 3
    s_lshl_b32 s9, s7, 1
    s_add_u32 s8, s8, s9
    s_lshl_b32 s9, s8, 10
    v_lshlrev_b32 v1, 5, v0
    v_and_b32 v2, 1023, v1""")
    a(f"""buffer_load_dwordx4 v[20:23], v1, s[{sX}:{sX+3}], s9 offen
    buffer_load_dwordx4 v[24:27], v1, s[{sX}:{sX+3}], s9 offen offset:16
    buffer_load_dwordx4 v[28:31], v2, s[{sG}:{sG+3}], 0 offen
    buffer_load_dwordx4 v[32:35], v2, s[{sG}:{sG+3}], 0 offen offset:16""")
    a("s_waitcnt vmcnt(20)\ns_barrier\ns_waitcnt vmcnt(12)\ns_barrier\ns_waitcnt vmcnt(4)\ns_barrier")
    a("v_mov_b32 v5, 0\ns_waitcnt vmcnt(0)")
    for i in range(8): a(f"v_dot2c_f32_bf16 v5, v{20+i}, v{28+i}")
    a("v_lshrrev_b32 v6, 5, v0\nv_add_u32 v6, s8, v6\nv_and_b32 v7, 31, v6")
    a("v_add_f32_dpp v5, v5, v5 quad_perm:[1,0,3,2] row_mask:0xf bank_mask:0xf")
    a("v_lshrrev_b32 v6, 5, v6\nv_lshlrev_b32 v7, 8, v7")
    a("v_add_f32_dpp v5, v5, v5 quad_perm:[2,3,0,1] row_mask:0xf bank_mask:0xf")
    a("v_lshl_add_u32 v6, v6, 2, v7\ns_nop 0")
    a("v_add_f32_dpp v5, v5, v5 row_half_mirror row_mask:0xf bank_mask:0xf\ns_nop 1")
    a("v_add_f32_dpp v5, v5, v5 row_mirror row_mask:0xf bank_mask:0xf\ns_nop 1")
    a("v_add_f32_dpp v5, v5, v5 row_bcast:15 row_mask:0xa bank_mask:0xf")
    a(f"v_mul_f32 v5, {fhex(-math.log2(math.e))}, v5\nv_exp_f32 v5, v5\ns_nop 0\nv_add_f32 v5, 1.0, v5\nv_rcp_f32 v5, v5")
    a("s_mov_b32 exec_lo, 0x80000000\ns_mov_b32 exec_hi, 0x80000000")
    a(f"s_mov_b32 s8, {GF}\nbuffer_store_dword v5, v6, s[{sWS}:{sWS+3}], s8 offen")
    stamp_out(a, 0, sWS)
    a.label(f"{N}_end")
    a("s_endpgm")

    ACC = 64
    FA, FB = 32, 48
    XA = 8
    WA = 12
    FP = 128
    a.label(f"{N}_comp")
    a("s_lshr_b32 s7, s3, 1\ns_and_b32 s8, s3, 1")
    a("""v_and_b32 v1, 31, v0
    v_lshrrev_b32 v2, 5, v0
    v_bfe_u32 v3, v0, 1, 3
    v_xor_b32 v3, v3, v2
    v_lshlrev_b32 v3, 4, v3
    v_lshl_add_u32 v3, v1, 7, v3""")
    a(f"s_lshl_b32 s9, s7, 13\nv_add_u32 v{XA}, s9, v3")
    for ks in range(1, 4): a(f"v_xor_b32 v{XA+ks}, {32*ks}, v{XA}")
    for i in range(0, 64, 2): a(f"v_mov_b64 v[{ACC+i}:{ACC+i+1}], 0")
    a("s_mov_b32 s14, 0\ns_mov_b32 s15, 32768\ns_waitcnt lgkmcnt(0)")
    srd(a, sWS, 38, WS_BYTES)
    a(f"s_cmp_eq_u32 s4, 3\ns_cbranch_scc1 {N}_A")
    a(f"""v_bfe_u32 v4, v0, 2, 2
    v_lshl_add_u32 v5, v2, 3, v4
    v_lshlrev_b32 v5, 8, v5
    s_lshl_b32 s9, s8, 1
    v_xor_b32 v4, s9, v4
    v_lshl_add_u32 v5, v4, 6, v5
    v_bfe_u32 v4, v0, 4, 1
    v_lshl_add_u32 v5, v4, 5, v5
    v_and_b32 v4, 3, v0
    v_lshl_add_u32 v{WA}, v4, 3, v5
    v_xor_b32 v{WA+1}, 64, v{WA}""")
    a(f"s_cmp_eq_u32 s4, 2\ns_cbranch_scc1 {N}_V")

    def mainloop(tag, tr, swap):
        nrd = 6 if tr else 4
        naddr = [XA + i for i in range(4)] + [WA + i for i in range(2 if tr else 4)]
        def rd(F, ks):
            for mt in range(2): a(f"ds_read_b128 v[{F+4*mt}:{F+4*mt+3}], v{XA+ks} offset:{4096*mt}")
            for nt in range(2):
                if tr:
                    for h in range(2): a(f"ds_read_b64_tr_b16 v[{F+8+4*nt+2*h}:{F+9+4*nt+2*h}], v{WA+nt} offset:{16384+4096*ks+1024*h}")
                else:
                    a(f"ds_read_b128 v[{F+8+4*nt}:{F+11+4*nt}], v{WA+ks} offset:{16384+4096*nt}")
        def mm(F):
            for mt in range(2):
                for nt in range(2):
                    x = vr(F + 4 * mt, 4); w = vr(F + 8 + 4 * nt, 4); c = vr(ACC + 16 * (2 * mt + nt), 16)
                    a(f"{MF} {c}, {w}, {x}, {c}" if swap else f"{MF} {c}, {x}, {w}, {c}")
        a("s_barrier")
        stamp(a, 1)
        rd(FA, 0)
        a.label(f"{N}_{tag}_loop")
        rd(FB, 1); a(f"s_waitcnt lgkmcnt({nrd})"); mm(FA)
        rd(FA, 2); a(f"s_waitcnt lgkmcnt({nrd})"); mm(FB)
        rd(FB, 3); a(f"s_waitcnt lgkmcnt({nrd})"); mm(FA)
        a("s_add_u32 s14, s14, 1\ns_and_b32 s9, s14, 3\ns_cselect_b32 s9, s15, -98304")
        for r in naddr: a(f"v_add_u32 v{r}, s9, v{r}")
        a(f"s_cmp_eq_u32 s14, 8\ns_waitcnt lgkmcnt(0)\ns_cbranch_scc1 {N}_{tag}_last")
        a("s_barrier")
        rd(FA, 0); mm(FB)
        a(f"s_branch {N}_{tag}_loop")
        a.label(f"{N}_{tag}_last")
        mm(FB)
        stamp(a, 2)

    mainloop("QK", True, True)
    a("""s_lshl_b32 s9, s4, 21
    s_lshl_b32 s10, s6, 19
    s_add_u32 s9, s9, s10
    s_lshl_b32 s10, s8, 18
    s_add_u32 s9, s9, s10
    s_lshl_b32 s10, s5, 12
    s_add_u32 s9, s9, s10
    s_lshl_b32 s10, s7, 11
    s_add_u32 s9, s9, s10
    v_lshlrev_b32 v4, 4, v0""")
    a(f"s_cmp_eq_u32 s4, 0\ns_cselect_b32 s10, {fhex(QSCALE)}, 1.0\ns_mov_b32 s11, s10")
    for nt in range(2):
        for mt in range(2):
            c = ACC + 16 * (2 * mt + nt)
            for i in range(0, 16, 2): a(f"v_pk_mul_f32 v[{c+i}:{c+i+1}], v[{c+i}:{c+i+1}], s[10:11]")
            d = FA + 8 * (2 * nt + mt)
            for i in range(8): a(f"v_cvt_pk_bf16_f32 v{d+i}, v{c+2*i}, v{c+2*i+1}")
            if mt == 0: a("s_add_u32 s12, s9, 65536")
            a(f"buffer_store_dwordx4 v[{d}:{d+3}], v4, s[{sWS}:{sWS+3}], s9 offen offset:{1024*mt}")
            a(f"buffer_store_dwordx4 v[{d+4}:{d+7}], v4, s[{sWS}:{sWS+3}], s12 offen offset:{1024*mt}")
        if nt == 0: a("s_add_u32 s9, s9, 131072")
    stamp_out(a, 0, sWS)
    a("s_endpgm")

    a.label(f"{N}_V")
    mainloop("V", True, False)
    a(f"""s_lshl_b32 s9, s6, 19
    s_add_u32 s9, s9, {VF}
    s_lshl_b32 s10, s8, 18
    s_add_u32 s9, s9, s10
    s_lshl_b32 s10, s5, 12
    s_add_u32 s9, s9, s10
    s_lshl_b32 s10, s7, 11
    s_add_u32 s9, s9, s10
    v_bfe_u32 v4, v0, 4, 1
    v_lshlrev_b32 v4, 16, v4
    v_lshl_add_u32 v4, v2, 8, v4
    v_and_b32 v5, 15, v0
    v_lshl_add_u32 v4, v5, 4, v4""")
    for nt in range(2):
        for mt in range(2):
            c = ACC + 16 * (2 * mt + nt)
            d = FA + 8 * (2 * nt + mt)
            for i in range(8): a(f"v_cvt_pk_bf16_f32 v{d+i}, v{c+2*i}, v{c+2*i+1}")
            a(f"buffer_store_dwordx4 v[{d}:{d+3}], v4, s[{sWS}:{sWS+3}], s9 offen offset:{1024*mt}")
            a(f"buffer_store_dwordx4 v[{d+4}:{d+7}], v4, s[{sWS}:{sWS+3}], s9 offen offset:{1024*mt+512}")
        if nt == 0: a("s_add_u32 s9, s9, 131072")
    stamp_out(a, 0, sWS)
    a("s_endpgm")

    a(".p2align 12")
    a.label(f"{N}_A")
    a(f"s_lshl_b32 s9, s8, 13\nv_add_u32 v{WA}, s9, v3")
    for ks in range(1, 4): a(f"v_xor_b32 v{WA+ks}, {32*ks}, v{WA}")
    a(f"s_cmp_lg_u32 s6, 0\ns_cbranch_scc1 {N}_A1")
    a("""v_and_b32 v4, 31, v0
    v_lshlrev_b32 v4, 2, v4
    s_lshl_b32 s9, s3, 15
    v_add_u32 v4, s9, v4
    v_mov_b32 v5, 0xbf803f80
    ds_write_b32 v4, v5 offset:20480""")
    a.label(f"{N}_A1")
    a("""v_cvt_f32_u32 v4, v1
    s_lshl_b32 s9, s5, 2
    s_lshl_b32 s10, s7, 1
    s_add_u32 s9, s9, s10
    v_lshlrev_b32 v5, 8, v2
    v_add_u32 v5, s9, v5
    v_cvt_f32_u32 v5, v5
    v_mul_f32 v6, 0x3a000000, v4
    v_mul_f32 v5, v5, v6
    v_mul_f32 v4, 0x3d000000, v4""")
    for mt in range(2):
        if mt == 1: a("v_add_f32 v5, v5, v6")
        for ks in range(2):
            for p in range(4):
                j0 = 2 * p
                c0 = 16 * ks + (j0 & 3) + 8 * (j0 >> 2)
                a(f"v_fmamk_f32 v16, v4, {fhex(float(c0))}, v5")
                a("v_add_f32 v17, v16, v4")
                a("v_cos_f32 v18, v16\nv_cos_f32 v19, v17\nv_sin_f32 v20, v16\nv_sin_f32 v21, v17")
                b = FP + 24 * mt + 4 * ks + p
                a(f"v_cvt_pk_bf16_f32 v{b}, v18, v19")
                a(f"v_cvt_pk_bf16_f32 v{b+8}, v20, v21")
                a(f"v_cvt_pk_bf16_f32 v{b+16}, -v20, -v21")
    a("s_waitcnt lgkmcnt(0)")
    mainloop("A", False, False)
    a(f"""s_mul_i32 s9, s5, {TP}
    s_add_u32 s9, s9, {TF}
    s_lshl_b32 s10, s7, 3
    s_add_u32 s9, s9, s10
    s_lshl_b32 s10, s6, 10
    s_lshl_b32 s11, s8, 9
    s_add_u32 s10, s10, s11
    v_mul_u32_u24 v4, {4*16*TP}, v2
    v_lshl_add_u32 v5, v1, 4, v4
    v_add_u32 v5, s10, v5
    s_nop 1""")
    for mt in range(2):
        for nt in range(2):
            c = ACC + 16 * (2 * mt + nt); d = FA + 16 * mt + 8 * nt
            for i in range(8): a(f"v_cvt_pk_bf16_f32 v{d+i}, v{c+2*i}, v{c+2*i+1}")
    def store_T(va):
        for r in range(16):
            t1 = (r & 3) + 8 * (r >> 2)
            d = 16 + 2 * (r & 3)
            a(f"v_cvt_pk_bf16_f32 v{d}, v{ACC+r}, v{ACC+16+r}")
            a(f"v_cvt_pk_bf16_f32 v{d+1}, v{ACC+32+r}, v{ACC+48+r}")
            a(f"s_add_u32 s11, s9, {t1*16*TP}")
            a(f"buffer_store_dwordx2 v[{d}:{d+1}], v{va}, s[{sWS}:{sWS+3}], s11 offen")
    a(f"s_cmp_lg_u32 s10, 0\ns_cbranch_scc1 {N}_A2")
    for mt in range(2):
        bf = FA + 16 * mt + 8; F = FP + 24 * mt
        tr_, ti_ = vr(ACC + 32 * mt, 16), vr(ACC + 32 * mt + 16, 16)
        a(f"{MF} {tr_}, {vr(F,4)}, {vr(bf,4)}, 0")
        a(f"{MF} {ti_}, {vr(F+16,4)}, {vr(bf,4)}, 0")
        a(f"{MF} {tr_}, {vr(F+4,4)}, {vr(bf+4,4)}, {tr_}")
        a(f"{MF} {ti_}, {vr(F+20,4)}, {vr(bf+4,4)}, {ti_}")
    a("s_mov_b32 exec_lo, 1\ns_mov_b32 exec_hi, 1\nv_add_u32 v6, 4096, v4")
    for mt in range(2):
        for i in range(8): a(f"v_mov_b32 v{FA+16*mt+8+i}, 0")
    store_T(6)
    a("s_mov_b64 exec, -1\ns_nop 3")
    a.label(f"{N}_A2")
    for mt in range(2):
        af = FA + 16 * mt; bf = af + 8; F = FP + 24 * mt
        tr_, ti_ = vr(ACC + 32 * mt, 16), vr(ACC + 32 * mt + 16, 16)
        a(f"{MF} {tr_}, {vr(F,4)}, {vr(af,4)}, 0")
        a(f"{MF} {ti_}, {vr(F,4)}, {vr(bf,4)}, 0")
        a(f"{MF} {tr_}, {vr(F+4,4)}, {vr(af+4,4)}, {tr_}")
        a(f"{MF} {ti_}, {vr(F+4,4)}, {vr(bf+4,4)}, {ti_}")
        a(f"{MF} {tr_}, {vr(F+8,4)}, {vr(bf,4)}, {tr_}")
        a(f"{MF} {ti_}, {vr(F+16,4)}, {vr(af,4)}, {ti_}")
        a(f"{MF} {tr_}, {vr(F+12,4)}, {vr(bf+4,4)}, {tr_}")
        a(f"{MF} {ti_}, {vr(F+20,4)}, {vr(af+4,4)}, {ti_}")
    a.nop(12)
    store_T(5)
    stamp_out(a, 0, sWS)
    a("s_endpgm")
    return 176

def k2(a):
    N = "k2_kernel"
    sWS = 40
    Q, KR, VR, M8, M0, PM, SA, SB, CN, P, O = 8, 12, 48, 120, 136, 152, 160, 176, 192, 208, 224
    entry(a, N)
    a("""s_and_b32 s4, s2, 7
    s_lshl_b32 s4, s4, 2
    s_bfe_u32 s5, s2, 0x20003
    s_add_u32 s4, s4, s5
    s_lshr_b32 s5, s2, 5
    s_lshl_b32 s6, s4, 6
    s_lshl_b32 s7, s5, 3
    s_add_u32 s6, s6, s7
    v_lshlrev_b32 v1, 4, v0
    s_add_u32 s8, s6, s3
    s_lshl_b32 s8, s8, 10
    s_lshl_b32 s9, s3, 1
    s_add_u32 s10, s6, s9
    s_lshl_b32 s10, s10, 10""")
    a(f"s_add_u32 s10, s10, {KF - 8192}\ns_add_u32 s11, s10, {VF - KF}\ns_lshl_b32 m0, s3, 11")
    a("s_waitcnt lgkmcnt(0)")
    srd(a, sWS, 38, WS_BYTES)
    W = f"s[{sWS}:{sWS+3}]"
    a(f"buffer_load_dwordx4 v1, {W}, s10 offen lds\nbuffer_load_dwordx4 v1, {W}, s10 offen offset:1024 lds")
    a(f"buffer_load_dwordx4 v[{Q}:{Q+3}], v1, {W}, s8 offen")
    a("s_add_u32 m0, m0, 16384\ns_nop 0")
    a(f"buffer_load_dwordx4 v1, {W}, s11 offen lds\nbuffer_load_dwordx4 v1, {W}, s11 offen offset:1024 lds")
    a("""v_mov_b32 v4, 0x3f803f80
    v_mov_b32 v5, v4
    v_mov_b32 v6, v4
    v_mov_b32 v7, v4
    v_and_b32 v2, 31, v0
    v_lshlrev_b32 v3, 9, v2
    ds_write_b128 v3, v[4:7] offset:32768""")
    a("""v_lshrrev_b32 v3, 5, v0
    v_lshlrev_b32 v4, v2, -2
    v_lshlrev_b32 v5, 2, v3
    v_lshrrev_b32 v4, v5, v4
    s_mov_b32 s12, 0xff800000
    s_mov_b32 s13, 0xffff""")
    for r in range(16):
        c = (r & 3) + 8 * (r >> 2)
        a(f"v_bfe_i32 v{SA+r}, v4, {c}, 1")
        a(f"v_and_b32 v{M8+r}, s12, v{SA+r}")
        a(f"v_xor_b32 v{M0+r}, s12, v{M8+r}")
    for p in range(8): a(f"v_bfi_b32 v{PM+p}, s13, v{SA+2*p}, v{SA+2*p+1}")
    a("""s_lshl_b32 s9, s3, 10
    v_add_u32 v5, s9, v1
    v_and_b32 v6, 15, v0
    v_lshlrev_b32 v6, 4, v6
    v_lshl_add_u32 v6, v3, 8, v6
    v_add_u32 v6, s9, v6
    v_add_u32 v6, 16384, v6
    v_bfe_i32 v7, v0, 4, 1
    v_mov_b32 v4, 32768
    v_bfi_b32 v6, v7, v4, v6""")
    a("s_add_u32 s14, s3, 1\ns_cmp_eq_u32 s5, 0\ns_cselect_b32 s14, s14, 9")
    a(f"""s_add_u32 s7, s7, s3
    s_lshl_b32 s9, s4, 11
    s_lshr_b32 s15, s7, 5
    s_lshl_b32 s15, s15, 10
    s_add_u32 s9, s9, s15
    s_and_b32 s15, s7, 31
    s_lshl_b32 s15, s15, 4
    s_add_u32 s9, s9, s15
    s_add_u32 s9, s9, {OF}
    v_lshlrev_b32 v2, 16, v2
    v_lshl_add_u32 v2, v3, 9, v2""")
    for i in range(0, 16, 2): a(f"v_mov_b64 v[{O+i}:{O+i+1}], 0")
    a("s_waitcnt vmcnt(2) lgkmcnt(0)\ns_barrier")
    stamp(a, 1)
    order = list(range(8, -1, -1))
    for j in order: a(f"ds_read_b128 v[{KR+4*j}:{KR+4*j+3}], v5 offset:{1024*j}")
    q = vr(Q, 4)
    S = [SA, SB]
    m = 3
    a(f"v_mov_b32 v{m}, s12")
    def smf(n, C):
        j = order[n]
        a(f"{MF} {vr(S[n&1],16)}, {vr(KR+4*j,4)}, {q}, {C}")
    def c1(n):
        j = order[n]
        return vr(M8, 16) if j == 8 else (vr(M0, 16) if j == 0 else "0")
    a("s_waitcnt lgkmcnt(8)"); smf(0, c1(0))
    for n in range(9):
        if n < 8:
            a(f"s_waitcnt lgkmcnt({7-n})"); smf(n + 1, c1(n + 1))
        if n == 0: a.nop(10)
        if n == 8: a.nop(2)
        s = S[n & 1]
        for i in range(8): a(f"v_max3_f32 v{m}, v{m}, v{s+2*i}, v{s+2*i+1}")
        if n < 8: a(f"s_cmp_eq_u32 s14, {n+1}\ns_cbranch_scc1 {N}_p1done")
    a.label(f"{N}_p1done")
    a("s_waitcnt vmcnt(0)\ns_barrier")
    for j in order:
        for ks in range(2): a(f"ds_read_b128 v[{VR+8*j+4*ks}:{VR+8*j+4*ks+3}], v6 offset:{1024*j+512*ks}")
    a(f"v_mov_b32 v4, v{m}\ns_nop 1\nv_permlane32_swap_b32 v4, v{m}\ns_nop 0\nv_max_f32 v4, v4, v{m}")
    a(f"v_sub_f32 v{CN}, 0, v4\nv_sub_f32 v{CN+1}, 0, v4")
    for i in range(2, 16, 2): a(f"v_mov_b64 v[{CN+i}:{CN+i+1}], v[{CN}:{CN+1}]")
    stamp(a, 2)
    a("s_nop 1")
    cn = vr(CN, 16); o = vr(O, 16)
    smf(0, cn)
    for n in range(9):
        j = order[n]
        if n < 8: smf(n + 1, cn)
        if n == 0: a.nop(11)
        s = S[n & 1]; p = P + 8 * (n & 1)
        for i in range(16): a(f"v_exp_f32 v{s+i}, v{s+i}")
        for i in range(8): a(f"v_cvt_pk_bf16_f32 v{p+i}, v{s+2*i}, v{s+2*i+1}")
        if j == 8:
            for i in range(8): a(f"v_bfi_b32 v{p+i}, v{PM+i}, 0, v{p+i}")
        if j == 0:
            for i in range(8): a(f"v_and_b32 v{p+i}, v{PM+i}, v{p+i}")
        if n == 0: a("s_waitcnt lgkmcnt(0)")
        a(f"s_cmp_eq_u32 s14, {n+1}")
        a(f"{MF} {o}, {vr(VR+8*j,4)}, {vr(p,4)}, {o}")
        a(f"{MF} {o}, {vr(VR+8*j+4,4)}, {vr(p+4,4)}, {o}")
        if n < 8: a(f"s_cbranch_scc1 {N}_p2done")
    a.label(f"{N}_p2done")
    a.nop(12)
    a(f"v_rcp_f32 v4, v{O+8}\ns_nop 0")
    for i in range(8): a(f"v_mul_f32 v{O+i}, v{O+i}, v4")
    for i in range(4): a(f"v_cvt_pk_bf16_f32 v{P+i}, v{O+2*i}, v{O+2*i+1}")
    a(f"buffer_store_dwordx4 v[{P}:{P+3}], v2, {W}, s9 offen")
    stamp_out(a, 1, sWS)
    a.label(f"{N}_end")
    a("s_endpgm")
    return 240

def k3(a):
    N = "k3_kernel"
    sWS, sWO, sOUT = 40, 44, 48
    entry(a, N)
    a("""s_and_b32 s4, s2, 7
    s_lshl_b32 s4, s4, 2
    s_bfe_u32 s5, s2, 0x20003
    s_add_u32 s4, s4, s5
    s_lshr_b32 s5, s2, 5""")
    a(f"s_cmp_lt_u32 s3, 4\ns_cbranch_scc1 {N}_comp")
    W = f"s[{sWS}:{sWS+3}]"; WO = f"s[{sWO}:{sWO+3}]"
    a("s_sub_u32 s7, s3, 4")
    a("""v_lshlrev_b32 v1, 4, v0
    v_lshrrev_b32 v2, 3, v0
    v_lshlrev_b32 v2, 10, v2
    v_bfe_u32 v3, v0, 2, 1
    v_bfe_u32 v4, v0, 4, 1
    v_xor_b32 v3, v3, v4
    v_lshl_add_u32 v2, v3, 6, v2
    v_and_b32 v3, 3, v0
    v_lshl_add_u32 v10, v3, 4, v2
    v_add_u32 v11, 7168, v10
    v_add_u32 v12, 7168, v11
    v_add_u32 v13, 7168, v12""")
    a(f"""s_lshl_b32 s8, s4, 16
    s_lshl_b32 s9, s7, 12
    s_add_u32 s8, s8, s9
    s_add_u32 s8, s8, {OF}
    s_lshl_b32 s10, s7, 15
    s_lshl_b32 s11, s5, 7
    s_add_u32 s10, s10, s11
    s_waitcnt lgkmcnt(0)""")
    srd(a, sWS, 38, WS_BYTES)
    srd(a, sWO, 30, 512 * 512 * 2)
    def issue(q):
        a(f"s_add_u32 m0, s9, {16384*q}")
        if q: a("s_add_u32 s8, s8, 16384")
        else: a("s_nop 0")
        for i in range(4): a(f"buffer_load_dwordx4 v1, {W}, s8 offen offset:{1024*i} lds")
        a(f"s_add_u32 m0, s9, {65536+16384*q}")
        if q: a("s_add_u32 s10, s10, 131072")
        else: a("s_nop 0")
        for i in range(4): a(f"buffer_load_dwordx4 v{10+i}, {WO}, s10 offen offset:{1024*i} lds")
    issue(0); issue(1); issue(2)
    a("s_waitcnt vmcnt(16)\ns_barrier")
    issue(3)
    a(f"""s_lshl_b32 s11, s5, 10
    v_add_u32 v2, s11, v1
    v_sub_u32 v3, 8192, v2
    s_sub_u32 s12, 32, s4
    s_and_b32 s12, s12, 31
    s_cmp_ge_u32 s5, 4
    s_cselect_b32 s12, s12, s4
    s_cselect_b64 vcc, -1, 0
    s_lshl_b32 s12, s12, 4
    s_lshl_b32 s13, s7, 2
    s_add_u32 s12, s12, s13
    s_mul_i32 s12, s12, {TP}
    s_add_u32 s12, s12, {TF}
    v_cndmask_b32 v2, v2, v3, vcc
    s_waitcnt vmcnt(16)
    s_barrier
    s_add_u32 m0, s9, 131072
    s_nop 0""")
    for i in range(4):
        a(f"buffer_load_dwordx4 v2, {W}, s12 offen offset:{1024*i} lds")
        if i < 3: a(f"s_add_u32 s12, s12, {TP-1024}")
    a("s_waitcnt vmcnt(12)\ns_barrier\ns_waitcnt vmcnt(4)\ns_barrier\ns_waitcnt vmcnt(0)\ns_barrier")
    stamp_out(a, 2, sWS)
    a.label(f"{N}_end")
    a("s_endpgm")
    AB, AY, F, FR = 16, 32, 48, 80
    a.label(f"{N}_comp")
    a("s_lshr_b32 s7, s3, 1\ns_and_b32 s8, s3, 1")
    a("""v_and_b32 v1, 31, v0
    v_lshrrev_b32 v2, 5, v0
    s_lshl_b32 s9, s8, 5
    v_add_u32 v3, s9, v1""")
    a(f"""s_lshl_b32 s9, s4, 8
    s_add_u32 s9, s9, {GF}
    v_lshlrev_b32 v4, 2, v3
    s_waitcnt lgkmcnt(0)""")
    srd(a, sWS, 38, WS_BYTES)
    srd(a, sOUT, 34, 2048 * 512 * 2)
    a(f"buffer_load_dword v15, v4, {W}, s9 offen")
    a("""s_cmp_eq_u32 s4, 0
    s_cselect_b32 s9, 64, 63
    v_sub_u32 v4, s9, v3
    v_and_b32 v4, 63, v4
    s_cmp_ge_u32 s5, 4
    s_cselect_b64 vcc, -1, 0
    v_cndmask_b32 v4, v3, v4, vcc
    v_cvt_f32_u32 v4, v4
    v_mul_f32 v4, 0x3c800000, v4
    v_cvt_f32_u32 v5, v2
    v_mul_f32 v5, 4.0, v5
    v_mul_f32 v5, v5, v4""")
    for ks in range(8):
        for u in range(0, 4, 2):
            a(f"v_fmamk_f32 v6, v4, {fhex(float(8*ks+u))}, v5")
            a("v_add_f32 v7, v6, v4")
            a("v_cos_f32 v8, v6\nv_sin_f32 v9, v6\nv_cos_f32 v10, v7\nv_sin_f32 v11, v7")
            a(f"v_cvt_pk_bf16_f32 v{F+4*ks+u}, v8, v9")
            a(f"v_cvt_pk_bf16_f32 v{F+4*ks+u+1}, v10, v11")
    a("""s_lshl_b32 s9, s8, 10
    v_lshlrev_b32 v6, 4, v0
    v_add_u32 v6, s9, v6
    v_bfe_u32 v9, v0, 2, 2
    v_lshl_add_u32 v7, v2, 2, v9
    v_lshlrev_b32 v7, 7, v7
    v_lshrrev_b32 v9, 1, v9
    v_xor_b32 v9, s7, v9
    v_lshl_add_u32 v7, v9, 6, v7
    v_and_b32 v9, 1, v0
    v_lshl_add_u32 v7, v9, 5, v7
    v_bfe_u32 v9, v0, 4, 1
    v_lshl_add_u32 v7, v9, 4, v7
    v_bfe_u32 v9, v0, 1, 1
    v_lshl_add_u32 v7, v9, 3, v7
    v_add_u32 v7, 0x10000, v7
    v_bfe_u32 v9, v0, 2, 1
    v_lshlrev_b32 v8, 4, v9
    v_and_b32 v9, 3, v0
    v_add_u32 v8, v8, v9
    v_bfe_u32 v9, v0, 3, 2
    v_lshl_add_u32 v8, v9, 2, v8
    s_lshl_b32 s9, s7, 5
    v_add_u32 v8, s9, v8
    v_lshlrev_b32 v8, 4, v8
    v_lshl_add_u32 v8, v2, 10, v8
    v_add_u32 v8, 0x20000, v8""")
    a("""v_lshlrev_b32 v9, 15, v3
    v_lshl_add_u32 v9, v2, 5, v9
    s_lshl_b32 s9, s4, 10
    s_lshl_b32 s10, s5, 7
    s_add_u32 s9, s9, s10
    s_lshl_b32 s10, s7, 6
    s_add_u32 s9, s9, s10""")
    ab = vr(AB, 16); ay = vr(AY, 16)
    for i in range(0, 16, 2): a(f"v_mov_b64 v[{AB+i}:{AB+i+1}], 0")
    a("s_mov_b32 s14, 0")
    a.label(f"{N}_loop")
    a("s_barrier")
    def rd(h):
        f = FR + 8 * h
        a(f"ds_read_b64_tr_b16 v[{f}:{f+1}], v7 offset:{2048*h}")
        a(f"ds_read_b64_tr_b16 v[{f+2}:{f+3}], v7 offset:{2048*h+1024}")
        a(f"ds_read_b128 v[{f+4}:{f+7}], v6 offset:{2048*h}")
    for h in range(4): rd(h)
    for h in range(8):
        if h + 4 < 8:
            a("s_waitcnt lgkmcnt(9)")
        else:
            a(f"s_waitcnt lgkmcnt({3*(7-h)})")
        f = FR + 8 * h
        a(f"{MF} {ab}, {vr(f,4)}, {vr(f+4,4)}, {ab}")
        if h + 4 < 8: rd(h + 4)
    a("v_add_u32 v6, 16384, v6\nv_add_u32 v7, 16384, v7")
    a(f"s_add_u32 s14, s14, 1\ns_cmp_lt_u32 s14, 4\ns_cbranch_scc1 {N}_loop")
    a("s_barrier")
    stamp(a, 1)
    for ks in range(8): a(f"ds_read_b128 v[{FR+4*ks}:{FR+4*ks+3}], v8 offset:{2048*ks}")
    for ks in range(8):
        a(f"s_waitcnt lgkmcnt({7-ks})")
        a(f"{MF} {ay}, {vr(FR+4*ks,4)}, {vr(F+4*ks,4)}, {'0' if ks == 0 else ay}")
    stamp(a, 2)
    a("s_waitcnt vmcnt(0)")
    a.nop(11)
    for i in range(16):
        a(f"v_sub_f32 v{AY+i}, v{AY+i}, v{AB+i}")
        a(f"v_fmac_f32 v{AB+i}, v{AY+i}, v15")
    for i in range(8): a(f"v_cvt_pk_bf16_f32 v{F+i}, v{AB+2*i}, v{AB+2*i+1}")
    a(f"buffer_store_dwordx4 v[{F}:{F+3}], v9, s[{sOUT}:{sOUT+3}], s9 offen")
    a(f"buffer_store_dwordx4 v[{F+4}:{F+7}], v9, s[{sOUT}:{sOUT+3}], s9 offen offset:16")
    stamp_out(a, 2, sWS)
    a("s_endpgm")
    return 144

def desc(name, nv):
    return f""".p2align 6
.amdhsa_kernel {name}
  .amdhsa_next_free_vgpr {nv}
  .amdhsa_next_free_sgpr 102
  .amdhsa_accum_offset {(nv+3)//4*4}
  .amdhsa_group_segment_fixed_size 0
  .amdhsa_kernarg_size 96
  .amdhsa_user_sgpr_count 2
  .amdhsa_user_sgpr_kernarg_segment_ptr 1
  .amdhsa_system_sgpr_workgroup_id_x 1
.end_amdhsa_kernel
"""

a = Asm()
n1 = k1(a); n2 = k2(a); n3 = k3(a)
a.lines = [l + SF if ("buffer_store" in l and "v2, s[" not in l.replace("v2, s[40:43], s9", "X")) else l for l in a.lines]
if NOLD or NOMM or NORD:
    o = []; ink1 = False
    for l in a.lines:
        if l.startswith("k1_kernel:"): ink1 = True
        if l.startswith("k2_kernel:"): ink1 = False
        if ink1 and NOLD and l.rstrip().endswith(" lds"): continue
        if ink1 and NOMM and "v_mfma" in l: continue
        if ink1 and NORD and "ds_read" in l: continue
        o.append(l)
    a.lines = o
for m in check_hazards(a.lines): print("HAZARD", m, file=sys.stderr)
hdr = """; gated mix of FNet spectral mixing and sliding-window attention; generated by dev/gen.py
; @launch kernel=k1_kernel grid=(256,1,1) block=(512,1,1) lds=131072
; @launch kernel=k2_kernel grid=(256,1,1) block=(512,1,1) lds=49152
; @launch kernel=k3_kernel grid=(256,1,1) block=(512,1,1) lds=147456
.amdgcn_target "amdgcn-amd-amdhsa--gfx950"
.text
.globl k1_kernel
.type k1_kernel,@function
.globl k2_kernel
.type k2_kernel,@function
.globl k3_kernel
.type k3_kernel,@function
"""
out = hdr + a.text() + '.section .rodata,"a"\n' + desc("k1_kernel", n1) + desc("k2_kernel", n2) + desc("k3_kernel", n3)
fn = [x for x in sys.argv[1:] if not x.startswith("--")][0]
open(fn, "w").write(out)
```

```python
import sys, math
from asmlib import *

STAMP = "--stamp" in sys.argv
SF = ""
for x in sys.argv:
    if x.startswith("--sf="): SF = " " + x[5:].replace("+", " ")
NOLD = "--nold" in sys.argv
NOMM = "--nomm" in sys.argv
NORD = "--nord" in sys.argv
TOUCH = "--touch" in sys.argv
FUSED = "--fused" in sys.argv
XS = 0
for x in sys.argv:
    if x.startswith("--xs="): XS = int(x[5:])
QF, KF, VF, TF, OF, GF = 0x000000, 0x200000, 0x400000, 0x600000, 0x900000, 0xB00000
STF = 0xC00000
WS_BYTES = 0x1000000
TP = 4224
MF = "v_mfma_f32_32x32x16_bf16"
QSCALE = 0.25 * math.log2(math.e)

def srd(a, d, ptr, nbytes):
    a(f"s_mov_b32 s{d}, s{ptr}\ns_mov_b32 s{d+1}, s{ptr+1}\ns_mov_b32 s{d+2}, {nbytes}\ns_mov_b32 s{d+3}, 0x00020000")

def entry(a, name):
    if FUSED and name != "k1_kernel":
        a(f".p2align 8\n{name}:")
        k = int(name[1]) - 1
        a("s_mov_b64 exec, -1\ns_waitcnt vmcnt(0) lgkmcnt(0)\ns_barrier")
        a(f"s_cmp_lg_u32 s3, 0\ns_cbranch_scc1 {name}_go")
        a("s_mov_b32 s64, s36\ns_mov_b32 s65, s37\ns_mov_b32 s66, 256\ns_mov_b32 s67, 0x00020000")
        a("buffer_wbl2 sc1\ns_waitcnt vmcnt(0)")
        a(f"s_mov_b64 exec, 1\nv_mov_b32 v1, {128*(k-1)}\nv_mov_b32 v2, 1\nbuffer_atomic_add v2, v1, s[64:67], 0 offen sc1\ns_mov_b32 s68, 0")
        a(f"{name}_spin:\ns_sleep 2\nbuffer_load_dword v2, v1, s[64:67], 0 offen sc1\ns_waitcnt vmcnt(0)\nv_readfirstlane_b32 s69, v2\ns_add_u32 s68, s68, 1")
        a(f"s_cmp_gt_u32 s68, 200000\ns_cbranch_scc1 {name}_sx\ns_cmp_lt_u32 s69, 256\ns_cbranch_scc1 {name}_spin")
        a(f"{name}_sx:\ns_mov_b64 exec, -1\nbuffer_inv sc1\ns_waitcnt vmcnt(0)")
        a(f"{name}_go:\ns_barrier")
        if STAMP: a("s_memrealtime s[90:91]\ns_memtime s[86:87]")
        return
    a(f".p2align 12\n{name}:")
    if STAMP: a("s_memrealtime s[90:91]\ns_memtime s[86:87]")
    a("s_load_dwordx16 s[16:31], s[0:1], 0")
    a("s_load_dwordx8 s[32:39], s[0:1], 64")
    a(f"s_cmp_ge_u32 s2, 256\ns_cbranch_scc1 {name}_end")
    a("v_lshrrev_b32 v1, 6, v0\nv_and_b32 v0, 63, v0\nv_readfirstlane_b32 s3, v1")

def stamp(a, i):
    if STAMP: a(f"s_memrealtime s[{90+2*i}:{91+2*i}]")

def stamp_out(a, kidx, wsrd):
    if not STAMP: return
    a("s_memrealtime s[96:97]\ns_waitcnt vmcnt(0) lgkmcnt(0)\ns_memrealtime s[98:99]\ns_memtime s[100:101]\ns_waitcnt lgkmcnt(0)\ns_sub_u32 s100, s100, s86\ns_mov_b32 s101, 0")
    a(f"s_lshl_b32 s88, s2, 3\ns_add_u32 s88, s88, s3\ns_lshl_b32 s88, s88, 6\ns_add_u32 s88, s88, {STF + kidx * 131072}")
    a("s_mov_b64 exec, 1")
    for i in range(12): a(f"v_mov_b32 v{4+i}, s{90+i}")
    a("v_mov_b32 v2, s88")
    a(f"buffer_store_dwordx4 v[4:7], v2, s[{wsrd}:{wsrd+3}], 0 offen")
    a(f"buffer_store_dwordx4 v[8:11], v2, s[{wsrd}:{wsrd+3}], 0 offen offset:16")
    a(f"buffer_store_dwordx4 v[12:15], v2, s[{wsrd}:{wsrd+3}], 0 offen offset:32")

def k1(a):
    N = "k1_kernel"
    sX, sW, sWS, sG = 40, 44, 48, 52
    entry(a, N)
    a("""s_and_b32 s4, s2, 7
    s_lshr_b32 s7, s2, 3
    s_and_b32 s5, s4, 1
    s_lshl_b32 s5, s5, 3
    s_and_b32 s8, s7, 7
    s_add_u32 s5, s5, s8
    s_lshr_b32 s6, s7, 3
    s_lshr_b32 s4, s4, 1""")
    a(f"s_cmp_lt_u32 s3, 4\ns_cbranch_scc1 {N}_comp")
    a("s_sub_u32 s7, s3, 4")
    a("""v_lshrrev_b32 v1, 3, v0
    v_and_b32 v2, 7, v0
    v_lshrrev_b32 v3, 4, v0
    v_xor_b32 v2, v2, v3
    v_lshlrev_b32 v2, 4, v2
    v_xor_b32 v4, 64, v2""")
    a("""s_lshl_b32 s8, s5, 7
    s_lshl_b32 s9, s7, 5
    s_add_u32 s8, s8, s9
    s_lshl_b32 s9, s5, 2
    s_add_u32 s9, s9, s7
    s_movk_i32 s10, 7168
    s_cmp_eq_u32 s4, 3
    s_cselect_b32 s8, s9, s8
    s_cselect_b32 s9, 16, 10
    s_cselect_b32 s10, 523264, s10
    s_lshl_b32 s8, s8, 10""")
    a("""v_lshlrev_b32 v5, s9, v1
    v_add_u32 v5, s8, v5
    v_add_u32 v10, v5, v2
    v_add_u32 v5, s10, v5
    v_add_u32 v11, v5, v4
    v_add_u32 v5, s10, v5
    v_add_u32 v12, v5, v2
    v_add_u32 v5, s10, v5
    v_add_u32 v13, v5, v4""")
    a("s_mov_b64 s[12:13], -1")
    a(f"s_cmp_eq_u32 s4, 3\ns_cbranch_scc1 {N}_ldA")
    a("""s_mul_i32 s8, s7, 49152
    s_lshl_b32 s9, s4, 10
    s_add_u32 s8, s8, s9
    s_lshl_b32 s9, s6, 8
    s_add_u32 s8, s8, s9
    v_mul_u32_u24 v5, 3072, v3
    v_bfe_u32 v6, v0, 2, 2
    v_xor_b32 v6, v6, v3
    v_lshlrev_b32 v6, 6, v6
    v_and_b32 v7, 3, v0
    v_lshlrev_b32 v7, 4, v7
    v_add3_u32 v5, v5, v6, v7
    v_add_u32 v14, s8, v5
    v_add_u32 v15, 11264, v14
    v_add_u32 v16, 11264, v15
    v_add_u32 v17, 11264, v16
    s_mov_b32 s11, 196608
    s_waitcnt lgkmcnt(0)""")
    srd(a, sW, 28, 512 * 1536 * 2)
    a(f"s_branch {N}_ldgo")
    a.label(f"{N}_ldA")
    a("""s_lshl_b32 s8, s6, 6
    s_lshr_b32 s9, s7, 1
    s_lshl_b32 s9, s9, 5
    s_add_u32 s8, s8, s9
    s_lshl_b32 s8, s8, 10
    v_lshlrev_b32 v5, 10, v1
    v_add_u32 v5, s8, v5
    v_add_u32 v14, v5, v2
    v_add_u32 v5, 7168, v5
    v_add_u32 v15, v5, v4
    v_add_u32 v5, 7168, v5
    v_add_u32 v16, v5, v2
    v_add_u32 v5, 7168, v5
    v_add_u32 v17, v5, v4
    s_mov_b32 s11, 128
    s_lshl_b32 s8, s6, 2
    s_add_u32 s8, s8, s7
    s_cmp_eq_u32 s8, 1
    s_cselect_b32 s12, 0xffffff00, -1
    s_waitcnt lgkmcnt(0)
    s_bitcmp1_b32 s7, 0""")
    a(f"s_cselect_b32 s{sW}, s24, s22\ns_cselect_b32 s{sW+1}, s25, s23\ns_mov_b32 s{sW+2}, {512*512*2}\ns_mov_b32 s{sW+3}, 0x00020000")
    a.label(f"{N}_ldgo")
    srd(a, sX, 16, 2048 * 512 * 2)
    a("s_lshl_b32 s8, s7, 12\ns_mov_b32 s9, 0\ns_mov_b32 s10, 0\ns_mov_b32 s14, 0")
    if XS == 1: a("s_add_u32 s15, s5, s6\ns_and_b32 s15, s15, 1\ns_lshl_b32 s15, s15, 1")
    if XS == 2: a("s_add_u32 s15, s5, s6\ns_and_b32 s15, s15, 3\ns_lshl_b32 s15, s15, 1")
    if XS == 3: a("s_add_u32 s15, s5, s6\ns_and_b32 s15, s15, 1\ns_lshl_b32 s15, s15, 2")
    a.label(f"{N}_ldloop")
    a(f"s_cmp_lt_u32 s14, 3\ns_cbranch_scc1 {N}_ldissue")
    a("s_waitcnt vmcnt(16)\ns_barrier")
    a.label(f"{N}_ldissue")
    if XS: a("s_xor_b32 s9, s14, s15\ns_mul_i32 s10, s9, s11\ns_lshl_b32 s9, s9, 7")
    a("s_mov_b32 m0, s8\ns_add_u32 s14, s14, 1")
    for i in range(4): a(f"buffer_load_dwordx4 v{10+i}, s[{sX}:{sX+3}], s9 offen offset:{1024*i} lds")
    a("s_add_u32 m0, s8, 16384\ns_mov_b64 exec, s[12:13]")
    a(f"buffer_load_dwordx4 v14, s[{sW}:{sW+3}], s10 offen lds")
    a("s_mov_b64 exec, -1")
    for i in range(1, 4): a(f"buffer_load_dwordx4 v{14+i}, s[{sW}:{sW+3}], s10 offen offset:{1024*i} lds")
    a("""s_add_u32 s9, s9, 128
    s_add_u32 s10, s10, s11
    s_add_u32 s8, s8, 32768
    s_and_b32 s8, s8, 0x1ffff""")
    a(f"s_cmp_lt_u32 s14, 8\ns_cbranch_scc1 {N}_ldloop")
    srd(a, sG, 32, 1024)
    srd(a, sWS, 38, WS_BYTES)
    a("""s_lshl_b32 s8, s2, 3
    s_lshl_b32 s9, s7, 1
    s_add_u32 s8, s8, s9
    s_lshl_b32 s9, s8, 10
    v_lshlrev_b32 v1, 5, v0
    v_and_b32 v2, 1023, v1""")
    a(f"""buffer_load_dwordx4 v[20:23], v1, s[{sX}:{sX+3}], s9 offen
    buffer_load_dwordx4 v[24:27], v1, s[{sX}:{sX+3}], s9 offen offset:16
    buffer_load_dwordx4 v[28:31], v2, s[{sG}:{sG+3}], 0 offen
    buffer_load_dwordx4 v[32:35], v2, s[{sG}:{sG+3}], 0 offen offset:16""")
    a("s_waitcnt vmcnt(20)\ns_barrier\ns_waitcnt vmcnt(12)\ns_barrier\ns_waitcnt vmcnt(4)\ns_barrier")
    a("v_mov_b32 v5, 0\ns_waitcnt vmcnt(0)")
    for i in range(8): a(f"v_dot2c_f32_bf16 v5, v{20+i}, v{28+i}")
    a("v_lshrrev_b32 v6, 5, v0\nv_add_u32 v6, s8, v6\nv_and_b32 v7, 31, v6")
    a("v_add_f32_dpp v5, v5, v5 quad_perm:[1,0,3,2] row_mask:0xf bank_mask:0xf")
    a("v_lshrrev_b32 v6, 5, v6\nv_lshlrev_b32 v7, 8, v7")
    a("v_add_f32_dpp v5, v5, v5 quad_perm:[2,3,0,1] row_mask:0xf bank_mask:0xf")
    a("v_lshl_add_u32 v6, v6, 2, v7\ns_nop 0")
    a("v_add_f32_dpp v5, v5, v5 row_half_mirror row_mask:0xf bank_mask:0xf\ns_nop 1")
    a("v_add_f32_dpp v5, v5, v5 row_mirror row_mask:0xf bank_mask:0xf\ns_nop 1")
    a("v_add_f32_dpp v5, v5, v5 row_bcast:15 row_mask:0xa bank_mask:0xf")
    a(f"v_mul_f32 v5, {fhex(-math.log2(math.e))}, v5\nv_exp_f32 v5, v5\ns_nop 0\nv_add_f32 v5, 1.0, v5\nv_rcp_f32 v5, v5")
    a("s_mov_b32 exec_lo, 0x80000000\ns_mov_b32 exec_hi, 0x80000000")
    a(f"s_mov_b32 s8, {GF}\nbuffer_store_dword v5, v6, s[{sWS}:{sWS+3}], s8 offen")
    stamp_out(a, 0, sWS)
    a.label(f"{N}_end")
    a("s_endpgm")

    ACC = 64
    FA, FB = 32, 48
    XA = 8
    WA = 12
    FP = 128
    a.label(f"{N}_comp")
    a("s_lshr_b32 s7, s3, 1\ns_and_b32 s8, s3, 1")
    a("""v_and_b32 v1, 31, v0
    v_lshrrev_b32 v2, 5, v0
    v_bfe_u32 v3, v0, 1, 3
    v_xor_b32 v3, v3, v2
    v_lshlrev_b32 v3, 4, v3
    v_lshl_add_u32 v3, v1, 7, v3""")
    a(f"s_lshl_b32 s9, s7, 13\nv_add_u32 v{XA}, s9, v3")
    for ks in range(1, 4): a(f"v_xor_b32 v{XA+ks}, {32*ks}, v{XA}")
    for i in range(0, 64, 2): a(f"v_mov_b64 v[{ACC+i}:{ACC+i+1}], 0")
    a("s_mov_b32 s14, 0\ns_mov_b32 s15, 32768\ns_waitcnt lgkmcnt(0)")
    srd(a, sWS, 38, WS_BYTES)
    if TOUCH:
        srd(a, 56, 30, 512 * 512 * 2); srd(a, 60, 34, 2048 * 512 * 2)
        a("v_lshlrev_b32 v4, 18, v0\nv_lshlrev_b32 v5, 13, v0\nv_lshlrev_b32 v6, 15, v0")
        a(f"buffer_load_dword v24, v4, s[{sWS}:{sWS+3}], 0 offen")
        a("buffer_load_dword v25, v5, s[56:59], 0 offen\nbuffer_load_dword v26, v6, s[60:63], 0 offen")
    a(f"s_cmp_eq_u32 s4, 3\ns_cbranch_scc1 {N}_A")
    a(f"""v_bfe_u32 v4, v0, 2, 2
    v_lshl_add_u32 v5, v2, 3, v4
    v_lshlrev_b32 v5, 8, v5
    s_lshl_b32 s9, s8, 1
    v_xor_b32 v4, s9, v4
    v_lshl_add_u32 v5, v4, 6, v5
    v_bfe_u32 v4, v0, 4, 1
    v_lshl_add_u32 v5, v4, 5, v5
    v_and_b32 v4, 3, v0
    v_lshl_add_u32 v{WA}, v4, 3, v5
    v_xor_b32 v{WA+1}, 64, v{WA}""")
    a(f"s_cmp_eq_u32 s4, 2\ns_cbranch_scc1 {N}_V")

    def mainloop(tag, tr, swap):
        nrd = 6 if tr else 4
        naddr = [XA + i for i in range(4)] + [WA + i for i in range(2 if tr else 4)]
        def rd(F, ks):
            for mt in range(2): a(f"ds_read_b128 v[{F+4*mt}:{F+4*mt+3}], v{XA+ks} offset:{4096*mt}")
            for nt in range(2):
                if tr:
                    for h in range(2): a(f"ds_read_b64_tr_b16 v[{F+8+4*nt+2*h}:{F+9+4*nt+2*h}], v{WA+nt} offset:{16384+4096*ks+1024*h}")
                else:
                    a(f"ds_read_b128 v[{F+8+4*nt}:{F+11+4*nt}], v{WA+ks} offset:{16384+4096*nt}")
        def mm(F):
            for mt in range(2):
                for nt in range(2):
                    x = vr(F + 4 * mt, 4); w = vr(F + 8 + 4 * nt, 4); c = vr(ACC + 16 * (2 * mt + nt), 16)
                    a(f"{MF} {c}, {w}, {x}, {c}" if swap else f"{MF} {c}, {x}, {w}, {c}")
        a("s_barrier")
        stamp(a, 1)
        rd(FA, 0)
        a.label(f"{N}_{tag}_loop")
        rd(FB, 1); a(f"s_waitcnt lgkmcnt({nrd})"); mm(FA)
        rd(FA, 2); a(f"s_waitcnt lgkmcnt({nrd})"); mm(FB)
        rd(FB, 3); a(f"s_waitcnt lgkmcnt({nrd})"); mm(FA)
        a("s_add_u32 s14, s14, 1\ns_and_b32 s9, s14, 3\ns_cselect_b32 s9, s15, -98304")
        for r in naddr: a(f"v_add_u32 v{r}, s9, v{r}")
        a(f"s_cmp_eq_u32 s14, 8\ns_waitcnt lgkmcnt(0)\ns_cbranch_scc1 {N}_{tag}_last")
        a("s_barrier")
        rd(FA, 0); mm(FB)
        a(f"s_branch {N}_{tag}_loop")
        a.label(f"{N}_{tag}_last")
        mm(FB)
        stamp(a, 2)

    mainloop("QK", True, True)
    a("""s_lshl_b32 s9, s4, 21
    s_lshl_b32 s10, s6, 19
    s_add_u32 s9, s9, s10
    s_lshl_b32 s10, s8, 18
    s_add_u32 s9, s9, s10
    s_lshl_b32 s10, s5, 12
    s_add_u32 s9, s9, s10
    s_lshl_b32 s10, s7, 11
    s_add_u32 s9, s9, s10
    v_lshlrev_b32 v4, 4, v0""")
    a(f"s_cmp_eq_u32 s4, 0\ns_cselect_b32 s10, {fhex(QSCALE)}, 1.0\ns_mov_b32 s11, s10")
    for nt in range(2):
        for mt in range(2):
            c = ACC + 16 * (2 * mt + nt)
            for i in range(0, 16, 2): a(f"v_pk_mul_f32 v[{c+i}:{c+i+1}], v[{c+i}:{c+i+1}], s[10:11]")
            d = FA + 8 * (2 * nt + mt)
            for i in range(8): a(f"v_cvt_pk_bf16_f32 v{d+i}, v{c+2*i}, v{c+2*i+1}")
            if mt == 0: a("s_add_u32 s12, s9, 65536")
            a(f"buffer_store_dwordx4 v[{d}:{d+3}], v4, s[{sWS}:{sWS+3}], s9 offen offset:{1024*mt}")
            a(f"buffer_store_dwordx4 v[{d+4}:{d+7}], v4, s[{sWS}:{sWS+3}], s12 offen offset:{1024*mt}")
        if nt == 0: a("s_add_u32 s9, s9, 131072")
    stamp_out(a, 0, sWS)
    a("s_endpgm")

    a.label(f"{N}_V")
    mainloop("V", True, False)
    a(f"""s_lshl_b32 s9, s6, 19
    s_add_u32 s9, s9, {VF}
    s_lshl_b32 s10, s8, 18
    s_add_u32 s9, s9, s10
    s_lshl_b32 s10, s5, 12
    s_add_u32 s9, s9, s10
    s_lshl_b32 s10, s7, 11
    s_add_u32 s9, s9, s10
    v_bfe_u32 v4, v0, 4, 1
    v_lshlrev_b32 v4, 16, v4
    v_lshl_add_u32 v4, v2, 8, v4
    v_and_b32 v5, 15, v0
    v_lshl_add_u32 v4, v5, 4, v4""")
    for nt in range(2):
        for mt in range(2):
            c = ACC + 16 * (2 * mt + nt)
            d = FA + 8 * (2 * nt + mt)
            for i in range(8): a(f"v_cvt_pk_bf16_f32 v{d+i}, v{c+2*i}, v{c+2*i+1}")
            a(f"buffer_store_dwordx4 v[{d}:{d+3}], v4, s[{sWS}:{sWS+3}], s9 offen offset:{1024*mt}")
            a(f"buffer_store_dwordx4 v[{d+4}:{d+7}], v4, s[{sWS}:{sWS+3}], s9 offen offset:{1024*mt+512}")
        if nt == 0: a("s_add_u32 s9, s9, 131072")
    stamp_out(a, 0, sWS)
    a("s_endpgm")

    a(".p2align 12")
    a.label(f"{N}_A")
    a(f"s_lshl_b32 s9, s8, 13\nv_add_u32 v{WA}, s9, v3")
    for ks in range(1, 4): a(f"v_xor_b32 v{WA+ks}, {32*ks}, v{WA}")
    a(f"s_cmp_lg_u32 s6, 0\ns_cbranch_scc1 {N}_A1")
    a("""v_and_b32 v4, 31, v0
    v_lshlrev_b32 v4, 2, v4
    s_lshl_b32 s9, s3, 15
    v_add_u32 v4, s9, v4
    v_mov_b32 v5, 0xbf803f80
    ds_write_b32 v4, v5 offset:20480""")
    a.label(f"{N}_A1")
    a("""v_cvt_f32_u32 v4, v1
    s_lshl_b32 s9, s5, 2
    s_lshl_b32 s10, s7, 1
    s_add_u32 s9, s9, s10
    v_lshlrev_b32 v5, 8, v2
    v_add_u32 v5, s9, v5
    v_cvt_f32_u32 v5, v5
    v_mul_f32 v6, 0x3a000000, v4
    v_mul_f32 v5, v5, v6
    v_mul_f32 v4, 0x3d000000, v4""")
    for mt in range(2):
        if mt == 1: a("v_add_f32 v5, v5, v6")
        for ks in range(2):
            for p in range(4):
                j0 = 2 * p
                c0 = 16 * ks + (j0 & 3) + 8 * (j0 >> 2)
                a(f"v_fmamk_f32 v16, v4, {fhex(float(c0))}, v5")
                a("v_add_f32 v17, v16, v4")
                a("v_cos_f32 v18, v16\nv_cos_f32 v19, v17\nv_sin_f32 v20, v16\nv_sin_f32 v21, v17")
                b = FP + 24 * mt + 4 * ks + p
                a(f"v_cvt_pk_bf16_f32 v{b}, v18, v19")
                a(f"v_cvt_pk_bf16_f32 v{b+8}, v20, v21")
                a(f"v_cvt_pk_bf16_f32 v{b+16}, -v20, -v21")
    a("s_waitcnt lgkmcnt(0)")
    mainloop("A", False, False)
    a(f"""s_mul_i32 s9, s5, {TP}
    s_add_u32 s9, s9, {TF}
    s_lshl_b32 s10, s7, 3
    s_add_u32 s9, s9, s10
    s_lshl_b32 s10, s6, 10
    s_lshl_b32 s11, s8, 9
    s_add_u32 s10, s10, s11
    v_mul_u32_u24 v4, {4*16*TP}, v2
    v_lshl_add_u32 v5, v1, 4, v4
    v_add_u32 v5, s10, v5
    s_nop 1""")
    for mt in range(2):
        for nt in range(2):
            c = ACC + 16 * (2 * mt + nt); d = FA + 16 * mt + 8 * nt
            for i in range(8): a(f"v_cvt_pk_bf16_f32 v{d+i}, v{c+2*i}, v{c+2*i+1}")
    def store_T(va):
        for r in range(16):
            t1 = (r & 3) + 8 * (r >> 2)
            d = 16 + 2 * (r & 3)
            a(f"v_cvt_pk_bf16_f32 v{d}, v{ACC+r}, v{ACC+16+r}")
            a(f"v_cvt_pk_bf16_f32 v{d+1}, v{ACC+32+r}, v{ACC+48+r}")
            a(f"s_add_u32 s11, s9, {t1*16*TP}")
            a(f"buffer_store_dwordx2 v[{d}:{d+1}], v{va}, s[{sWS}:{sWS+3}], s11 offen")
    a(f"s_cmp_lg_u32 s10, 0\ns_cbranch_scc1 {N}_A2")
    for mt in range(2):
        bf = FA + 16 * mt + 8; F = FP + 24 * mt
        tr_, ti_ = vr(ACC + 32 * mt, 16), vr(ACC + 32 * mt + 16, 16)
        a(f"{MF} {tr_}, {vr(F,4)}, {vr(bf,4)}, 0")
        a(f"{MF} {ti_}, {vr(F+16,4)}, {vr(bf,4)}, 0")
        a(f"{MF} {tr_}, {vr(F+4,4)}, {vr(bf+4,4)}, {tr_}")
        a(f"{MF} {ti_}, {vr(F+20,4)}, {vr(bf+4,4)}, {ti_}")
    a("s_mov_b32 exec_lo, 1\ns_mov_b32 exec_hi, 1\nv_add_u32 v6, 4096, v4")
    for mt in range(2):
        for i in range(8): a(f"v_mov_b32 v{FA+16*mt+8+i}, 0")
    store_T(6)
    a("s_mov_b64 exec, -1\ns_nop 3")
    a.label(f"{N}_A2")
    for mt in range(2):
        af = FA + 16 * mt; bf = af + 8; F = FP + 24 * mt
        tr_, ti_ = vr(ACC + 32 * mt, 16), vr(ACC + 32 * mt + 16, 16)
        a(f"{MF} {tr_}, {vr(F,4)}, {vr(af,4)}, 0")
        a(f"{MF} {ti_}, {vr(F,4)}, {vr(bf,4)}, 0")
        a(f"{MF} {tr_}, {vr(F+4,4)}, {vr(af+4,4)}, {tr_}")
        a(f"{MF} {ti_}, {vr(F+4,4)}, {vr(bf+4,4)}, {ti_}")
        a(f"{MF} {tr_}, {vr(F+8,4)}, {vr(bf,4)}, {tr_}")
        a(f"{MF} {ti_}, {vr(F+16,4)}, {vr(af,4)}, {ti_}")
        a(f"{MF} {tr_}, {vr(F+12,4)}, {vr(bf+4,4)}, {tr_}")
        a(f"{MF} {ti_}, {vr(F+20,4)}, {vr(af+4,4)}, {ti_}")
    a.nop(12)
    store_T(5)
    stamp_out(a, 0, sWS)
    a("s_endpgm")
    return 176

def k2(a):
    N = "k2_kernel"
    sWS = 40
    Q, KR, VR, M8, M0, PM, SA, SB, CN, P, O = 8, 12, 48, 120, 136, 152, 160, 176, 192, 208, 224
    entry(a, N)
    a("""s_and_b32 s4, s2, 7
    s_lshl_b32 s4, s4, 2
    s_bfe_u32 s5, s2, 0x20003
    s_add_u32 s4, s4, s5
    s_lshr_b32 s5, s2, 5
    s_lshl_b32 s6, s4, 6
    s_lshl_b32 s7, s5, 3
    s_add_u32 s6, s6, s7
    v_lshlrev_b32 v1, 4, v0
    s_add_u32 s8, s6, s3
    s_lshl_b32 s8, s8, 10
    s_lshl_b32 s9, s3, 1
    s_add_u32 s10, s6, s9
    s_lshl_b32 s10, s10, 10""")
    a(f"s_add_u32 s10, s10, {KF - 8192}\ns_add_u32 s11, s10, {VF - KF}\ns_lshl_b32 m0, s3, 11")
    a("s_waitcnt lgkmcnt(0)")
    srd(a, sWS, 38, WS_BYTES)
    W = f"s[{sWS}:{sWS+3}]"
    a(f"buffer_load_dwordx4 v1, {W}, s10 offen lds\nbuffer_load_dwordx4 v1, {W}, s10 offen offset:1024 lds")
    a(f"buffer_load_dwordx4 v[{Q}:{Q+3}], v1, {W}, s8 offen")
    a("s_add_u32 m0, m0, 16384\ns_nop 0")
    a(f"buffer_load_dwordx4 v1, {W}, s11 offen lds\nbuffer_load_dwordx4 v1, {W}, s11 offen offset:1024 lds")
    a("""v_mov_b32 v4, 0x3f803f80
    v_mov_b32 v5, v4
    v_mov_b32 v6, v4
    v_mov_b32 v7, v4
    v_and_b32 v2, 31, v0
    v_lshlrev_b32 v3, 9, v2
    ds_write_b128 v3, v[4:7] offset:32768""")
    a("""v_lshrrev_b32 v3, 5, v0
    v_lshlrev_b32 v4, v2, -2
    v_lshlrev_b32 v5, 2, v3
    v_lshrrev_b32 v4, v5, v4
    s_mov_b32 s12, 0xff800000
    s_mov_b32 s13, 0xffff""")
    for r in range(16):
        c = (r & 3) + 8 * (r >> 2)
        a(f"v_bfe_i32 v{SA+r}, v4, {c}, 1")
        a(f"v_and_b32 v{M8+r}, s12, v{SA+r}")
        a(f"v_xor_b32 v{M0+r}, s12, v{M8+r}")
    for p in range(8): a(f"v_bfi_b32 v{PM+p}, s13, v{SA+2*p}, v{SA+2*p+1}")
    a("""s_lshl_b32 s9, s3, 10
    v_add_u32 v5, s9, v1
    v_and_b32 v6, 15, v0
    v_lshlrev_b32 v6, 4, v6
    v_lshl_add_u32 v6, v3, 8, v6
    v_add_u32 v6, s9, v6
    v_add_u32 v6, 16384, v6
    v_bfe_i32 v7, v0, 4, 1
    v_mov_b32 v4, 32768
    v_bfi_b32 v6, v7, v4, v6""")
    a("s_add_u32 s14, s3, 1\ns_cmp_eq_u32 s5, 0\ns_cselect_b32 s14, s14, 9")
    a(f"""s_add_u32 s7, s7, s3
    s_lshl_b32 s9, s4, 11
    s_lshr_b32 s15, s7, 5
    s_lshl_b32 s15, s15, 10
    s_add_u32 s9, s9, s15
    s_and_b32 s15, s7, 31
    s_lshl_b32 s15, s15, 4
    s_add_u32 s9, s9, s15
    s_add_u32 s9, s9, {OF}
    v_lshlrev_b32 v2, 16, v2
    v_lshl_add_u32 v2, v3, 9, v2""")
    for i in range(0, 16, 2): a(f"v_mov_b64 v[{O+i}:{O+i+1}], 0")
    a("s_waitcnt vmcnt(2) lgkmcnt(0)\ns_barrier")
    stamp(a, 1)
    order = list(range(8, -1, -1))
    for j in order: a(f"ds_read_b128 v[{KR+4*j}:{KR+4*j+3}], v5 offset:{1024*j}")
    q = vr(Q, 4)
    S = [SA, SB]
    m = 3
    a(f"v_mov_b32 v{m}, s12")
    def smf(n, C):
        j = order[n]
        a(f"{MF} {vr(S[n&1],16)}, {vr(KR+4*j,4)}, {q}, {C}")
    def c1(n):
        j = order[n]
        return vr(M8, 16) if j == 8 else (vr(M0, 16) if j == 0 else "0")
    a("s_waitcnt lgkmcnt(8)"); smf(0, c1(0))
    for n in range(9):
        if n < 8:
            a(f"s_waitcnt lgkmcnt({7-n})"); smf(n + 1, c1(n + 1))
        if n == 0: a.nop(10)
        if n == 8: a.nop(2)
        s = S[n & 1]
        for i in range(8): a(f"v_max3_f32 v{m}, v{m}, v{s+2*i}, v{s+2*i+1}")
        if n < 8: a(f"s_cmp_eq_u32 s14, {n+1}\ns_cbranch_scc1 {N}_p1done")
    a.label(f"{N}_p1done")
    a("s_waitcnt vmcnt(0)\ns_barrier")
    for j in order:
        for ks in range(2): a(f"ds_read_b128 v[{VR+8*j+4*ks}:{VR+8*j+4*ks+3}], v6 offset:{1024*j+512*ks}")
    a(f"v_mov_b32 v4, v{m}\ns_nop 1\nv_permlane32_swap_b32 v4, v{m}\ns_nop 0\nv_max_f32 v4, v4, v{m}")
    a(f"v_sub_f32 v{CN}, 0, v4\nv_sub_f32 v{CN+1}, 0, v4")
    for i in range(2, 16, 2): a(f"v_mov_b64 v[{CN+i}:{CN+i+1}], v[{CN}:{CN+1}]")
    stamp(a, 2)
    a("s_nop 1")
    cn = vr(CN, 16); o = vr(O, 16)
    smf(0, cn)
    for n in range(9):
        j = order[n]
        if n < 8: smf(n + 1, cn)
        if n == 0: a.nop(11)
        s = S[n & 1]; p = P + 8 * (n & 1)
        for i in range(16): a(f"v_exp_f32 v{s+i}, v{s+i}")
        for i in range(8): a(f"v_cvt_pk_bf16_f32 v{p+i}, v{s+2*i}, v{s+2*i+1}")
        if j == 8:
            for i in range(8): a(f"v_bfi_b32 v{p+i}, v{PM+i}, 0, v{p+i}")
        if j == 0:
            for i in range(8): a(f"v_and_b32 v{p+i}, v{PM+i}, v{p+i}")
        if n == 0: a("s_waitcnt lgkmcnt(0)")
        a(f"s_cmp_eq_u32 s14, {n+1}")
        a(f"{MF} {o}, {vr(VR+8*j,4)}, {vr(p,4)}, {o}")
        a(f"{MF} {o}, {vr(VR+8*j+4,4)}, {vr(p+4,4)}, {o}")
        if n < 8: a(f"s_cbranch_scc1 {N}_p2done")
    a.label(f"{N}_p2done")
    a.nop(12)
    a(f"v_rcp_f32 v4, v{O+8}\ns_nop 0")
    for i in range(8): a(f"v_mul_f32 v{O+i}, v{O+i}, v4")
    for i in range(4): a(f"v_cvt_pk_bf16_f32 v{P+i}, v{O+2*i}, v{O+2*i+1}")
    a(f"buffer_store_dwordx4 v[{P}:{P+3}], v2, {W}, s9 offen")
    stamp_out(a, 1, sWS)
    a.label(f"{N}_end")
    a("s_endpgm")
    return 240

def k3(a):
    N = "k3_kernel"
    sWS, sWO, sOUT = 40, 44, 48
    entry(a, N)
    a("""s_and_b32 s4, s2, 7
    s_lshl_b32 s4, s4, 2
    s_bfe_u32 s5, s2, 0x20003
    s_add_u32 s4, s4, s5
    s_lshr_b32 s5, s2, 5""")
    a(f"s_cmp_lt_u32 s3, 4\ns_cbranch_scc1 {N}_comp")
    W = f"s[{sWS}:{sWS+3}]"; WO = f"s[{sWO}:{sWO+3}]"
    a("s_sub_u32 s7, s3, 4")
    a("""v_lshlrev_b32 v1, 4, v0
    v_lshrrev_b32 v2, 3, v0
    v_lshlrev_b32 v2, 10, v2
    v_bfe_u32 v3, v0, 2, 1
    v_bfe_u32 v4, v0, 4, 1
    v_xor_b32 v3, v3, v4
    v_lshl_add_u32 v2, v3, 6, v2
    v_and_b32 v3, 3, v0
    v_lshl_add_u32 v10, v3, 4, v2
    v_add_u32 v11, 7168, v10
    v_add_u32 v12, 7168, v11
    v_add_u32 v13, 7168, v12""")
    a(f"""s_lshl_b32 s8, s4, 16
    s_lshl_b32 s9, s7, 12
    s_add_u32 s8, s8, s9
    s_add_u32 s8, s8, {OF}
    s_lshl_b32 s10, s7, 15
    s_lshl_b32 s11, s5, 7
    s_add_u32 s10, s10, s11
    s_waitcnt lgkmcnt(0)""")
    srd(a, sWS, 38, WS_BYTES)
    srd(a, sWO, 30, 512 * 512 * 2)
    def issue(q):
        a(f"s_add_u32 m0, s9, {16384*q}")
        if q: a("s_add_u32 s8, s8, 16384")
        else: a("s_nop 0")
        for i in range(4): a(f"buffer_load_dwordx4 v1, {W}, s8 offen offset:{1024*i} lds")
        a(f"s_add_u32 m0, s9, {65536+16384*q}")
        if q: a("s_add_u32 s10, s10, 131072")
        else: a("s_nop 0")
        for i in range(4): a(f"buffer_load_dwordx4 v{10+i}, {WO}, s10 offen offset:{1024*i} lds")
    issue(0); issue(1); issue(2)
    a("s_waitcnt vmcnt(16)\ns_barrier")
    issue(3)
    a(f"""s_lshl_b32 s11, s5, 10
    v_add_u32 v2, s11, v1
    v_sub_u32 v3, 8192, v2
    s_sub_u32 s12, 32, s4
    s_and_b32 s12, s12, 31
    s_cmp_ge_u32 s5, 4
    s_cselect_b32 s12, s12, s4
    s_cselect_b64 vcc, -1, 0
    s_lshl_b32 s12, s12, 4
    s_lshl_b32 s13, s7, 2
    s_add_u32 s12, s12, s13
    s_mul_i32 s12, s12, {TP}
    s_add_u32 s12, s12, {TF}
    v_cndmask_b32 v2, v2, v3, vcc
    s_waitcnt vmcnt(16)
    s_barrier
    s_add_u32 m0, s9, 131072
    s_nop 0""")
    for i in range(4):
        a(f"buffer_load_dwordx4 v2, {W}, s12 offen offset:{1024*i} lds")
        if i < 3: a(f"s_add_u32 s12, s12, {TP-1024}")
    a("s_waitcnt vmcnt(12)\ns_barrier\ns_waitcnt vmcnt(4)\ns_barrier\ns_waitcnt vmcnt(0)\ns_barrier")
    stamp_out(a, 2, sWS)
    a.label(f"{N}_end")
    a("s_endpgm")
    AB, AY, F, FR = 16, 32, 48, 80
    a.label(f"{N}_comp")
    a("s_lshr_b32 s7, s3, 1\ns_and_b32 s8, s3, 1")
    a("""v_and_b32 v1, 31, v0
    v_lshrrev_b32 v2, 5, v0
    s_lshl_b32 s9, s8, 5
    v_add_u32 v3, s9, v1""")
    a(f"""s_lshl_b32 s9, s4, 8
    s_add_u32 s9, s9, {GF}
    v_lshlrev_b32 v4, 2, v3
    s_waitcnt lgkmcnt(0)""")
    srd(a, sWS, 38, WS_BYTES)
    srd(a, sOUT, 34, 2048 * 512 * 2)
    a(f"buffer_load_dword v15, v4, {W}, s9 offen")
    a("""s_cmp_eq_u32 s4, 0
    s_cselect_b32 s9, 64, 63
    v_sub_u32 v4, s9, v3
    v_and_b32 v4, 63, v4
    s_cmp_ge_u32 s5, 4
    s_cselect_b64 vcc, -1, 0
    v_cndmask_b32 v4, v3, v4, vcc
    v_cvt_f32_u32 v4, v4
    v_mul_f32 v4, 0x3c800000, v4
    v_cvt_f32_u32 v5, v2
    v_mul_f32 v5, 4.0, v5
    v_mul_f32 v5, v5, v4""")
    for ks in range(8):
        for u in range(0, 4, 2):
            a(f"v_fmamk_f32 v6, v4, {fhex(float(8*ks+u))}, v5")
            a("v_add_f32 v7, v6, v4")
            a("v_cos_f32 v8, v6\nv_sin_f32 v9, v6\nv_cos_f32 v10, v7\nv_sin_f32 v11, v7")
            a(f"v_cvt_pk_bf16_f32 v{F+4*ks+u}, v8, v9")
            a(f"v_cvt_pk_bf16_f32 v{F+4*ks+u+1}, v10, v11")
    a("""s_lshl_b32 s9, s8, 10
    v_lshlrev_b32 v6, 4, v0
    v_add_u32 v6, s9, v6
    v_bfe_u32 v9, v0, 2, 2
    v_lshl_add_u32 v7, v2, 2, v9
    v_lshlrev_b32 v7, 7, v7
    v_lshrrev_b32 v9, 1, v9
    v_xor_b32 v9, s7, v9
    v_lshl_add_u32 v7, v9, 6, v7
    v_and_b32 v9, 1, v0
    v_lshl_add_u32 v7, v9, 5, v7
    v_bfe_u32 v9, v0, 4, 1
    v_lshl_add_u32 v7, v9, 4, v7
    v_bfe_u32 v9, v0, 1, 1
    v_lshl_add_u32 v7, v9, 3, v7
    v_add_u32 v7, 0x10000, v7
    v_bfe_u32 v9, v0, 2, 1
    v_lshlrev_b32 v8, 4, v9
    v_and_b32 v9, 3, v0
    v_add_u32 v8, v8, v9
    v_bfe_u32 v9, v0, 3, 2
    v_lshl_add_u32 v8, v9, 2, v8
    s_lshl_b32 s9, s7, 5
    v_add_u32 v8, s9, v8
    v_lshlrev_b32 v8, 4, v8
    v_lshl_add_u32 v8, v2, 10, v8
    v_add_u32 v8, 0x20000, v8""")
    a("""v_lshlrev_b32 v9, 15, v3
    v_lshl_add_u32 v9, v2, 5, v9
    s_lshl_b32 s9, s4, 10
    s_lshl_b32 s10, s5, 7
    s_add_u32 s9, s9, s10
    s_lshl_b32 s10, s7, 6
    s_add_u32 s9, s9, s10""")
    ab = vr(AB, 16); ay = vr(AY, 16)
    for i in range(0, 16, 2): a(f"v_mov_b64 v[{AB+i}:{AB+i+1}], 0")
    a("s_mov_b32 s14, 0")
    a.label(f"{N}_loop")
    a("s_barrier")
    def rd(h):
        f = FR + 8 * h
        a(f"ds_read_b64_tr_b16 v[{f}:{f+1}], v7 offset:{2048*h}")
        a(f"ds_read_b64_tr_b16 v[{f+2}:{f+3}], v7 offset:{2048*h+1024}")
        a(f"ds_read_b128 v[{f+4}:{f+7}], v6 offset:{2048*h}")
    for h in range(4): rd(h)
    for h in range(8):
        if h + 4 < 8:
            a("s_waitcnt lgkmcnt(9)")
        else:
            a(f"s_waitcnt lgkmcnt({3*(7-h)})")
        f = FR + 8 * h
        a(f"{MF} {ab}, {vr(f,4)}, {vr(f+4,4)}, {ab}")
        if h + 4 < 8: rd(h + 4)
    a("v_add_u32 v6, 16384, v6\nv_add_u32 v7, 16384, v7")
    a(f"s_add_u32 s14, s14, 1\ns_cmp_lt_u32 s14, 4\ns_cbranch_scc1 {N}_loop")
    a("s_barrier")
    stamp(a, 1)
    for ks in range(8): a(f"ds_read_b128 v[{FR+4*ks}:{FR+4*ks+3}], v8 offset:{2048*ks}")
    for ks in range(8):
        a(f"s_waitcnt lgkmcnt({7-ks})")
        a(f"{MF} {ay}, {vr(FR+4*ks,4)}, {vr(F+4*ks,4)}, {'0' if ks == 0 else ay}")
    stamp(a, 2)
    a("s_waitcnt vmcnt(0)")
    a.nop(11)
    for i in range(16):
        a(f"v_sub_f32 v{AY+i}, v{AY+i}, v{AB+i}")
        a(f"v_fmac_f32 v{AB+i}, v{AY+i}, v15")
    for i in range(8): a(f"v_cvt_pk_bf16_f32 v{F+i}, v{AB+2*i}, v{AB+2*i+1}")
    a(f"buffer_store_dwordx4 v[{F}:{F+3}], v9, s[{sOUT}:{sOUT+3}], s9 offen")
    a(f"buffer_store_dwordx4 v[{F+4}:{F+7}], v9, s[{sOUT}:{sOUT+3}], s9 offen offset:16")
    stamp_out(a, 2, sWS)
    a("s_endpgm")
    return 144

def desc(name, nv):
    return f""".p2align 6
.amdhsa_kernel {name}
  .amdhsa_next_free_vgpr {nv}
  .amdhsa_next_free_sgpr 102
  .amdhsa_accum_offset {(nv+3)//4*4}
  .amdhsa_group_segment_fixed_size 0
  .amdhsa_kernarg_size 96
  .amdhsa_user_sgpr_count 2
  .amdhsa_user_sgpr_kernarg_segment_ptr 1
  .amdhsa_system_sgpr_workgroup_id_x 1
.end_amdhsa_kernel
"""

a = Asm()
n1 = k1(a); n2 = k2(a); n3 = k3(a)
if FUSED:
    o = []; cur = 1; prev = ""
    for l in a.lines:
        if l.startswith("k2_kernel:"): cur = 2
        if l.startswith("k3_kernel:"): cur = 3
        if l.strip() == "s_endpgm" and cur < 3:
            if prev.startswith("k1_kernel_end:"):
                o.pop(); o += [f"    s_branch k{cur+1}_kernel", prev, l]
            else: o.append(f"    s_branch k{cur+1}_kernel")
        else: o.append(l)
        prev = l
    a.lines = o
a.lines = [l + SF if ("buffer_store" in l and "v2, s[" not in l.replace("v2, s[40:43], s9", "X")) else l for l in a.lines]
if NOLD or NOMM or NORD:
    o = []; ink1 = False
    for l in a.lines:
        if l.startswith("k1_kernel:"): ink1 = True
        if l.startswith("k2_kernel:"): ink1 = False
        if ink1 and NOLD and l.rstrip().endswith(" lds"): continue
        if ink1 and NOMM and "v_mfma" in l: continue
        if ink1 and NORD and "ds_read" in l: continue
        o.append(l)
    a.lines = o
for m in check_hazards(a.lines): print("HAZARD", m, file=sys.stderr)
hdr = """; gated mix of FNet spectral mixing and sliding-window attention; generated by dev/gen.py
; @launch kernel=k1_kernel grid=(256,1,1) block=(512,1,1) lds=131072
; @launch kernel=k2_kernel grid=(256,1,1) block=(512,1,1) lds=49152
; @launch kernel=k3_kernel grid=(256,1,1) block=(512,1,1) lds=147456
.amdgcn_target "amdgcn-amd-amdhsa--gfx950"
.text
.globl k1_kernel
.type k1_kernel,@function
.globl k2_kernel
.type k2_kernel,@function
.globl k3_kernel
.type k3_kernel,@function
"""
out = hdr + a.text() + '.section .rodata,"a"\n' + desc("k1_kernel", n1) + desc("k2_kernel", n2) + desc("k3_kernel", n3)
if FUSED:
    NM = "gated_mix__spectral_fnet__sliding_block__prompt_kernel"
    out = f"""; fused test
; @launch grid=(256,1,1) block=(512,1,1) lds=147456
.amdgcn_target "amdgcn-amd-amdhsa--gfx950"
.text
.globl {NM}
.type {NM},@function
""" + a.text().replace("k1_kernel:", NM + ":") + '.section .rodata,"a"\n' + desc(NM, 240)
fn = [x for x in sys.argv[1:] if not x.startswith("--")][0]
open(fn, "w").write(out)
```

```python
import sys, math
from asmlib import *

def opt(name, default=None):
    for x in sys.argv:
        if x == "--" + name: return True
        if x.startswith("--" + name + "="): return x.split("=", 1)[1]
    return default
STAMP = opt("stamp", False)
SPLIT = opt("split", False)
STAG = int(opt("stag", 1))
PSLEEP = int(opt("psleep", 4))
FORCEFB = opt("forcefb", False)
QF, KF, VF, TF, OF, GF, FL = 0x000000, 0x200000, 0x400000, 0x600000, 0x900000, 0xB00000, 0xB80000
STF = 0xC00000
WS_BYTES = 0x1000000
TP = 4224
MF = "v_mfma_f32_32x32x16_bf16"
QSCALE = 0.25 * math.log2(math.e)
sX, sW, sWS, sG, sDB = 40, 44, 48, 52, 56
W = f"s[{sWS}:{sWS+3}]"
SC = "" if SPLIT else " sc1"
NST = 8

def srd(a, d, ptr, nbytes):
    a(f"s_mov_b32 s{d}, s{ptr}\ns_mov_b32 s{d+1}, s{ptr+1}\ns_mov_b32 s{d+2}, {nbytes}\ns_mov_b32 s{d+3}, 0x00020000")

def entry(a, name):
    a(f".p2align 12\n{name}:")
    stamp(a, 0)
    a("s_load_dwordx16 s[16:31], s[0:1], 0")
    a("s_load_dwordx8 s[32:39], s[0:1], 64")
    a(f"s_cmp_ge_u32 s2, 256\ns_cbranch_scc1 {name}_end")
    a("v_lshrrev_b32 v1, 6, v0\nv_and_b32 v0, 63, v0\nv_readfirstlane_b32 s3, v1")

def stamp(a, i):
    if STAMP: a(f"s_memrealtime s[{80+2*i}:{81+2*i}]")

def stamp_out(a, kidx):
    if not STAMP: return
    a("s_memrealtime s[92:93]\ns_waitcnt vmcnt(0) lgkmcnt(0)\ns_memrealtime s[94:95]\ns_waitcnt lgkmcnt(0)")
    a(f"s_lshl_b32 s78, s2, 3\ns_add_u32 s78, s78, s3\ns_lshl_b32 s78, s78, 6\ns_add_u32 s78, s78, {STF + kidx * 131072}")
    a("s_mov_b64 exec, 1")
    for i in range(16): a(f"v_mov_b32 v{4+i}, s{80+i}")
    a("v_mov_b32 v2, s78")
    for i in range(4): a(f"buffer_store_dwordx4 v[{4+4*i}:{7+4*i}], v2, {W}, 0 offen offset:{16*i}")

def k1(a):
    N = "k1_kernel"
    entry(a, N)
    a("""s_and_b32 s4, s2, 7
    s_lshr_b32 s7, s2, 3
    s_and_b32 s5, s4, 1
    s_lshl_b32 s5, s5, 3
    s_and_b32 s8, s7, 7
    s_add_u32 s5, s5, s8
    s_lshr_b32 s6, s7, 3
    s_lshr_b32 s4, s4, 1""")
    a(f"s_cmp_lt_u32 s3, 4\ns_cbranch_scc1 {N}_comp")
    a("s_sub_u32 s7, s3, 4")
    a("""v_lshrrev_b32 v1, 3, v0
    v_and_b32 v2, 7, v0
    v_lshrrev_b32 v3, 4, v0
    v_xor_b32 v2, v2, v3
    v_lshlrev_b32 v2, 4, v2
    v_xor_b32 v4, 64, v2""")
    a("""s_lshl_b32 s8, s5, 7
    s_lshl_b32 s9, s7, 5
    s_add_u32 s8, s8, s9
    s_lshl_b32 s9, s5, 2
    s_add_u32 s9, s9, s7
    s_movk_i32 s10, 7168
    s_cmp_eq_u32 s4, 3
    s_cselect_b32 s8, s9, s8
    s_cselect_b32 s9, 16, 10
    s_cselect_b32 s10, 523264, s10
    s_lshl_b32 s8, s8, 10""")
    a("""v_lshlrev_b32 v5, s9, v1
    v_add_u32 v5, s8, v5
    v_add_u32 v10, v5, v2
    v_add_u32 v5, s10, v5
    v_add_u32 v11, v5, v4
    v_add_u32 v5, s10, v5
    v_add_u32 v12, v5, v2
    v_add_u32 v5, s10, v5
    v_add_u32 v13, v5, v4""")
    a("s_mov_b64 s[12:13], -1")
    a(f"s_cmp_eq_u32 s4, 3\ns_cbranch_scc1 {N}_ldA")
    a("""s_mul_i32 s8, s7, 49152
    s_lshl_b32 s9, s4, 10
    s_add_u32 s8, s8, s9
    s_lshl_b32 s9, s6, 8
    s_add_u32 s8, s8, s9
    v_mul_u32_u24 v5, 3072, v3
    v_bfe_u32 v6, v0, 2, 2
    v_xor_b32 v6, v6, v3
    v_lshlrev_b32 v6, 6, v6
    v_and_b32 v7, 3, v0
    v_lshlrev_b32 v7, 4, v7
    v_add3_u32 v5, v5, v6, v7
    v_add_u32 v14, s8, v5
    v_add_u32 v15, 11264, v14
    v_add_u32 v16, 11264, v15
    v_add_u32 v17, 11264, v16
    s_mov_b32 s11, 196608
    s_waitcnt lgkmcnt(0)""")
    srd(a, sW, 28, 512 * 1536 * 2)
    a(f"s_branch {N}_ldgo")
    a.label(f"{N}_ldA")
    a("""s_lshl_b32 s8, s6, 6
    s_lshr_b32 s9, s7, 1
    s_lshl_b32 s9, s9, 5
    s_add_u32 s8, s8, s9
    s_lshl_b32 s8, s8, 10
    v_lshlrev_b32 v5, 10, v1
    v_add_u32 v5, s8, v5
    v_add_u32 v14, v5, v2
    v_add_u32 v5, 7168, v5
    v_add_u32 v15, v5, v4
    v_add_u32 v5, 7168, v5
    v_add_u32 v16, v5, v2
    v_add_u32 v5, 7168, v5
    v_add_u32 v17, v5, v4
    s_mov_b32 s11, 128
    s_lshl_b32 s8, s6, 2
    s_add_u32 s8, s8, s7
    s_cmp_eq_u32 s8, 1
    s_cselect_b32 s12, 0xffffff00, -1
    s_waitcnt lgkmcnt(0)
    s_bitcmp1_b32 s7, 0""")
    a(f"s_cselect_b32 s{sW}, s24, s22\ns_cselect_b32 s{sW+1}, s25, s23\ns_mov_b32 s{sW+2}, {512*512*2}\ns_mov_b32 s{sW+3}, 0x00020000")
    a.label(f"{N}_ldgo")
    srd(a, sX, 16, 2048 * 512 * 2)
    a("s_lshl_b32 s8, s7, 12\ns_mov_b32 s14, 0")
    if STAG == 1: a("s_lshl_b32 s15, s6, 1\ns_add_u32 s15, s15, s5")
    else: a("s_mov_b32 s15, 0")
    XM = {2: (1, 1), 3: (1, 2), 4: (3, 1), 5: (1, 0), 6: (3, 0)}
    if STAG == 7: a("s_lshl_b32 s61, s6, 1\ns_add_u32 s61, s61, s5\ns_and_b32 s61, s61, 7\ns_cmp_eq_u32 s61, 7\ns_cselect_b32 s61, 3, s61")
    if 2 <= STAG < 7: a(f"s_add_u32 s61, s5, s6\ns_and_b32 s61, s61, {XM[STAG][0]}\ns_lshl_b32 s61, s61, {XM[STAG][1]}")
    a.label(f"{N}_ldloop")
    if opt("ramp"):
        a(f"s_cmp_lg_u32 s14, 2\ns_cbranch_scc1 {N}_ld2\ns_waitcnt vmcnt(8)\ns_barrier\n{N}_ld2:")
        a(f"s_cmp_lt_u32 s14, 4\ns_cbranch_scc1 {N}_ldissue")
    else: a(f"s_cmp_lt_u32 s14, 3\ns_cbranch_scc1 {N}_ldissue")
    a("s_waitcnt vmcnt(16)\ns_barrier")
    a.label(f"{N}_ldissue")
    if 2 <= STAG < 7: a("s_xor_b32 s15, s14, s61")
    if STAG == 7: a("s_add_u32 s15, s14, s61\ns_cmp_gt_u32 s15, 7\ns_cselect_b32 s62, 7, 0\ns_sub_u32 s15, s15, s62\ns_cmp_eq_u32 s14, 0\ns_cselect_b32 s15, 0, s15")
    a("s_and_b32 s15, s15, 7\ns_mov_b32 m0, s8\ns_lshl_b32 s9, s15, 7\ns_mul_i32 s10, s15, s11")
    for i in range(4): a(f"buffer_load_dwordx4 v{10+i}, s[{sX}:{sX+3}], s9 offen offset:{1024*i} lds")
    a("s_add_u32 m0, s8, 16384\ns_mov_b64 exec, s[12:13]")
    a(f"buffer_load_dwordx4 v14, s[{sW}:{sW+3}], s10 offen lds")
    a("s_mov_b64 exec, -1")
    for i in range(1, 4): a(f"buffer_load_dwordx4 v{14+i}, s[{sW}:{sW+3}], s10 offen offset:{1024*i} lds")
    a("""s_add_u32 s15, s15, 1
    s_add_u32 s14, s14, 1
    s_add_u32 s8, s8, 32768
    s_and_b32 s8, s8, 0x1ffff""")
    a(f"s_cmp_lt_u32 s14, 8\ns_cbranch_scc1 {N}_ldloop")
    srd(a, sG, 32, 1024)
    srd(a, sWS, 38, WS_BYTES)
    srd(a, sDB, 36, 256)
    a("""s_lshl_b32 s8, s2, 3
    s_lshl_b32 s9, s7, 1
    s_add_u32 s8, s8, s9
    s_lshl_b32 s9, s8, 10
    v_lshlrev_b32 v1, 5, v0
    v_and_b32 v2, 1023, v1""")
    a(f"""buffer_load_dwordx4 v[20:23], v1, s[{sX}:{sX+3}], s9 offen
    buffer_load_dwordx4 v[24:27], v1, s[{sX}:{sX+3}], s9 offen offset:16
    buffer_load_dwordx4 v[28:31], v2, s[{sG}:{sG+3}], 0 offen
    buffer_load_dwordx4 v[32:35], v2, s[{sG}:{sG+3}], 0 offen offset:16""")
    a(f"buffer_load_dword v255, off, s[{sDB}:{sDB+3}], 0 sc1")
    a("s_waitcnt vmcnt(21)\ns_barrier\ns_waitcnt vmcnt(13)\ns_barrier\ns_waitcnt vmcnt(5)\ns_barrier")
    a("v_mov_b32 v5, 0\ns_waitcnt vmcnt(0)")
    for i in range(8): a(f"v_dot2c_f32_bf16 v5, v{20+i}, v{28+i}")
    a("v_lshrrev_b32 v6, 5, v0\nv_add_u32 v6, s8, v6\nv_and_b32 v7, 31, v6")
    a("v_add_f32_dpp v5, v5, v5 quad_perm:[1,0,3,2] row_mask:0xf bank_mask:0xf")
    a("v_lshrrev_b32 v6, 5, v6\nv_lshlrev_b32 v7, 8, v7")
    a("v_add_f32_dpp v5, v5, v5 quad_perm:[2,3,0,1] row_mask:0xf bank_mask:0xf")
    a("v_lshl_add_u32 v6, v6, 2, v7\ns_nop 0")
    a("v_add_f32_dpp v5, v5, v5 row_half_mirror row_mask:0xf bank_mask:0xf\ns_nop 1")
    a("v_add_f32_dpp v5, v5, v5 row_mirror row_mask:0xf bank_mask:0xf\ns_nop 1")
    a("v_add_f32_dpp v5, v5, v5 row_bcast:15 row_mask:0xa bank_mask:0xf")
    a(f"v_mul_f32 v5, {fhex(-math.log2(math.e))}, v5\nv_exp_f32 v5, v5\ns_nop 0\nv_add_f32 v5, 1.0, v5\nv_rcp_f32 v5, v5")
    a("s_mov_b32 exec_lo, 0x80000000\ns_mov_b32 exec_hi, 0x80000000")
    a(f"s_mov_b32 s8, {GF}\nbuffer_store_dword v5, v6, {W}, s8 offen")
    a("s_mov_b64 exec, -1\ns_barrier")
    def leave(publish):
        if SPLIT:
            stamp_out(a, 0); a("s_endpgm")
        else:
            a(f"s_mov_b32 s60, {1 if publish else 0}\ns_branch k2_body")
    leave(False)
    a.label(f"{N}_end")
    a("s_endpgm")

    ACC = 64
    FS = 176
    XA = 8; WA = 12
    FP = 128
    PK = 32
    a.label(f"{N}_comp")
    a("s_lshr_b32 s7, s3, 1\ns_and_b32 s8, s3, 1")
    a("""v_and_b32 v1, 31, v0
    v_lshrrev_b32 v2, 5, v0
    v_bfe_u32 v3, v0, 1, 3
    v_xor_b32 v3, v3, v2
    v_lshlrev_b32 v3, 4, v3
    v_lshl_add_u32 v3, v1, 7, v3""")
    a(f"s_lshl_b32 s9, s7, 13\nv_add_u32 v{XA}, s9, v3")
    for ks in range(1, 4): a(f"v_xor_b32 v{XA+ks}, {32*ks}, v{XA}")
    a("s_mov_b32 s14, 0\ns_mov_b32 s15, 32768\ns_waitcnt lgkmcnt(0)")
    srd(a, sWS, 38, WS_BYTES)
    srd(a, sDB, 36, 256)
    if not SPLIT:
        a(f"s_or_b32 s9, s2, s3\ns_cmp_lg_u32 s9, 0\ns_cbranch_scc1 {N}_nn")
        a("s_memrealtime s[10:11]\ns_waitcnt lgkmcnt(0)\ns_or_b32 s10, s10, 1\nv_mov_b32 v4, s10\ns_mov_b64 exec, 1")
        a(f"buffer_store_dword v4, off, s[{sDB}:{sDB+3}], 0 sc1\ns_mov_b64 exec, -1")
        a.label(f"{N}_nn")
    if opt("cpf"):
        a(f"s_cmp_ge_u32 s3, 2\ns_cbranch_scc1 {N}_npf")
        a(f"s_getpc_b64 s[10:11]\ns_and_b32 s10, s10, 0xfffff000\ns_lshl_b32 s9, s3, 13\nv_lshlrev_b32 v4, 7, v0\nv_add_u32 v4, s9, v4")
        a("v_mov_b32 v5, s11\nv_add_co_u32 v4, vcc, s10, v4\ns_nop 1\nv_addc_co_u32 v5, vcc, 0, v5, vcc\nglobal_load_dword v254, v[4:5], off")
        a.label(f"{N}_npf")
    a(f"s_cmp_eq_u32 s4, 3\ns_cbranch_scc1 {N}_A")
    a(f"""v_bfe_u32 v4, v0, 2, 2
    v_lshl_add_u32 v5, v2, 3, v4
    v_lshlrev_b32 v5, 8, v5
    s_lshl_b32 s9, s8, 1
    v_xor_b32 v4, s9, v4
    v_lshl_add_u32 v5, v4, 6, v5
    v_bfe_u32 v4, v0, 4, 1
    v_lshl_add_u32 v5, v4, 5, v5
    v_and_b32 v4, 3, v0
    v_lshl_add_u32 v{WA}, v4, 3, v5
    v_xor_b32 v{WA+1}, 64, v{WA}""")
    a(f"s_cmp_eq_u32 s4, 2\ns_cbranch_scc1 {N}_V")

    def mainloop(tag, tr, swap):
        nrd = 6 if tr else 4
        naddr = [XA + i for i in range(4)] + [WA + i for i in range(2 if tr else 4)]
        def rds(ks):
            F = FS + 16 * ks
            x = [f"ds_read_b128 v[{F+4*mt}:{F+4*mt+3}], v{XA+ks} offset:{4096*mt}" for mt in range(2)]
            if tr:
                w = [[f"ds_read_b64_tr_b16 v[{F+8+4*nt+2*h}:{F+9+4*nt+2*h}], v{WA+nt} offset:{16384+4096*ks+1024*h}" for h in range(2)] for nt in range(2)]
                return [[x[0], w[0][0]], [w[0][1], w[1][0]], [w[1][1], x[1]], []]
            w = [f"ds_read_b128 v[{F+8+4*nt}:{F+11+4*nt}], v{WA+ks} offset:{16384+4096*nt}" for nt in range(2)]
            return [[x[0], w[0]], [w[1]], [x[1]], []]
        def mms(ks, first=False):
            F = FS + 16 * ks; o = []
            for mt in range(2):
                for nt in range(2):
                    x = vr(F + 4 * mt, 4); w = vr(F + 8 + 4 * nt, 4); c = vr(ACC + 16 * (2 * mt + nt), 16)
                    cc = "0" if first else c
                    o.append(f"{MF} {c}, {w}, {x}, {cc}" if swap else f"{MF} {c}, {x}, {w}, {cc}")
            return o
        def step(ks, rk, wait, first=False, bar=False):
            a(f"s_waitcnt lgkmcnt({wait})")
            m = mms(ks, first); r = rds(rk) if rk is not None else [[], [], [], []]
            if bar:
                a(m[0])
                for x in naddr: a(f"v_add_u32 v{x}, s9, v{x}")
                a("s_waitcnt lgkmcnt(0)\ns_barrier")
                for g in range(3):
                    for x in r[g]: a(x)
                    a(m[g + 1])
            else:
                for g in range(4):
                    a(m[g])
                    for x in r[g]: a(x)
        a("s_barrier")
        stamp(a, 1)
        for k in (0, 1):
            for g in rds(k):
                for x in g: a(x)
        step(0, 2, nrd, first=True)
        step(1, 3, nrd)
        a.label(f"{N}_{tag}_loop")
        a("s_add_u32 s14, s14, 1\ns_and_b32 s9, s14, 3\ns_cselect_b32 s9, s15, -98304")
        step(2, 0, nrd, bar=True)
        step(3, 1, nrd)
        step(0, 2, nrd)
        a("s_cmp_lt_u32 s14, 7")
        step(1, 3, nrd)
        a(f"s_cbranch_scc1 {N}_{tag}_loop")
        a(f"buffer_load_dword v255, off, s[{sDB}:{sDB+3}], 0 sc1")
        step(2, None, nrd)
        step(3, None, 0)
        stamp(a, 2)

    mainloop("QK", True, True)
    a("""s_lshl_b32 s9, s4, 21
    s_lshl_b32 s10, s6, 19
    s_add_u32 s9, s9, s10
    s_lshl_b32 s10, s8, 18
    s_add_u32 s9, s9, s10
    s_lshl_b32 s10, s5, 12
    s_add_u32 s9, s9, s10
    s_lshl_b32 s10, s7, 11
    s_add_u32 s9, s9, s10
    v_lshlrev_b32 v4, 4, v0
    s_add_u32 s12, s9, 65536
    s_add_u32 s13, s9, 131072
    s_add_u32 s61, s9, 196608""")
    a(f"s_cmp_eq_u32 s4, 0\ns_cselect_b32 s10, {fhex(QSCALE)}, 1.0")
    for mt in range(2):
        for nt in range(2):
            c = ACC + 16 * (2 * mt + nt)
            for i in range(16): a(f"v_mul_f32 v{c+i}, s10, v{c+i}")
            d = PK + 8 * (2 * mt + nt)
            for i in range(8): a(f"v_cvt_pk_bf16_f32 v{d+i}, v{c+2*i}, v{c+2*i+1}")
            a(f"buffer_store_dwordx4 v[{d}:{d+3}], v4, {W}, s{(9,13)[nt]} offen offset:{1024*mt}{SC}")
            a(f"buffer_store_dwordx4 v[{d+4}:{d+7}], v4, {W}, s{(12,61)[nt]} offen offset:{1024*mt}{SC}")
    a("s_barrier")
    leave(True)

    a.label(f"{N}_V")
    mainloop("V", True, False)
    a(f"""s_lshl_b32 s9, s6, 19
    s_add_u32 s9, s9, {VF}
    s_lshl_b32 s10, s8, 18
    s_add_u32 s9, s9, s10
    s_lshl_b32 s10, s5, 12
    s_add_u32 s9, s9, s10
    s_lshl_b32 s10, s7, 11
    s_add_u32 s9, s9, s10
    s_add_u32 s13, s9, 131072
    v_bfe_u32 v4, v0, 4, 1
    v_lshlrev_b32 v4, 16, v4
    v_lshl_add_u32 v4, v2, 8, v4
    v_and_b32 v5, 15, v0
    v_lshl_add_u32 v4, v5, 4, v4""")
    for mt in range(2):
        for nt in range(2):
            c = ACC + 16 * (2 * mt + nt)
            d = PK + 8 * (2 * mt + nt)
            for i in range(8): a(f"v_cvt_pk_bf16_f32 v{d+i}, v{c+2*i}, v{c+2*i+1}")
            a(f"buffer_store_dwordx4 v[{d}:{d+3}], v4, {W}, s{(9,13)[nt]} offen offset:{1024*mt}{SC}")
            a(f"buffer_store_dwordx4 v[{d+4}:{d+7}], v4, {W}, s{(9,13)[nt]} offen offset:{1024*mt+512}{SC}")
    a("s_barrier")
    leave(True)

    a(".p2align 12")
    a.label(f"{N}_A")
    a(f"s_lshl_b32 s9, s8, 13\nv_add_u32 v{WA}, s9, v3")
    for ks in range(1, 4): a(f"v_xor_b32 v{WA+ks}, {32*ks}, v{WA}")
    a(f"s_cmp_lg_u32 s6, 0\ns_cbranch_scc1 {N}_A1")
    a("""v_and_b32 v4, 31, v0
    v_lshlrev_b32 v4, 2, v4
    s_lshl_b32 s9, s3, 15
    v_add_u32 v4, s9, v4
    v_mov_b32 v5, 0xbf803f80
    ds_write_b32 v4, v5 offset:20480""")
    a.label(f"{N}_A1")
    a("""s_lshl_b32 s9, s7, 4
    v_xor_b32 v4, s9, v1
    v_cvt_f32_u32 v4, v4
    s_lshl_b32 s9, s5, 2
    s_lshl_b32 s10, s7, 1
    s_add_u32 s9, s9, s10
    v_lshlrev_b32 v5, 8, v2
    v_add_u32 v5, s9, v5
    v_cvt_f32_u32 v5, v5
    v_mul_f32 v6, 0x3a000000, v4
    v_mul_f32 v5, v5, v6
    v_mul_f32 v4, 0x3d000000, v4""")
    for mt in range(2):
        if mt == 1: a("v_add_f32 v5, v5, v6")
        for ks in range(2):
            for p in range(4):
                j0 = 2 * p
                c0 = 16 * ks + (j0 & 3) + 8 * (j0 >> 2)
                a(f"v_fmamk_f32 v16, v4, {fhex(float(c0))}, v5")
                a("v_add_f32 v17, v16, v4")
                a("v_cos_f32 v18, v16\nv_cos_f32 v19, v17\nv_sin_f32 v20, v16\nv_sin_f32 v21, v17")
                b = FP + 24 * mt + 4 * ks + p
                a(f"v_cvt_pk_bf16_f32 v{b}, v18, v19")
                a(f"v_cvt_pk_bf16_f32 v{b+8}, v20, v21")
                a(f"v_cvt_pk_bf16_f32 v{b+16}, -v20, -v21")
    a("s_waitcnt lgkmcnt(0)")
    mainloop("A", False, False)
    a(f"""s_mul_i32 s9, s5, {TP}
    s_add_u32 s9, s9, {TF}
    s_mul_i32 s12, s7, {16*16*TP}
    s_sub_u32 s13, s9, s12
    s_add_u32 s13, s13, {16*16*TP}
    s_add_u32 s9, s9, s12
    s_lshl_b32 s10, s6, 10
    s_lshl_b32 s11, s8, 9
    s_add_u32 s10, s10, s11
    v_mul_u32_u24 v4, {4*16*TP}, v2
    v_lshl_add_u32 v5, v1, 4, v4
    v_add_u32 v5, s10, v5""")
    for mt in range(2):
        for nt in range(2):
            c = ACC + 16 * (2 * mt + nt); d = PK + 16 * mt + 8 * nt
            for i in range(8): a(f"v_cvt_pk_bf16_f32 v{d+i}, v{c+2*i}, v{c+2*i+1}")
    a(f"s_cmp_lg_u32 s10, 0\ns_cbranch_scc1 {N}_A2")
    for mt in range(2):
        bf = PK + 16 * mt + 8; F = FP + 24 * mt
        tr_, ti_ = vr(ACC + 32 * mt, 16), vr(ACC + 32 * mt + 16, 16)
        a(f"{MF} {tr_}, {vr(F,4)}, {vr(bf,4)}, 0")
        a(f"{MF} {ti_}, {vr(F+16,4)}, {vr(bf,4)}, 0")
        a(f"{MF} {tr_}, {vr(F+4,4)}, {vr(bf+4,4)}, {tr_}")
        a(f"{MF} {ti_}, {vr(F+20,4)}, {vr(bf+4,4)}, {ti_}")
    a("s_mov_b32 exec_lo, 1\ns_mov_b32 exec_hi, 1\nv_add_u32 v6, 4096, v4")
    for mt in range(2):
        for i in range(8): a(f"v_mov_b32 v{PK+16*mt+8+i}, 0")
    for r in range(16):
        t1 = (r & 3) + 8 * ((r >> 2) & 1)
        d = 16 + 2 * (r & 3)
        a(f"v_cvt_pk_bf16_f32 v{d}, v{ACC+r}, v{ACC+16+r}")
        a(f"v_cvt_pk_bf16_f32 v{d+1}, v{ACC+32+r}, v{ACC+48+r}")
        a(f"s_add_u32 s11, s{9 if r < 8 else 13}, {t1*16*TP}")
        a(f"buffer_store_dwordx2 v[{d}:{d+1}], v6, {W}, s11 offen offset:{0 if r < 8 else 8}")
    a("s_mov_b64 exec, -1\ns_nop 3")
    a.label(f"{N}_A2")
    for mt in range(2):
        af = PK + 16 * mt; bf = af + 8; F = FP + 24 * mt
        tr_, ti_ = vr(ACC + 32 * mt, 16), vr(ACC + 32 * mt + 16, 16)
        a(f"{MF} {tr_}, {vr(F,4)}, {vr(af,4)}, 0")
        a(f"{MF} {ti_}, {vr(F,4)}, {vr(bf,4)}, 0")
        a(f"{MF} {tr_}, {vr(F+4,4)}, {vr(af+4,4)}, {tr_}")
        a(f"{MF} {ti_}, {vr(F+4,4)}, {vr(bf+4,4)}, {ti_}")
        a(f"{MF} {tr_}, {vr(F+8,4)}, {vr(bf,4)}, {tr_}")
        a(f"{MF} {ti_}, {vr(F+16,4)}, {vr(af,4)}, {ti_}")
        a(f"{MF} {tr_}, {vr(F+12,4)}, {vr(bf+4,4)}, {tr_}")
        a(f"{MF} {ti_}, {vr(F+20,4)}, {vr(af+4,4)}, {ti_}")
    a("""s_lshl_b32 s11, s3, 12
    v_lshlrev_b32 v6, 4, v0
    v_add_u32 v7, s11, v6
    v_xor_b32 v6, 8192, v7""")
    a.nop(8)
    for r in range(8, 16):
        d = FS + 2 * (r - 8)
        a(f"v_cvt_pk_bf16_f32 v{d}, v{ACC+r}, v{ACC+16+r}")
        a(f"v_cvt_pk_bf16_f32 v{d+1}, v{ACC+32+r}, v{ACC+48+r}")
        if r & 1: a(f"ds_write_b128 v7, v[{d-2}:{d+1}] offset:{1024*((r-8)>>1)}")
    for r in range(8):
        d = PK + 4 * r
        a(f"v_cvt_pk_bf16_f32 v{d}, v{ACC+r}, v{ACC+16+r}")
        a(f"v_cvt_pk_bf16_f32 v{d+1}, v{ACC+32+r}, v{ACC+48+r}")
    a("s_waitcnt lgkmcnt(0)\ns_barrier")
    for r in range(8):
        d = PK + 4 * r
        a(f"ds_read_b64 v[{d+2}:{d+3}], v6 offset:{1024*(r>>1) + 8*(r&1)}")
    for r in range(8):
        t1 = (r & 3) + 8 * (r >> 2)
        d = PK + 4 * r
        a(f"s_add_u32 s11, s9, {t1*16*TP}\ns_waitcnt lgkmcnt({7-r})")
        a(f"buffer_store_dwordx4 v[{d}:{d+3}], v5, {W}, s11 offen")
    leave(False)

def k2(a):
    N = "k2_kernel"
    Q, KR, VR, M8, M0, PM, SA, SB, CN, P, O, MG = 8, 12, 48, 120, 136, 152, 160, 176, 192, 208, 224, 120
    KB = 131072 if not SPLIT else 0
    ONES = 32768
    if SPLIT:
        entry(a, N)
        a("s_waitcnt lgkmcnt(0)")
        srd(a, sWS, 38, WS_BYTES)
    else:
        a(".p2align 12\nk2_body:")
        stamp(a, 3)
        a(f"""s_lshl_b32 s62, s4, 6
        s_lshl_b32 s9, s6, 4
        s_add_u32 s62, s62, s9
        s_add_u32 s62, s62, s5
        s_lshl_b32 s62, s62, 2
        s_add_u32 s62, s62, s3
        s_lshl_b32 s62, s62, 8
        s_add_u32 s62, s62, {FL}""")
    a("""s_and_b32 s4, s2, 7
    s_lshl_b32 s4, s4, 2
    s_bfe_u32 s5, s2, 0x20003
    s_add_u32 s4, s4, s5
    s_lshr_b32 s5, s2, 5
    s_lshl_b32 s6, s4, 6
    s_lshl_b32 s7, s5, 3
    s_add_u32 s6, s6, s7
    v_lshlrev_b32 v1, 4, v0
    s_add_u32 s8, s6, s3
    s_lshl_b32 s8, s8, 10
    s_lshl_b32 s9, s3, 1
    s_add_u32 s10, s6, s9
    s_lshl_b32 s10, s10, 10""")
    a(f"s_add_u32 s10, s10, {KF - 8192}\ns_add_u32 s11, s10, {VF - KF}")
    def loads():
        a(f"s_lshl_b32 s9, s3, 11\ns_add_u32 m0, s9, {KB}\ns_nop 0")
        a(f"buffer_load_dwordx4 v1, {W}, s10 offen{SC} lds\nbuffer_load_dwordx4 v1, {W}, s10 offen offset:1024{SC} lds")
        a(f"buffer_load_dwordx4 v[{Q}:{Q+3}], v1, {W}, s8 offen{SC}")
        a("s_add_u32 m0, m0, 16384\ns_nop 0")
        a(f"buffer_load_dwordx4 v1, {W}, s11 offen{SC} lds\nbuffer_load_dwordx4 v1, {W}, s11 offen offset:1024{SC} lds")
    if SPLIT: loads()
    else:
        a("s_waitcnt vmcnt(0)\ns_mov_b32 s15, 0")
        a("k2_nonce:\nv_readfirstlane_b32 s63, v255\ns_add_u32 s15, s15, 1\ns_cmp_lg_u32 s63, 0\ns_cbranch_scc1 k2_gotn")
        a(f"s_cmp_gt_u32 s15, 0x40000\ns_cbranch_scc1 k2_gotn\ns_sleep 2\nbuffer_load_dword v255, off, s[{sDB}:{sDB+3}], 0 sc1\ns_waitcnt vmcnt(0)\ns_branch k2_nonce")
        a("k2_gotn:\ns_cmp_eq_u32 s60, 0\ns_cbranch_scc1 k2_nopub")
        a(f"s_mov_b64 exec, 1\nbuffer_store_dword v255, off, {W}, s62 sc1\ns_mov_b64 exec, -1")
        a("k2_nopub:")
        stamp(a, 4)
    a(f"""v_mov_b32 v4, 0x3f803f80
    v_mov_b32 v5, v4
    v_mov_b32 v6, v4
    v_mov_b32 v7, v4
    v_and_b32 v2, 31, v0
    v_lshlrev_b32 v3, 9, v2
    ds_write_b128 v3, v[4:7] offset:{ONES}""")
    a("""v_lshrrev_b32 v3, 5, v0
    v_lshlrev_b32 v4, v2, -2
    v_lshlrev_b32 v5, 2, v3
    v_lshrrev_b32 v4, v5, v4
    s_mov_b32 s12, 0xff800000
    s_mov_b32 s13, 0xffff""")
    for r in range(16):
        c = (r & 3) + 8 * (r >> 2)
        a(f"v_bfe_i32 v{SA+r}, v4, {c}, 1")
        a(f"v_and_b32 v{M8+r}, s12, v{SA+r}")
        a(f"v_xor_b32 v{M0+r}, s12, v{M8+r}")
    for p in range(8): a(f"v_bfi_b32 v{PM+p}, s13, v{SA+2*p}, v{SA+2*p+1}")
    a(f"""s_lshl_b32 s9, s3, 10
    s_add_u32 s9, s9, {KB}
    v_add_u32 v5, s9, v1
    v_and_b32 v6, 15, v0
    v_lshlrev_b32 v6, 4, v6
    v_lshl_add_u32 v6, v3, 8, v6
    v_add_u32 v6, s9, v6
    v_add_u32 v6, 16384, v6
    v_bfe_i32 v7, v0, 4, 1
    v_mov_b32 v4, {ONES}
    v_bfi_b32 v6, v7, v4, v6""")
    a("s_add_u32 s14, s3, 1\ns_cmp_eq_u32 s5, 0\ns_cselect_b32 s14, s14, 9")
    if not SPLIT:
        a("""s_add_u32 s9, s7, s3
        s_lshl_b32 s15, s3, 1
        s_add_u32 s15, s15, s7
        s_sub_i32 s15, s15, 8
        s_cmp_lt_i32 s15, 0
        s_cselect_b32 s15, s9, s15
        s_cselect_b32 s61, 0, 256
        s_cselect_b32 s10, s8, s10
        s_cselect_b32 s11, s8, s11
        s_andn2_b32 s10, s10, 1024
        s_andn2_b32 s11, s11, 1024
        s_andn2_b32 s9, s9, 1
        s_lshr_b32 s64, s4, 3
        s_lshl_b32 s64, s64, 6
        s_bfe_u32 s65, s4, 0x10002
        s_add_u32 s64, s64, s65
        s_andn2_b32 s15, s15, 1
        v_mov_b32 v4, s15
        v_mov_b32 v7, s9
        v_cmp_eq_u32 vcc, 0, v0
        v_mul_lo_u32 v252, v0, s61
        s_nop 0
        v_cndmask_b32 v4, v4, v7, vcc
        v_add3_u32 v4, v4, s64, v252
        v_lshlrev_b32 v4, 8, v4""")
        a(f"s_mov_b32 s9, {FL}\ns_mov_b32 s15, 0\ns_mov_b64 exec, 7")
        a(f"k2_poll:\nbuffer_load_dword v7, v4, {W}, s9 offen sc1\ns_add_u32 s15, s15, 1\ns_waitcnt vmcnt(0)\nv_cmp_ne_u32 vcc, s63, v7")
        a(f"s_cmp_gt_u32 s15, 0x40000\ns_cbranch_scc1 k2_polled\ns_cbranch_vccz k2_polled\ns_sleep {PSLEEP}\ns_branch k2_poll")
        a("k2_polled:\ns_mov_b64 exec, -1")
        loads()
    a(f"""s_add_u32 s7, s7, s3
    s_lshl_b32 s9, s4, 11
    s_lshr_b32 s15, s7, 5
    s_lshl_b32 s15, s15, 10
    s_add_u32 s9, s9, s15
    s_and_b32 s15, s7, 31
    s_lshl_b32 s15, s15, 4
    s_add_u32 s9, s9, s15
    s_add_u32 s9, s9, {OF}
    v_lshlrev_b32 v2, 16, v2
    v_lshl_add_u32 v2, v3, 9, v2
    s_mov_b32 s15, 0""")
    a("s_waitcnt vmcnt(2) lgkmcnt(0)\ns_barrier")
    stamp(a, 5 if not SPLIT else 1)
    for j in (8, 0, 7, 6, 5, 4, 3, 2, 1): a(f"ds_read_b128 v[{KR+4*j}:{KR+4*j+3}], v5 offset:{1024*j}")
    q = vr(Q, 4); S = [SA, SB]; m = 3
    kf = lambda j: vr(KR + 4 * j, 4)
    a("s_waitcnt lgkmcnt(7)")
    a(f"{MF} {vr(MG,16)}, {kf(8)}, {q}, {vr(M8,16)}")
    a(f"{MF} {vr(M0,16)}, {kf(0)}, {q}, {vr(M0,16)}")
    a("s_waitcnt vmcnt(0) lgkmcnt(0)\ns_barrier")
    def vrd(j):
        for ks in range(2): a(f"ds_read_b128 v[{VR+8*j+4*ks}:{VR+8*j+4*ks+3}], v6 offset:{1024*j+512*ks}")
    if opt("wpf"):
        srd(a, 44, 30, 512 * 512 * 2)
        a(f"s_cmp_ge_u32 s3, 2\ns_cbranch_scc1 {N}_nwpf\ns_lshr_b32 s64, s2, 3\ns_lshl_b32 s64, s64, 1\ns_add_u32 s64, s64, s3\ns_lshl_b32 s64, s64, 13\nv_lshlrev_b32 v4, 7, v0")
        a("buffer_load_dword v254, v4, s[44:47], s64 offen")
        a.label(f"{N}_nwpf")
    for j in (8, 0, 7): vrd(j)
    a.nop(4)
    a(f"s_cmp_lg_u32 s14, 9\ns_cbranch_scc1 {N}_nomerge")
    for i in range(16): a(f"v_max_f32 v{MG+i}, v{MG+i}, v{M0+i}")
    a.label(f"{N}_nomerge")
    a(f"v_max3_f32 v{m}, v{MG}, v{MG+1}, v{MG+2}\nv_max3_f32 v4, v{MG+3}, v{MG+4}, v{MG+5}")
    a(f"v_max3_f32 v{m}, v{m}, v{MG+6}, v{MG+7}\nv_max3_f32 v4, v4, v{MG+8}, v{MG+9}")
    a(f"v_max3_f32 v{m}, v{m}, v{MG+10}, v{MG+11}\nv_max3_f32 v4, v4, v{MG+12}, v{MG+13}")
    a(f"v_max3_f32 v{m}, v{m}, v{MG+14}, v{MG+15}\nv_max_f32 v{m}, v{m}, v4")
    a.label(f"{N}_retry")
    a(f"v_mov_b32 v4, v{m}\ns_nop 1\nv_permlane32_swap_b32 v4, v{m}\ns_nop 0\nv_max_f32 v{m}, v4, v{m}")
    a(f"v_sub_f32 v{CN}, 0, v{m}\nv_sub_f32 v{CN+1}, 0, v{m}")
    for i in range(2, 16, 2): a(f"v_mov_b64 v[{CN+i}:{CN+i+1}], v[{CN}:{CN+1}]")
    cn = vr(CN, 16); o = vr(O, 16)
    for i in range(2): a(f"v_sub_f32 v{SB+i}, v{MG+i}, v{m}")
    a(f"{MF} {vr(SA,16)}, {kf(7)}, {q}, {cn}")
    for i in range(2, 16): a(f"v_sub_f32 v{SB+i}, v{MG+i}, v{m}")
    for i in range(16): a(f"v_exp_f32 v{SB+i}, v{SB+i}")
    for i in range(8): a(f"v_cvt_pk_bf16_f32 v{P+i}, v{SB+2*i}, v{SB+2*i+1}")
    for i in range(8): a(f"v_and_b32 v{P+8+i}, v{PM+i}, v{P+i}")
    for i in range(8): a(f"v_xor_b32 v{P+i}, v{P+8+i}, v{P+i}")
    a("s_waitcnt lgkmcnt(0)\ns_cmp_lg_u32 s14, 9")
    a(f"{MF} {o}, {vr(VR+64,4)}, {vr(P,4)}, 0")
    a(f"{MF} {o}, {vr(VR+68,4)}, {vr(P+4,4)}, {o}")
    a(f"s_cbranch_scc1 {N}_no0")
    a(f"{MF} {o}, {vr(VR,4)}, {vr(P+8,4)}, {o}")
    a(f"{MF} {o}, {vr(VR+4,4)}, {vr(P+12,4)}, {o}")
    a.label(f"{N}_no0")
    a(f"s_cmp_eq_u32 s14, 1\ns_cbranch_scc1 {N}_p2done")
    for n in range(7):
        j = 7 - n
        s = S[n & 1]; p = P + 8 * (n & 1)
        if n < 6:
            a(f"{MF} {vr(S[(n+1)&1],16)}, {kf(j-1)}, {q}, {cn}")
            vrd(j - 1)
        for i in range(8): a(f"v_exp_f32 v{s+i}, v{s+i}")
        for i in range(4): a(f"v_cvt_pk_bf16_f32 v{p+i}, v{s+2*i}, v{s+2*i+1}")
        for i in range(8, 10): a(f"v_exp_f32 v{s+i}, v{s+i}")
        if n > 0: a(f"s_waitcnt lgkmcnt({2 if n < 6 else 0})")
        a(f"{MF} {o}, {vr(VR+8*j,4)}, {vr(p,4)}, {o}")
        for i in range(10, 16): a(f"v_exp_f32 v{s+i}, v{s+i}")
        for i in range(4, 8): a(f"v_cvt_pk_bf16_f32 v{p+i}, v{s+2*i}, v{s+2*i+1}")
        a(f"s_cmp_eq_u32 s14, {n+2}\ns_nop 0")
        a(f"{MF} {o}, {vr(VR+8*j+4,4)}, {vr(p+4,4)}, {o}")
        if n < 6: a(f"s_cbranch_scc1 {N}_p2done")
    a.label(f"{N}_p2done")
    a.nop(12)
    a(f"s_mov_b32 s66, {fhex(0.0 if FORCEFB else 2.0**40)}\nv_cmp_nge_f32 vcc, s66, v{O+8}")
    a(f"v_rcp_f32 v4, v{O+8}\ns_cbranch_vccnz {N}_fb")
    a.label(f"{N}_fin")
    for i in range(8): a(f"v_mul_f32 v{O+i}, v{O+i}, v4")
    for i in range(4): a(f"v_cvt_pk_bf16_f32 v{P+i}, v{O+2*i}, v{O+2*i+1}")
    a(f"buffer_store_dwordx4 v[{P}:{P+3}], v2, {W}, s9 offen")
    stamp_out(a, 1)
    if SPLIT: a.label(f"{N}_end")
    a("s_endpgm")
    a.label(f"{N}_fb")
    a(f"s_cmp_lg_u32 s15, 0\ns_cbranch_scc1 {N}_fin\ns_mov_b32 s15, 1")
    for n in range(7):
        j = 7 - n
        a(f"s_cmp_eq_u32 s14, {n+1}\ns_cbranch_scc1 {N}_retry")
        a(f"{MF} {vr(SA,16)}, {kf(j)}, {q}, 0")
        a.nop(12)
        for i in range(8): a(f"v_max3_f32 v{m}, v{m}, v{SA+2*i}, v{SA+2*i+1}")
    a(f"s_branch {N}_retry")

def k3(a):
    N = "k3_kernel"
    sWO, sOUT = 44, 52
    entry(a, N)
    a("""s_and_b32 s4, s2, 7
    s_lshl_b32 s4, s4, 2
    s_bfe_u32 s5, s2, 0x20003
    s_add_u32 s4, s4, s5
    s_lshr_b32 s5, s2, 5""")
    a(f"s_cmp_lt_u32 s3, 4\ns_cbranch_scc1 {N}_comp")
    WO = f"s[{sWO}:{sWO+3}]"
    a("s_sub_u32 s7, s3, 4")
    a("""v_lshlrev_b32 v1, 4, v0
    v_lshrrev_b32 v2, 3, v0
    v_lshlrev_b32 v2, 10, v2
    v_bfe_u32 v3, v0, 2, 1
    v_bfe_u32 v4, v0, 4, 1
    v_xor_b32 v3, v3, v4
    v_lshl_add_u32 v2, v3, 6, v2
    v_and_b32 v3, 3, v0
    v_lshl_add_u32 v10, v3, 4, v2
    v_add_u32 v11, 7168, v10
    v_add_u32 v12, 7168, v11
    v_add_u32 v13, 7168, v12""")
    a(f"""s_lshl_b32 s8, s4, 16
    s_lshl_b32 s9, s7, 12
    s_add_u32 s8, s8, s9
    s_add_u32 s8, s8, {OF}
    s_lshl_b32 s10, s7, 15
    s_lshl_b32 s11, s5, 7
    s_add_u32 s10, s10, s11
    s_waitcnt lgkmcnt(0)""")
    srd(a, sWS, 38, WS_BYTES)
    srd(a, sWO, 30, 512 * 512 * 2)
    def issue(q):
        a(f"s_add_u32 m0, s9, {16384*q}")
        if q: a("s_add_u32 s8, s8, 16384")
        else: a("s_nop 0")
        for i in range(4): a(f"buffer_load_dwordx4 v1, {W}, s8 offen offset:{1024*i} lds")
        a(f"s_add_u32 m0, s9, {65536+16384*q}")
        if q: a("s_add_u32 s10, s10, 131072")
        else: a("s_nop 0")
        for i in range(4): a(f"buffer_load_dwordx4 v{10+i}, {WO}, s10 offen offset:{1024*i} lds")
    issue(0); issue(1); issue(2)
    a("s_waitcnt vmcnt(16)\ns_barrier")
    issue(3)
    a(f"""s_lshl_b32 s11, s5, 10
    v_add_u32 v2, s11, v1
    v_sub_u32 v3, 8192, v2
    s_sub_u32 s12, 32, s4
    s_and_b32 s12, s12, 31
    s_cmp_ge_u32 s5, 4
    s_cselect_b32 s12, s12, s4
    s_cselect_b64 vcc, -1, 0
    s_lshl_b32 s12, s12, 4
    s_lshl_b32 s13, s7, 2
    s_add_u32 s12, s12, s13
    s_mul_i32 s12, s12, {TP}
    s_add_u32 s12, s12, {TF}
    v_cndmask_b32 v2, v2, v3, vcc
    s_waitcnt vmcnt(16)
    s_barrier
    s_add_u32 m0, s9, 131072
    s_nop 0""")
    for i in range(4):
        a(f"buffer_load_dwordx4 v2, {W}, s12 offen offset:{1024*i} lds")
        if i < 3: a(f"s_add_u32 s12, s12, {TP-1024}")
    a("s_waitcnt vmcnt(12)\ns_barrier\ns_waitcnt vmcnt(4)\ns_barrier\ns_waitcnt vmcnt(0)\ns_barrier")
    stamp_out(a, 2)
    a.label(f"{N}_end")
    a("s_endpgm")
    AB, AY, F, FR = 32, 48, 64, 96
    a.label(f"{N}_comp")
    a("s_lshr_b32 s7, s3, 1\ns_and_b32 s8, s3, 1")
    a("""v_and_b32 v1, 31, v0
    v_lshrrev_b32 v2, 5, v0
    s_lshl_b32 s9, s8, 5
    v_add_u32 v3, s9, v1""")
    a(f"""s_lshl_b32 s9, s4, 8
    s_add_u32 s9, s9, {GF}
    v_lshlrev_b32 v4, 2, v3
    s_waitcnt lgkmcnt(0)""")
    srd(a, sWS, 38, WS_BYTES)
    srd(a, sOUT, 34, 2048 * 512 * 2)
    a(f"buffer_load_dword v24, v4, {W}, s9 offen")
    a("""s_sub_u32 s12, 32, s4
    s_and_b32 s12, s12, 31
    s_cmp_eq_u32 s4, 0
    s_cselect_b32 s9, 64, 63
    v_sub_u32 v4, s9, v3
    v_and_b32 v4, 63, v4
    s_cmp_ge_u32 s5, 4
    s_cselect_b64 vcc, -1, 0
    s_cselect_b32 s12, s12, s4
    v_cndmask_b32 v4, v3, v4, vcc
    s_cmp_ge_u32 s12, 16
    s_cselect_b32 s12, 2.0, 0
    v_cvt_f32_u32 v4, v4
    v_mul_f32 v4, 0x3c800000, v4
    v_cvt_f32_u32 v5, v2
    v_mul_f32 v5, 4.0, v5
    v_sub_f32 v12, v5, s12
    v_add_f32 v5, s12, v5
    v_mul_f32 v5, v5, v4
    v_mul_f32 v12, v12, v4""")
    for ks in range(8):
        for u in range(0, 4, 2):
            a(f"v_fmamk_f32 v6, v4, {fhex(float(8*ks+u))}, v{5 if u == 0 else 12}")
            a("v_add_f32 v7, v6, v4")
            a("v_cos_f32 v8, v6\nv_sin_f32 v9, v6\nv_cos_f32 v10, v7\nv_sin_f32 v11, v7")
            a(f"v_cvt_pk_bf16_f32 v{F+4*ks+u}, v8, v9")
            a(f"v_cvt_pk_bf16_f32 v{F+4*ks+u+1}, v10, v11")
    a("""s_lshl_b32 s9, s8, 10
    v_lshlrev_b32 v6, 4, v0
    v_add_u32 v6, s9, v6
    v_bfe_u32 v9, v0, 2, 2
    v_lshl_add_u32 v7, v2, 2, v9
    v_lshlrev_b32 v7, 7, v7
    v_lshrrev_b32 v9, 1, v9
    v_xor_b32 v9, s7, v9
    v_lshl_add_u32 v7, v9, 6, v7
    v_and_b32 v9, 1, v0
    v_lshl_add_u32 v7, v9, 5, v7
    v_bfe_u32 v9, v0, 4, 1
    v_lshl_add_u32 v7, v9, 4, v7
    v_bfe_u32 v9, v0, 1, 1
    v_lshl_add_u32 v7, v9, 3, v7
    v_add_u32 v7, 0x10000, v7
    v_bfe_u32 v9, v0, 2, 1
    v_lshlrev_b32 v8, 4, v9
    v_and_b32 v9, 3, v0
    v_add_u32 v8, v8, v9
    v_bfe_u32 v9, v0, 3, 2
    v_lshl_add_u32 v8, v9, 2, v8
    s_lshl_b32 s9, s7, 5
    v_add_u32 v8, s9, v8
    v_lshlrev_b32 v8, 4, v8
    v_lshl_add_u32 v8, v2, 10, v8
    v_add_u32 v8, 0x20000, v8""")
    a("""v_lshlrev_b32 v9, 15, v3
    v_lshl_add_u32 v9, v2, 5, v9
    s_lshl_b32 s9, s4, 10
    s_lshl_b32 s10, s5, 7
    s_add_u32 s9, s9, s10
    s_lshl_b32 s10, s7, 6
    s_add_u32 s9, s9, s10""")
    ab = vr(AB, 16); ay = vr(AY, 16)
    for i in range(0, 16, 2): a(f"v_mov_b64 v[{AB+i}:{AB+i+1}], 0")
    a("s_mov_b32 s14, 0")
    a.label(f"{N}_loop")
    a("s_barrier")
    def rd(h):
        f = FR + 8 * h
        a(f"ds_read_b64_tr_b16 v[{f}:{f+1}], v7 offset:{2048*h}")
        a(f"ds_read_b64_tr_b16 v[{f+2}:{f+3}], v7 offset:{2048*h+1024}")
        a(f"ds_read_b128 v[{f+4}:{f+7}], v6 offset:{2048*h}")
    for h in range(4): rd(h)
    for h in range(8):
        a("s_waitcnt lgkmcnt(9)" if h + 4 < 8 else f"s_waitcnt lgkmcnt({3*(7-h)})")
        f = FR + 8 * h
        a(f"{MF} {ab}, {vr(f,4)}, {vr(f+4,4)}, {ab}")
        if h + 4 < 8: rd(h + 4)
    a("v_add_u32 v6, 16384, v6\nv_add_u32 v7, 16384, v7")
    a(f"s_add_u32 s14, s14, 1\ns_cmp_lt_u32 s14, 4\ns_cbranch_scc1 {N}_loop")
    a("s_barrier")
    stamp(a, 1)
    for ks in range(8): a(f"ds_read_b128 v[{FR+4*ks}:{FR+4*ks+3}], v8 offset:{2048*ks}")
    for ks in range(8):
        a(f"s_waitcnt lgkmcnt({7-ks})")
        a(f"{MF} {ay}, {vr(FR+4*ks,4)}, {vr(F+4*ks,4)}, {'0' if ks == 0 else ay}")
    stamp(a, 2)
    a("s_waitcnt vmcnt(0)")
    a.nop(11)
    for i in range(16):
        a(f"v_sub_f32 v{AY+i}, v{AY+i}, v{AB+i}")
        a(f"v_fmac_f32 v{AB+i}, v{AY+i}, v24")
    for i in range(8): a(f"v_cvt_pk_bf16_f32 v{F+i}, v{AB+2*i}, v{AB+2*i+1}")
    a(f"buffer_store_dwordx4 v[{F}:{F+3}], v9, s[{sOUT}:{sOUT+3}], s9 offen")
    a(f"buffer_store_dwordx4 v[{F+4}:{F+7}], v9, s[{sOUT}:{sOUT+3}], s9 offen offset:16")
    stamp_out(a, 2)
    a("s_endpgm")

def desc(name, nv):
    return f""".p2align 6
.amdhsa_kernel {name}
  .amdhsa_next_free_vgpr {nv}
  .amdhsa_next_free_sgpr 102
  .amdhsa_accum_offset {(nv+3)//4*4}
  .amdhsa_group_segment_fixed_size 0
  .amdhsa_kernarg_size 96
  .amdhsa_user_sgpr_count 2
  .amdhsa_user_sgpr_kernarg_segment_ptr 1
  .amdhsa_system_sgpr_workgroup_id_x 1
.end_amdhsa_kernel
"""

a = Asm()
k1(a); k2(a); k3(a)
if opt("nold") or opt("nomm") or opt("nord"):
    o = []; ink1 = False
    for l in a.lines:
        if l.startswith("k1_kernel:"): ink1 = True
        if l.startswith(("k2_kernel:", "k2_body:")): ink1 = False
        if ink1 and opt("nold") and l.rstrip().endswith(" lds"): continue
        if ink1 and opt("nomm") and "v_mfma" in l: continue
        if ink1 and opt("nord") and "ds_read" in l: continue
        o.append(l)
    a.lines = o
for m in check_hazards(a.lines): print("HAZARD", m, file=sys.stderr)
ks = [("k1_kernel", 131072 if SPLIT else 163840, 256)] + ([("k2_kernel", 49152, 240)] if SPLIT else []) + [("k3_kernel", 147456, 160)]
hdr = "; gated mix of FNet spectral mixing and sliding-window attention; generated by dev/gen2.py\n"
hdr += "".join(f"; @launch kernel={n} grid=(256,1,1) block=(512,1,1) lds={l}\n" for n, l, _ in ks)
hdr += '.amdgcn_target "amdgcn-amd-amdhsa--gfx950"\n.text\n' + "".join(f".globl {n}\n.type {n},@function\n" for n, _, _ in ks)
out = hdr + a.text() + '.section .rodata,"a"\n' + "".join(desc(n, v) for n, _, v in ks)
fn = [x for x in sys.argv[1:] if not x.startswith("--")][0]
open(fn, "w").write(out)
```

```python
import sys, math
from asmlib import *

def opt(name, default=None):
    for x in sys.argv:
        if x == "--" + name: return True
        if x.startswith("--" + name + "="): return x.split("=", 1)[1]
    return default
STAMP = opt("stamp", False)
STAG = int(opt("stag", 6))
PSLEEP = int(opt("psleep", 4))
FORCEFB = opt("forcefb", False)
KVB, TF, OF, GF, FL1, FL2, FL3 = 0x000000, 0x400000, 0x700000, 0xA00000, 0xA80000, 0xB00000, 0xB80000
STF = 0xC00000
WS_BYTES = 0x1000000
TP = 4224
OP = 131072 + 1024
MF = "v_mfma_f32_32x32x16_bf16"
MF16 = "v_mfma_f32_16x16x32_bf16"
QSCALE = 0.25 * math.log2(math.e)
sX, sW, sWS, sG, sDB, sOUT = 40, 44, 48, 52, 56, 68
NAME = 'gated_mix__spectral_fnet__sliding_block__prompt_kernel'
W = f"s[{sWS}:{sWS+3}]"
R = [32768 * i for i in range(5)]
L_KV, L_QB, L_ZX, L_OS = R[1], R[2] + 16384, R[2] + 20480, R[2] + 20480

def srd(a, d, ptr, nbytes):
    a(f"s_mov_b32 s{d}, s{ptr}\ns_mov_b32 s{d+1}, s{ptr+1}\ns_mov_b32 s{d+2}, {nbytes}\ns_mov_b32 s{d+3}, 0x00020000")

def entry(a, name):
    a(f".p2align 12\n{name}:")
    stamp(a, 0)
    a("s_load_dwordx16 s[16:31], s[0:1], 0")
    a("s_load_dwordx8 s[32:39], s[0:1], 64")
    a(f"s_cmp_ge_u32 s2, 256\ns_cbranch_scc1 {name}_end")
    a("v_lshrrev_b32 v1, 6, v0\nv_and_b32 v0, 63, v0\nv_readfirstlane_b32 s3, v1")

def stamp(a, i):
    if STAMP: a(f"s_memrealtime s[{80+2*i}:{81+2*i}]")

def stamp_out(a, kidx):
    if not STAMP: return
    a("s_memrealtime s[96:97]\ns_waitcnt vmcnt(0) lgkmcnt(0)\ns_memrealtime s[98:99]\ns_waitcnt lgkmcnt(0)")
    a(f"s_lshl_b32 s78, s2, 3\ns_add_u32 s78, s78, s3\ns_lshl_b32 s78, s78, 7\ns_add_u32 s78, s78, {STF + kidx * 262144}")
    a("s_mov_b64 exec, 1")
    for i in range(20): a(f"v_mov_b32 v{4+i}, s{80+i}")
    a("v_mov_b32 v2, s78")
    for i in range(5): a(f"buffer_store_dwordx4 v[{4+4*i}:{7+4*i}], v2, {W}, 0 offen offset:{16*i}")

QA, QB = 20, 24
TM, PM, VB, KRG, SA, SB, SC_, CN, P, O = 192, 208, 216, 144, 64, 80, 128, 112, 32, 128
GX = 248
FREG = [160 + 4 * k for k in range(8)] + [96 + 4 * k for k in range(4)] + [48 + 4 * k for k in range(4)]
AK, AV, AO, AR = 8, 9, 10, 11
NONCE = 16

def att_setup(a):
    a("""v_and_b32 v2, 31, v0
    v_lshrrev_b32 v3, 5, v0
    v_lshlrev_b32 v4, v2, -2
    v_lshlrev_b32 v5, 2, v3
    v_lshrrev_b32 v4, v5, v4
    s_mov_b32 s13, 0xffff""")
    for r in range(16): a(f"v_bfe_i32 v{TM+r}, v4, {(r & 3) + 8 * (r >> 2)}, 1")
    for p in range(8): a(f"v_bfi_b32 v{PM+p}, s13, v{TM+2*p}, v{TM+2*p+1}")
    a(f"v_mov_b32 v{VB}, 0x3f803f80\nv_mov_b32 v{VB+1}, v{VB}")
    for i in range(2, 32, 2): a(f"v_mov_b64 v[{VB+i}:{VB+i+1}], v[{VB}:{VB+1}]")
    a(f"""s_and_b32 s9, s3, 3
    s_lshr_b32 s10, s3, 2
    s_lshl_b32 s11, s9, 12
    s_add_u32 s11, s11, {L_KV}
    s_lshl_b32 s12, s10, 10
    s_add_u32 s12, s12, s11
    v_lshlrev_b32 v4, 4, v0
    v_add_u32 v{AK}, s12, v4
    s_lshl_b32 s12, s10, 8
    s_add_u32 s12, s12, s11
    v_add_u32 v{AV}, s12, v4
    v_and_b32 v5, 15, v0
    v_mul_u32_u24 v5, 528, v5
    s_and_b32 s12, s4, 1
    v_xor_b32 v6, s12, v3
    v_lshl_add_u32 v5, v6, 7, v5
    v_bfe_u32 v6, v0, 4, 1
    v_lshl_add_u32 v5, v6, 4, v5
    s_lshl_b32 s12, s10, 8
    s_lshl_b32 s11, s9, 5
    s_add_u32 s12, s12, s11
    s_add_u32 s12, s12, {L_OS}
    v_add_u32 v{AO}, s12, v5
    s_mul_i32 s12, s3, 1056
    s_add_u32 s12, s12, {L_OS}
    v_mul_u32_u24 v5, 528, v3
    v_lshl_add_u32 v5, v2, 4, v5
    v_add_u32 v{AR}, s12, v5
    v_mul_u32_u24 v5, {OP}, v3
    v_lshl_add_u32 v12, v2, 4, v5""")
    a(f"""s_lshl_b32 s61, s4, 2
    s_add_u32 s61, s61, s9
    s_add_u32 s61, s61, 1
    s_min_u32 s61, s61, 9
    s_mul_i32 s62, s3, {2*OP}
    s_lshr_b32 s11, s4, 3
    s_lshl_b32 s11, s11, 16
    s_add_u32 s62, s62, s11
    s_lshl_b32 s11, s7, 12
    s_add_u32 s62, s62, s11
    s_and_b32 s11, s4, 7
    s_lshl_b32 s11, s11, 9
    s_add_u32 s62, s62, s11
    s_add_u32 s62, s62, {OF}""")
    a("""s_and_b32 s72, s2, 7
    s_lshl_b32 s72, s72, 1
    s_bfe_u32 s11, s2, 0x10003
    s_add_u32 s72, s72, s11
    s_bfe_u32 s73, s2, 0x10004
    s_lshr_b32 s74, s2, 5
    s_mov_b32 s75, 0
    v_lshlrev_b32 v14, 4, v0
    v_lshrrev_b32 v4, 3, v0
    v_lshlrev_b32 v4, 10, v4
    v_bfe_u32 v5, v0, 2, 1
    v_bfe_u32 v6, v0, 4, 1
    v_xor_b32 v5, v5, v6
    v_lshl_add_u32 v4, v5, 6, v4
    v_and_b32 v5, 3, v0
    v_lshl_add_u32 v4, v5, 4, v4
    s_lshl_b32 s11, s3, 16
    s_lshl_b32 s12, s74, 7
    s_add_u32 s11, s11, s12
    v_add_u32 v13, s11, v4""")
    srd(a, sG, 32, 1024)
    srd(a, sW, 30, 512 * 512 * 2)

L_CNT = R[2] + 32512
def signal(a, k):
    a(f"s_mov_b64 exec, 1\nds_add_u32 v{CA}, v{CA+1} offset:{4*k}\ns_mov_b64 exec, -1")
_wn = [0]
def waitcnt_lds(a, k, n):
    _wn[0] += 1; t = f"lw{_wn[0]}"
    a(f"{t}:\nds_read_b32 v{CA+2}, v{CA} offset:{4*k}\ns_waitcnt lgkmcnt(0)\nv_readfirstlane_b32 s79, v{CA+2}\ns_cmp_lt_u32 s79, {n}\ns_cbranch_scc1 {t}")
CA = 28

def get_nonce(a, tag):
    a("s_mov_b32 s15, 0")
    a(f"{tag}_n0:\nv_readfirstlane_b32 s63, v{NONCE}\ns_add_u32 s15, s15, 1\ns_cmp_lg_u32 s63, 0\ns_cbranch_scc1 {tag}_n1")
    a(f"s_cmp_gt_u32 s15, 0x40000\ns_cbranch_scc1 {tag}_n1\ns_sleep 2\nbuffer_load_dword v{NONCE}, off, s[{sDB}:{sDB+3}], 0 sc1\ns_waitcnt vmcnt(0)\ns_branch {tag}_n0")
    a(f"{tag}_n1:")

def ka(a):
    N = NAME
    entry(a, N)
    a("""s_and_b32 s8, s2, 7
    s_lshr_b32 s9, s2, 3
    s_lshr_b32 s10, s8, 1
    s_and_b32 s11, s8, 1
    s_lshl_b32 s4, s10, 2
    s_and_b32 s12, s9, 3
    s_add_u32 s4, s4, s12
    s_lshl_b32 s5, s11, 2
    s_bfe_u32 s13, s9, 0x20002
    s_add_u32 s5, s5, s13
    s_lshr_b32 s6, s9, 4
    s_lshl_b32 s7, s5, 1
    s_add_u32 s7, s7, s6""")
    a(f"s_cmp_lt_u32 s3, 4\ns_cbranch_scc1 {N}_comp")
    a("s_sub_u32 s60, s3, 4")
    if STAG == 1: a("s_lshr_b32 s66, s9, 2\ns_lshl_b32 s13, s12, 1\ns_add_u32 s66, s66, s13")
    elif STAG == 0: a("s_mov_b32 s66, 0")
    else:
        XM = {2: (1, 1), 3: (1, 2), 4: (3, 1), 5: (1, 0), 6: (3, 0)}[STAG]
        a(f"s_lshr_b32 s66, s9, 2\ns_add_u32 s66, s66, s12\ns_and_b32 s66, s66, {XM[0]}\ns_lshl_b32 s66, s66, {XM[1]}")
    a("s_lshl_b32 s64, s8, 2\ns_add_u32 s64, s64, s12\ns_lshr_b32 s65, s9, 2")
    XV, WV, QV, AXV, AA, WG, FP, ACC, XF, PK, ZB = 96, 100, 102, 104, 112, 128, 48, 64, 16, 32, 96
    global CA
    CA = 124
    a(f"""v_lshrrev_b32 v1, 3, v0
    v_and_b32 v2, 7, v0
    v_lshrrev_b32 v3, 4, v0
    v_xor_b32 v2, v2, v3
    v_lshlrev_b32 v2, 4, v2
    s_lshl_b32 s8, s4, 17
    s_lshl_b32 s10, s60, 15
    s_add_u32 s8, s8, s10
    v_lshl_add_u32 v5, v1, 10, v2
    v_add_u32 v{XV}, s8, v5
    v_add_u32 v{XV+1}, 7168, v{XV}
    v_xor_b32 v{XV+1}, 64, v{XV+1}
    v_add_u32 v{XV+2}, 14336, v{XV}
    v_add_u32 v{XV+3}, 14336, v{XV+1}
    v_mul_u32_u24 v5, 3072, v1
    v_bfe_u32 v6, v0, 2, 1
    v_and_b32 v7, 1, v3
    v_xor_b32 v6, v6, v7
    v_lshl_add_u32 v5, v6, 6, v5
    v_and_b32 v7, 3, v0
    v_lshl_add_u32 v5, v7, 4, v5
    s_mul_i32 s8, s60, 49152
    s_lshl_b32 s10, s6, 10
    s_add_u32 s10, s10, s8
    s_lshl_b32 s11, s5, 7
    s_add_u32 s10, s10, s11
    s_add_u32 s10, s10, 1024
    v_add_u32 v{WV}, s10, v5
    v_add_u32 v{WV+1}, 23552, v{WV}
    s_lshl_b32 s14, s60, 12
    s_lshl_b32 s67, s60, 11
    s_waitcnt lgkmcnt(0)""")
    srd(a, sX, 16, 2048 * 512 * 2)
    srd(a, sW, 28, 512 * 1536 * 2)
    SX = f"s[{sX}:{sX+3}]"; SW = f"s[{sW}:{sW+3}]"
    def chunk_idx(n):
        if STAG == 1: a(f"s_add_u32 s9, s66, {n}\ns_and_b32 s9, s9, 7")
        else: a(f"s_xor_b32 s9, s66, {n}")
    pieces = []
    PER = int(opt("per", 1))
    def dma(x):
        a(x)
        for _ in range(PER):
            if pieces: a(pieces.pop(0))
    def issue(u):
        reg = R[u % 5]
        if u < 8:
            chunk_idx(u)
            a(f"s_add_u32 m0, s14, {reg}\ns_lshl_b32 s10, s9, 7\ns_mul_i32 s11, s9, 196608")
            for i in range(4): dma(f"buffer_load_dwordx4 v{XV+i}, {SX}, s10 offen offset:{1024*i} lds")
            a(f"s_add_u32 m0, s67, {reg+16384}\ns_nop 0")
            for i in range(2): dma(f"buffer_load_dwordx4 v{WV+i}, {SW}, s11 offen offset:{1024*i} lds")
            return 6
        if u == 8:
            a(f"s_lshr_b32 s12, s67, 1")
            for n in range(8):
                chunk_idx(n)
                a(f"s_add_u32 m0, s12, {reg+4096*n}\ns_mul_i32 s11, s9, 196608")
                dma(f"buffer_load_dwordx4 v{QV}, {SW}, s11 offen lds")
            return 8
        a(f"s_lshl_b32 s12, s14, 1\ns_movk_i32 s10, {512*(u-9)}")
        for i in range(8):
            if i % 4 == 0: a(f"s_add_u32 m0, s12, {reg+1024*i}\ns_nop 0")
            dma(f"buffer_load_dwordx4 v{AXV+i}, {SX}, s10 offen offset:{1024*(i%4)} lds")
        return 8
    work = []
    def late_setup():
        a(f"""v_lshrrev_b32 v5, 2, v0
        v_mul_u32_u24 v5, 3072, v5
        v_lshl_add_u32 v5, v7, 4, v5
        s_lshl_b32 s10, s7, 6
        s_add_u32 s10, s10, s8
        v_add_u32 v{QV}, s10, v5""")
        a(f"""v_and_b32 v1, 31, v0
        v_lshrrev_b32 v2, 5, v0
        v_xor_b32 v5, v1, v2
        v_lshlrev_b32 v5, 4, v5
        v_lshl_add_u32 v5, v2, 17, v5
        s_lshl_b32 s10, s64, 2
        s_add_u32 s10, s10, s60
        s_lshl_b32 s10, s10, 10
        v_add_u32 v5, s10, v5""")
        for n in range(8):
            a(f"v_xor_b32 v{AXV+n}, {32*n}, v5")
            if n: a(f"v_add_u32 v{AXV+n}, {n*2*131072-1024*(n%4)}, v{AXV+n}")
        a(f"""v_and_b32 v5, 15, v0
        v_xor_b32 v5, v5, v2
        v_lshlrev_b32 v5, 4, v5
        v_lshl_add_u32 v5, v1, 9, v5
        s_lshr_b32 s10, s60, 1
        s_lshl_b32 s10, s10, 14
        s_add_u32 s10, s10, {R[4]}
        v_add_u32 v{AA}, s10, v5""")
        for ks in range(1, 8): a(f"v_xor_b32 v{AA+ks}, {32*ks}, v{AA}")
        srd(a, sWS, 38, WS_BYTES)
        srd(a, sDB, 36, 256)
        a(f"v_mov_b32 v{CA}, {L_CNT}\nv_mov_b32 v{CA+1}, 1")
        a("""s_lshl_b32 s10, s65, 5
        v_add_u32 v5, s10, v1
        s_and_b32 s11, s60, 1
        v_lshlrev_b32 v15, 31, v5
        v_or_b32 v15, 1.0, v15
        v_sub_u32 v6, v5, s11
        v_ashrrev_i32 v6, 31, v6
        v_and_b32 v7, 256, v6
        v_or_b32 v5, v5, v7
        v_cvt_f32_u32 v13, v5
        v_mul_f32 v13, 0x3b000000, v13
        s_mul_i32 s11, s11, 0x3e800000
        v_not_b32 v6, v6
        v_and_b32 v14, s11, v6
        v_cvt_f32_u32 v5, v2
        v_mul_f32 v5, 0x41000000, v5
        v_fmac_f32 v14, v5, v13""")
    def gen_pieces():
        a("""s_lshr_b32 s9, s60, 1
        s_lshl_b32 s9, s9, 3
        v_bfe_u32 v120, v0, 1, 3
        v_add_u32 v120, s9, v120
        v_cvt_f32_u32 v120, v120
        v_and_b32 v121, 1, v0
        v_lshrrev_b32 v6, 5, v0
        v_sub_u32 v121, v121, v6
        v_cvt_f32_i32 v121, v121
        v_mul_f32 v121, 0x3e800000, v121
        v_bfe_u32 v6, v0, 4, 1
        v_lshlrev_b32 v6, 9, v6
        s_lshl_b32 s9, s64, 2
        v_add_u32 v6, s9, v6
        v_cvt_f32_u32 v6, v6
        v_mul_f32 v122, 0x3a000000, v120
        v_fmac_f32 v121, v6, v122
        v_mul_f32 v120, 0x3d800000, v120""")
        a("v_mul_f32 v123, 0x41800000, v13\nv_cos_f32 v123, v123\ns_nop 0\nv_add_f32 v123, v123, v123")
        for ks in range(16):
            r = 16 + 8 * (ks & 1); o_ = 16 + 8 * (1 - (ks & 1))
            for p in range(4):
                x, y = r + 2 * p, r + 2 * p + 1
                if ks < 2:
                    pieces.append(f"v_fmamk_f32 v{x}, v13, {fhex(float(16*ks+2*p))}, v14\nv_add_f32 v{y}, v{x}, v13\nv_cos_f32 v{x}, v{x}\nv_cos_f32 v{y}, v{y}\ns_nop 0\nv_cvt_pk_bf16_f32 v{WG+4*ks+p}, v{x}, v{y}")
                else:
                    pieces.append(f"v_fma_f32 v{x}, v123, v{o_+2*p}, -v{x}\nv_fma_f32 v{y}, v123, v{o_+2*p+1}, -v{y}\nv_cvt_pk_bf16_f32 v{WG+4*ks+p}, v{x}, v{y}")
        for u in range(4):
            for p in range(4):
                c0 = (2 * p & 3) + 8 * (p >> 1)
                pre = "v_add_f32 v121, v121, v122\n" if (u and p == 0) else ""
                pieces.append(pre + f"v_fmamk_f32 v4, v120, {fhex(float(c0))}, v121\nv_add_f32 v5, v4, v120\nv_cos_f32 v4, v4\nv_cos_f32 v5, v5\ns_nop 0\nv_cvt_pk_bf16_f32 v{FP+4*u+p}, v4, v5")
    def flush(k):
        for _ in range(k):
            if pieces: a(pieces.pop(0))
    WORK = {0: [late_setup, gen_pieces, lambda: flush(int(opt("pre", 40)))], 9: [lambda: flush(1000), lambda: a(f"buffer_load_dword v{NONCE}, off, s[{sDB}:{sDB+3}], 0 sc1"), lambda: att_setup(a)]}
    SCHED = eval(opt("sched", "[[0,1],[2,3],[4],[5],[6],[7],[],[8],[9],[10]]"))
    cnt = {}; issued = []
    for n in range(10):
        for u in SCHED[n]:
            assert u < 5 or u - 5 <= n - 3, (u, n)
            cnt[u] = issue(u); issued.append(u)
        for f in WORK.get(n, []): f()
        younger = sum(cnt[u] for u in issued if u > n) if n < 9 else 0
        a(f"s_waitcnt vmcnt({younger})")
        if n < 8: a("s_barrier")
        else: signal(a, n - 8)
        if n == 7: stamp(a, 2)
        if n == 8: stamp(a, 3)
    get_nonce(a, "ln")
    a(f"s_lshl_b32 s77, s64, 3\ns_add_u32 s77, s77, s65\ns_lshl_b32 s77, s77, 8\ns_lshl_b32 s9, s60, 2\ns_add_u32 s77, s77, s9\ns_add_u32 s77, s77, {FL3}")
    waitcnt_lds(a, 1, 4)
    stamp(a, 4)
    def ard(s):
        F = XF + 4 * (s & 7)
        a(f"ds_read_b128 v[{F}:{F+3}], v{AA+(s&7)} offset:{256*((s>>3)&1)}")
        if 8 <= s < 16: a(f"v_subrev_u32 v{AA+(s&7)}, {R[4]-R[0]}, v{AA+(s&7)}")
    for s in range(6): ard(s)
    for s in range(32):
        a(f"s_waitcnt lgkmcnt({min(5, 31-s)})")
        c = vr(ACC + 16 * (s >> 4), 16)
        a(f"{MF} {c}, {vr(XF+4*(s&7),4)}, {vr(WG+4*(s&15),4)}, {'0' if (s & 15) == 0 else c}")
        if s + 6 < 32: ard(s + 6)
    a(f"""s_and_b32 s9, s60, 1
    s_lshl_b32 s9, s9, 12
    s_lshr_b32 s10, s60, 1
    s_lshl_b32 s11, s10, 11
    s_add_u32 s9, s9, s11
    s_add_u32 s9, s9, {L_ZX}
    v_lshlrev_b32 v1, 4, v0
    v_add_u32 v2, s9, v1
    v_lshrrev_b32 v4, 5, v0
    v_lshlrev_b32 v3, 12, v4
    v_bfe_u32 v5, v0, 4, 1
    v_lshl_add_u32 v3, v5, 9, v3
    v_and_b32 v6, 15, v0
    v_lshl_add_u32 v3, v6, 4, v3""")
    for i in range(16): a(f"v_fmac_f32 v{ACC+i}, v{ACC+16+i}, v15")
    for i in range(8): a(f"v_cvt_pk_bf16_f32 v{PK+i}, v{ACC+2*i}, v{ACC+2*i+1}")
    waitcnt_lds(a, 0, 8)
    a(f"ds_write_b128 v2, v[{PK}:{PK+3}]\nds_write_b128 v2, v[{PK+4}:{PK+7}] offset:1024")
    signal(a, 2)
    a(f"""s_and_b32 s9, s60, 1
    s_lshl_b32 s9, s9, 8
    s_add_u32 s11, s9, {L_ZX}
    v_add_u32 v3, s11, v3
    v_lshrrev_b32 v4, 4, v0
    v_mul_u32_u24 v4, {2*32*TP}, v4
    v_lshl_add_u32 v5, v6, 4, v4
    s_lshl_b32 s11, s65, 9
    s_add_u32 s9, s9, s11
    v_add_u32 v5, s9, v5
    s_mul_i32 s10, s10, {8*32*TP}
    s_mul_i32 s11, s64, {TP}
    s_add_u32 s10, s10, s11
    s_add_u32 s10, s10, {TF}
    s_add_u32 s11, s10, {32*TP}
    s_lshl_b32 s12, s60, 10
    s_add_u32 s12, s12, {L_QB}
    v_add_u32 v1, s12, v1""")
    waitcnt_lds(a, 2, 4)
    def step1():
        for u in range(4): a(f"{MF16} {vr(ACC+4*u,4)}, {vr(FP+4*u,4)}, {vr(ZB+4*u,4)}, 0")
        a.nop(5)
        for r2 in range(2):
            for u in range(4): a(f"v_cvt_pk_bf16_f32 v{PK+4*r2+u}, v{ACC+4*u+2*r2}, v{ACC+4*u+2*r2+1}")
    a(f"s_cmp_lg_u32 s9, 0\ns_cbranch_scc1 {N}_nsp")
    for u in range(4): a(f"ds_read_b128 v[{ZB+4*u}:{ZB+4*u+3}], v3 offset:{4096+1024*u}")
    a("s_waitcnt lgkmcnt(0)\ns_mov_b32 exec_lo, 0")
    for i in range(0, 16, 2): a(f"v_mov_b64 v[{ZB+i}:{ZB+i+1}], 0")
    a("s_mov_b64 exec, -1\nv_add_u32 v6, 4096, v4")
    step1()
    a("s_mov_b32 exec_lo, 0x00010001\ns_mov_b32 exec_hi, 0x00010001")
    a(f"buffer_store_dwordx4 v[{PK}:{PK+3}], v6, {W}, s10 offen sc1\nbuffer_store_dwordx4 v[{PK+4}:{PK+7}], v6, {W}, s11 offen sc1")
    a("s_mov_b32 exec_lo, -1\ns_mov_b32 exec_hi, 0xfffefffe")
    a.label(f"{N}_nsp")
    for u in range(4): a(f"ds_read_b128 v[{ZB+4*u}:{ZB+4*u+3}], v3 offset:{1024*u}")
    a("s_waitcnt lgkmcnt(0)\ns_mov_b64 exec, -1")
    step1()
    a(f"s_barrier\nds_read_b128 v[{QA}:{QA+3}], v1")
    a(f"buffer_store_dwordx4 v[{PK}:{PK+3}], v5, {W}, s10 offen sc1\nbuffer_store_dwordx4 v[{PK+4}:{PK+7}], v5, {W}, s11 offen sc1")
    a("s_branch att_body2")
    a.label(f"{N}_end")
    a("s_endpgm")

    XR, WR, ACC, PK = 128, 96, 64, 32
    XA, WA = 8, 12
    CA = 28
    a(".p2align 8")
    a.label(f"{N}_comp")
    a(f"""v_and_b32 v1, 31, v0
    v_lshrrev_b32 v2, 5, v0
    v_bfe_u32 v3, v0, 1, 3
    v_xor_b32 v3, v3, v2
    v_lshlrev_b32 v3, 4, v3
    v_lshl_add_u32 v3, v1, 7, v3
    s_lshl_b32 s9, s3, 12
    v_add_u32 v{XA}, s9, v3""")
    for ks in range(1, 4): a(f"v_xor_b32 v{XA+ks}, {32*ks}, v{XA}")
    a(f"""v_bfe_u32 v4, v0, 2, 2
    v_lshl_add_u32 v5, v2, 3, v4
    v_bfe_u32 v6, v0, 4, 1
    v_lshlrev_b32 v6, 5, v6
    v_and_b32 v7, 3, v0
    v_lshl_add_u32 v6, v7, 3, v6
    v_lshl_add_u32 v14, v5, 6, v6
    v_add_u32 v14, {R[3]}, v14
    v_lshl_add_u32 v5, v5, 7, v6
    v_lshrrev_b32 v4, 1, v4
    v_lshl_add_u32 v{WA}, v4, 6, v5
    v_xor_b32 v{WA+1}, 64, v{WA}""")
    a(f"v_mov_b32 v{CA}, {L_CNT}\nv_mov_b32 v{CA+1}, 1\nv_mov_b64 v[4:5], 0\nv_mov_b64 v[6:7], 0\nds_write_b128 v{CA}, v[4:7]")
    a(f"s_cmp_ge_u32 s3, 3\ns_cbranch_scc1 {N}_npf")
    a(f"s_getpc_b64 s[10:11]\n{N}_pc:\ns_sub_u32 s10, s10, {N}_pc-{N}\ns_subb_u32 s11, s11, 0\ns_lshl_b32 s9, s3, 13\nv_lshlrev_b32 v4, 7, v0\nv_add_u32 v4, s9, v4")
    a("v_mov_b32 v5, s11\nv_add_co_u32 v4, vcc, s10, v4\ns_nop 1\nv_addc_co_u32 v5, vcc, 0, v5, vcc\nglobal_load_dword v17, v[4:5], off")
    a.label(f"{N}_npf")
    a("s_waitcnt lgkmcnt(0)")
    srd(a, sWS, 38, WS_BYTES)
    srd(a, sDB, 36, 256)
    srd(a, sX, 16, 2048 * 512 * 2)
    a(f"s_or_b32 s9, s2, s3\ns_cmp_lg_u32 s9, 0\ns_cbranch_scc1 {N}_nn")
    a("s_memrealtime s[10:11]\ns_waitcnt lgkmcnt(0)\ns_or_b32 s10, s10, 1\nv_mov_b32 v4, s10\ns_mov_b64 exec, 1")
    a(f"buffer_store_dword v4, off, s[{sDB}:{sDB+3}], 0 sc1\ns_mov_b64 exec, -1")
    a.label(f"{N}_nn")
    a(f"""s_lshl_b32 s8, s5, 7
    s_lshl_b32 s9, s4, 2
    s_add_u32 s8, s8, s9
    s_add_u32 s8, s8, s3
    s_lshl_b32 s8, s8, 12
    s_lshl_b32 s9, s6, 11
    s_add_u32 s8, s8, s9
    s_add_u32 s60, s8, 262144
    s_lshl_b32 s77, s4, 4
    s_add_u32 s77, s77, s7
    s_lshl_b32 s77, s77, 2
    s_add_u32 s77, s77, s3
    s_lshl_b32 s77, s77, 8
    s_add_u32 s77, s77, {FL1}
    v_lshlrev_b32 v15, 4, v0""")
    a(f"""s_mul_i32 s66, s3, 3
    s_lshl_b32 s67, s4, 2
    s_add_u32 s66, s66, s67
    s_sub_u32 s66, s66, 8
    v_lshrrev_b32 v4, 1, v0
    v_add_u32 v4, s66, v4
    v_ashrrev_i32 v5, 31, v4
    v_mov_b32 v6, s67
    v_bfi_b32 v4, v5, v6, v4
    v_lshrrev_b32 v5, 2, v4
    v_lshlrev_b32 v5, 6, v5
    v_and_b32 v6, 3, v4
    v_and_b32 v7, 1, v0
    v_lshl_add_u32 v6, v7, 2, v6
    s_lshl_b32 s11, s5, 3
    v_add3_u32 v5, v5, v6, s11
    v_lshlrev_b32 v18, 8, v5""")
    a(f"s_cmp_eq_u32 s6, 1\ns_cbranch_scc1 {N}_V")
    def p1(swap):
        naddr = [XA + i for i in range(4)] + [WA, WA + 1]
        def rds(s):
            ks = s & 3; F = WR + 8 * ks
            o = [f"ds_read_b128 v[{XR+4*s}:{XR+4*s+3}], v{XA+ks}"]
            for nt in range(2):
                for h in range(2): o.append(f"ds_read_b64_tr_b16 v[{F+4*nt+2*h}:{F+4*nt+2*h+1}], v{WA+nt} offset:{16384+2048*ks+512*h}")
            return o
        a("s_barrier")
        stamp(a, 1)
        for x in rds(0) + rds(1): a(x)
        for s in range(32):
            ks = s & 3; c = s >> 2
            a(f"s_waitcnt lgkmcnt({5 if s < 31 else 0})")
            r = rds(s + 2) if s < 30 else []
            for nt in range(2):
                x = vr(XR + 4 * s, 4); w = vr(WR + 8 * ks + 4 * nt, 4); cc = vr(ACC + 16 * nt, 16)
                ci = "0" if s == 0 else cc
                a(f"{MF} {cc}, {w}, {x}, {ci}" if swap else f"{MF} {cc}, {x}, {w}, {ci}")
                if nt == 0 and ks == 2 and c < 7:
                    d = R[(c + 1) % 5] - R[c % 5]
                    for x_ in naddr: a(f"v_add_u32 v{x_}, {d}, v{x_}" if d > 0 else f"v_subrev_u32 v{x_}, {-d}, v{x_}")
                    if c == 5: a(f"buffer_load_dword v{NONCE}, off, s[{sDB}:{sDB+3}], 0 sc1")
                    a("s_barrier")
                for x_ in (r[:3] if nt == 0 else r[3:]): a(x_)
    p1(True)
    a(f"s_branch {N}_p1d")
    a.label(f"{N}_V")
    p1(False)
    a.label(f"{N}_p1d")
    stamp(a, 2)
    a("s_waitcnt vmcnt(0)")
    get_nonce(a, "gm")
    a.nop(6)
    for nt in range(2):
        for i in range(8): a(f"v_cvt_pk_bf16_f32 v{PK+8*nt+i}, v{ACC+16*nt+2*i}, v{ACC+16*nt+2*i+1}")
        for h in range(2): a(f"buffer_store_dwordx4 v[{PK+8*nt+4*h}:{PK+8*nt+4*h+3}], v15, {W}, s{(8,60)[nt]} offen offset:{1024*h} sc1")
    signal(a, 0)
    waitcnt_lds(a, 0, 8)
    FLAGAT = int(opt("flagat", 12))
    def qrd(s):
        F = WR + 4 * (s & 7)
        for h in range(2): a(f"ds_read_b64_tr_b16 v[{F+2*h}:{F+2*h+1}], v14 offset:{1024*s+256*h}")
    for s in range(6): qrd(s)
    for s in range(32):
        a(f"s_waitcnt lgkmcnt({2*min(5, 31-s)})")
        a(f"{MF} {vr(ACC,16)}, {vr(WR+4*(s&7),4)}, {vr(XR+4*s,4)}, {'0' if s == 0 else vr(ACC,16)}")
        if s + 6 < 32: qrd(s + 6)
        if s == FLAGAT:
            a(f"s_waitcnt vmcnt(0)\ns_mov_b64 exec, 1\nbuffer_store_dword v{NONCE}, off, {W}, s77 sc1\ns_mov_b64 exec, -1")
            stamp(a, 3)
    a(f"""s_lshl_b32 s9, s3, 10
    s_add_u32 s9, s9, {L_QB}
    v_add_u32 v4, s9, v15""")
    a.nop(9)
    for i in range(16): a(f"v_mul_f32 v{ACC+i}, {fhex(QSCALE)}, v{ACC+i}")
    for i in range(8): a(f"v_cvt_pk_bf16_f32 v{QA+i}, v{ACC+2*i}, v{ACC+2*i+1}")
    a(f"ds_write_b128 v4, v[{QB}:{QB+3}]")
    att_setup(a)
    waitcnt_lds(a, 1, 4)
    a(f"s_mov_b32 s76, {FL1}\ns_mov_b64 exec, 63\nbuffer_load_dword v19, v18, {W}, s76 offen sc1\ns_mov_b64 exec, -1")
    a("s_mov_b32 s15, 0\ns_mov_b64 exec, 63")
    a(f"gm_poll:\ns_add_u32 s15, s15, 1\ns_waitcnt vmcnt(0)\nv_cmp_ne_u32 vcc, s63, v19")
    a(f"s_cmp_gt_u32 s15, 0x40000\ns_cbranch_scc1 gm_polled\ns_cbranch_vccz gm_polled\ns_sleep {PSLEEP}")
    a(f"buffer_load_dword v19, v18, {W}, s76 offen sc1\ns_branch gm_poll")
    a("gm_polled:\ns_mov_b64 exec, -1")
    stamp(a, 4)
    a(f"s_mul_i32 s12, s3, 12288\ns_lshl_b32 s13, s7, 6")
    for t in range(3):
        a(f"s_add_u32 s11, s66, {t}\ns_cmp_lt_i32 s11, 0\ns_cselect_b32 s11, s67, s11\ns_add_u32 s11, s11, s13\ns_lshl_b32 s11, s11, 12")
        a(f"s_add_u32 m0, s12, {L_KV + 4096*t}\ns_nop 0")
        for i in range(4): a(f"buffer_load_dwordx4 v15, {W}, s11 offen offset:{1024*i} sc1 lds")
    a("""v_and_b32 v1, 31, v0
    v_lshrrev_b32 v2, 5, v0
    s_and_b32 s9, s3, 1
    s_lshl_b32 s9, s9, 5
    s_lshl_b32 s10, s73, 6
    s_add_u32 s9, s9, s10
    v_add_u32 v3, s9, v1
    s_cmp_eq_u32 s72, 0
    s_cselect_b32 s9, 1, 0
    s_add_u32 s9, s9, 127
    v_sub_u32 v4, s9, v3
    v_and_b32 v4, 127, v4
    s_cmp_ge_u32 s74, 4
    s_cselect_b32 s13, -1, 0
    v_bfi_b32 v4, s13, v4, v3
    v_cvt_f32_u32 v4, v4
    v_mul_f32 v4, 0x3c000000, v4
    v_cvt_f32_u32 v5, v2
    v_mul_f32 v5, 4.0, v5
    v_mul_f32 v5, v5, v4
    v_mul_f32 v6, 0x41000000, v4
    v_cos_f32 v6, v6
    s_nop 0
    v_add_f32 v6, v6, v6""")
    for ks in range(16):
        r = 64 + 8 * (ks & 1); o_ = 64 + 8 * (1 - (ks & 1))
        for u in range(4):
            x, y = r + 2 * u, r + 2 * u + 1
            if ks < 2: a(f"v_fmamk_f32 v7, v4, {fhex(float(8*ks+u))}, v5\nv_cos_f32 v{x}, v7\nv_sin_f32 v{y}, v7\ns_nop 0")
            else: a(f"v_fma_f32 v{x}, v6, v{o_+2*u}, -v{x}\nv_fma_f32 v{y}, v6, v{o_+2*u+1}, -v{y}")
            a(f"v_cvt_pk_bf16_f32 v{FREG[ks]+u}, v{x}, v{y}")
    a("s_waitcnt vmcnt(0) lgkmcnt(0)\ns_barrier")

    a.label("att_body2")
    stamp(a, 5)
    q = vr(QA, 4); cn = vr(CN, 16); o = vr(O, 16); m = 3
    kslot = {8: 0, 0: 1}; vslot = {8: 0, 0: 1}
    for n in range(7): kslot[7 - n] = (2 + n) & 3; vslot[7 - n] = (2 + n) & 3
    kf = lambda j: vr(KRG + 4 * kslot[j], 4)
    vf = lambda j, ks: vr(VB + 8 * vslot[j] + 4 * ks, 4)
    def krd(j): a(f"ds_read_b128 {kf(j)}, v{AK} offset:{4096*j}")
    def vrd(js):
        a("s_mov_b64 exec, s[12:13]")
        for j in js:
            for ks in range(2): a(f"ds_read_b128 {vf(j,ks)}, v{AV} offset:{4096*j+2048+1024*ks}")
        a("s_mov_b64 exec, -1")
    def wo_dma():
        a(f"s_and_b32 s9, s75, 7\ns_lshl_b32 s10, s9, 10\ns_add_u32 m0, s10, s8\ns_lshl_b32 s9, s9, 13\ns_add_u32 s75, s75, 1")
        a(f"buffer_load_dwordx4 v13, s[{sW}:{sW+3}], s9 offen lds")
    krd(8)
    a(f"""s_mov_b32 s12, 0xffff
    s_mov_b32 s13, 0xffff
    s_mov_b32 s15, 0
    s_setprio 3
    s_lshl_b32 s76, s4, 7
    s_lshl_b32 s9, s5, 4
    s_add_u32 s76, s76, s9
    s_lshl_b32 s9, s3, 1
    s_add_u32 s76, s76, s9
    s_add_u32 s76, s76, s6
    s_lshl_b32 s9, s76, 10
    buffer_load_dwordx4 v[{GX}:{GX+3}], v14, s[{sX}:{sX+3}], s9 offen
    buffer_load_dwordx4 v[{GX+4}:{GX+7}], v14, s[{sG}:{sG+3}], 0 offen
    s_lshl_b32 s8, s3, 13
    s_add_u32 s8, s8, {R[3]}""")
    a(f"v_mov_b32 v{m}, 0\ns_waitcnt lgkmcnt(0)")
    for i in range(4): a(f"v_dot2c_f32_bf16 v{m}, v{QA+i}, v{KRG+i}")
    a("s_nop 2")
    a(f"v_mov_b32 v4, v{m}\ns_nop 1\nv_permlane32_swap_b32 v4, v{m}\ns_nop 0\nv_add_f32 v{m}, v4, v{m}")
    a.label("att_retry")
    for j in (8, 0, 7, 6): krd(j)
    vrd((8, 0, 7))
    a(f"v_sub_f32 v{CN}, 0, v{m}\nv_sub_f32 v{CN+1}, 0, v{m}")
    for i in range(2, 16, 2): a(f"v_mov_b64 v[{CN+i}:{CN+i+1}], v[{CN}:{CN+1}]")
    a("s_waitcnt lgkmcnt(7)\ns_nop 0")
    a(f"{MF} {vr(SB,16)}, {kf(8)}, {q}, {cn}")
    a(f"{MF} {vr(SC_,16)}, {kf(0)}, {q}, {cn}")
    a(f"{MF} {vr(SA,16)}, {kf(7)}, {q}, {cn}")
    wo_dma()
    a("s_cmp_lg_u32 s61, 9")
    a.nop(3)
    a("s_cbranch_scc1 att_no0a")
    for i in range(16): a(f"v_bfi_b32 v{SB+i}, v{TM+i}, v{SC_+i}, v{SB+i}")
    a.label("att_no0a")
    for i in range(16): a(f"v_exp_f32 v{SB+i}, v{SB+i}")
    for i in range(8): a(f"v_cvt_pk_bf16_f32 v{P+i}, v{SB+2*i}, v{SB+2*i+1}")
    for i in range(8): a(f"v_and_b32 v{P+8+i}, v{PM+i}, v{P+i}")
    for i in range(8): a(f"v_xor_b32 v{P+i}, v{P+8+i}, v{P+i}")
    a("s_waitcnt lgkmcnt(0)\ns_cmp_lg_u32 s61, 9")
    a(f"{MF} {o}, {vf(8,0)}, {vr(P,4)}, 0")
    a(f"{MF} {o}, {vf(8,1)}, {vr(P+4,4)}, {o}")
    a("s_cbranch_scc1 att_no0b")
    a(f"{MF} {o}, {vf(0,0)}, {vr(P+8,4)}, {o}")
    a(f"{MF} {o}, {vf(0,1)}, {vr(P+12,4)}, {o}")
    a.label("att_no0b")
    a("s_cmp_lt_u32 s3, 4\ns_cbranch_scc1 att_nof3")
    a(f"v_mov_b32 v4, s63\ns_waitcnt vmcnt(3)\ns_mov_b64 exec, 1\nbuffer_store_dword v4, off, {W}, s77 sc1\ns_mov_b64 exec, -1")
    a.label("att_nof3")
    a("s_cmp_eq_u32 s61, 1\ns_cbranch_scc1 att_done")
    S = [SA, SB]
    for n in range(7):
        j = 7 - n
        s = S[n & 1]; p = P + 8 * (n & 1)
        if n in (1, 3, 5): a(f"s_setprio {2 - n // 2}")
        if n < 6:
            a(f"{MF} {vr(S[(n+1)&1],16)}, {kf(j-1)}, {q}, {cn}")
            if n < 5: krd(j - 2)
            vrd((j - 1,))
        for i in range(8): a(f"v_exp_f32 v{s+i}, v{s+i}")
        for i in range(4): a(f"v_cvt_pk_bf16_f32 v{p+i}, v{s+2*i}, v{s+2*i+1}")
        for i in range(8, 10): a(f"v_exp_f32 v{s+i}, v{s+i}")
        a(f"{MF} {o}, {vf(j,0)}, {vr(p,4)}, {o}")
        wo_dma()
        for i in range(10, 16): a(f"v_exp_f32 v{s+i}, v{s+i}")
        for i in range(4, 8): a(f"v_cvt_pk_bf16_f32 v{p+i}, v{s+2*i}, v{s+2*i+1}")
        a(f"s_cmp_eq_u32 s61, {n+2}\ns_waitcnt lgkmcnt(0)")
        a(f"{MF} {o}, {vf(j,1)}, {vr(p+4,4)}, {o}")
        if n < 6: a("s_cbranch_scc1 att_done")
    a.label("att_done")
    a("s_cmp_ge_u32 s75, 8\ns_cbranch_scc1 att_done2")
    wo_dma()
    a("s_branch att_done")
    a.label("att_done2")
    a(f"""s_sub_u32 s9, 7, s74
    s_min_u32 s9, s9, s74
    s_lshl_b32 s9, s9, 1
    v_and_b32 v5, 3, v0
    v_add_u32 v5, s9, v5
    v_and_b32 v5, 7, v5
    v_lshrrev_b32 v6, 2, v0
    v_lshl_add_u32 v5, v6, 3, v5
    v_lshlrev_b32 v18, 8, v5
    s_lshl_b32 s79, s3, 13
    s_add_u32 s79, s79, {FL3}
    s_mov_b64 exec, 0x7777
    buffer_load_dwordx4 v[24:27], v18, {W}, s79 offen sc1
    s_mov_b64 exec, -1
    v_mov_b32 v5, 0
    s_waitcnt vmcnt(9)""")
    for i in range(4): a(f"v_dot2c_f32_bf16 v5, v{GX+i}, v{GX+4+i}")
    a(f"s_mov_b32 s14, {fhex(0.0 if FORCEFB else 2.0**90)}\nv_mov_b32 v7, v{O+8}\nv_mov_b32 v6, 0")
    red = ["quad_perm:[1,0,3,2] row_mask:0xf", "quad_perm:[2,3,0,1] row_mask:0xf", "row_half_mirror row_mask:0xf", "row_mirror row_mask:0xf", "row_bcast:15 row_mask:0xa", "row_bcast:31 row_mask:0xc"]
    for i in range(4):
        a(f"v_add_f32_dpp v5, v5, v5 {red[i]} bank_mask:0xf")
        a(f"v_fmac_f32 v7, v{O+2*i}, v6\nv_fmac_f32 v7, v{O+2*i+1}, v6")
    a(f"v_add_f32_dpp v5, v5, v5 {red[4]} bank_mask:0xf")
    a(f"v_rcp_f32 v4, v{O+8}\nv_cmp_nge_f32 vcc, s14, v7")
    a(f"v_add_f32_dpp v5, v5, v5 {red[5]} bank_mask:0xf")
    a("s_cbranch_vccnz att_fb")
    a.label("att_fin")
    for i in range(8): a(f"v_mul_f32 v{O+i}, v{O+i}, v4")
    for i in range(4): a(f"v_cvt_pk_bf16_f32 v{P+i}, v{O+2*i}, v{O+2*i+1}")
    a(f"ds_write_b128 v{AO}, v[{P}:{P+3}]")
    a(f"v_mul_f32 v5, {fhex(-math.log2(math.e))}, v5\nv_exp_f32 v5, v5\ns_and_b32 s9, s76, 15\nv_add_f32 v5, 1.0, v5\nv_rcp_f32 v5, v5")
    a(f"s_lshl_b32 s9, s9, 9\ns_lshr_b32 s10, s76, 4\ns_lshl_b32 s10, s10, 2\ns_add_u32 s9, s9, s10\ns_add_u32 s9, s9, {GF}")
    a(f"s_mov_b32 exec_lo, 0\ns_mov_b32 exec_hi, 0x80000000\nbuffer_store_dword v5, off, {W}, s9 sc1\ns_mov_b64 exec, -1")
    stamp(a, 6)
    a(f"s_setprio 0\ns_waitcnt lgkmcnt(0)\ns_barrier\nds_read_b128 v[{P}:{P+3}], v{AR}")
    a(f"""s_lshl_b32 s11, s74, 10
    v_add_u32 v2, s11, v14
    v_sub_u32 v3, 8192, v2
    s_sub_u32 s12, 16, s72
    s_and_b32 s12, s12, 15
    s_cmp_ge_u32 s74, 4
    s_cselect_b32 s12, s12, s72
    s_cselect_b32 s13, -1, 0
    s_lshl_b32 s12, s12, 5
    s_lshl_b32 s14, s3, 2
    s_add_u32 s12, s12, s14
    s_mul_i32 s12, s12, {TP}
    s_add_u32 s12, s12, {TF}
    v_bfi_b32 v2, s13, v3, v2
    s_lshl_b32 s77, s3, 4
    s_add_u32 s77, s77, s4
    s_lshl_b32 s77, s77, 4
    s_add_u32 s77, s77, s7
    s_lshl_b32 s77, s77, 8
    s_add_u32 s77, s77, {FL2}
    v_mov_b32 v4, s63
    s_waitcnt lgkmcnt(0)
    buffer_store_dwordx4 v[{P}:{P+3}], v12, {W}, s62 offen sc1
    s_mov_b32 s15, 0
    s_mov_b64 exec, 0x7777
    s_waitcnt vmcnt(2)""")
    a("""t_poll:
    v_xor_b32 v24, s63, v24
    v_xor_b32 v25, s63, v25
    v_xor_b32 v26, s63, v26
    v_xor_b32 v27, s63, v27
    v_or3_b32 v24, v24, v25, v26
    v_or_b32 v24, v24, v27
    v_cmp_ne_u32 vcc, 0, v24
    s_add_u32 s15, s15, 1
    s_cmp_gt_u32 s15, 0x40000
    s_cbranch_scc1 t_polled
    s_cbranch_vccz t_polled""")
    a(f"s_sleep {PSLEEP}\nbuffer_load_dwordx4 v[24:27], v18, {W}, s79 offen sc1\ns_waitcnt vmcnt(0)\ns_branch t_poll")
    a(f"t_polled:\ns_mov_b64 exec, -1\ns_lshl_b32 s9, s3, 12\ns_add_u32 m0, s9, {R[0]}\ns_nop 0")
    for i in range(4):
        a(f"buffer_load_dwordx4 v2, {W}, s12 offen offset:{1024*i} sc1 lds")
        if i < 3: a(f"s_add_u32 s12, s12, {TP-1024}")
    a(f"s_waitcnt vmcnt(4)\ns_mov_b64 exec, 1\nbuffer_store_dword v4, off, {W}, s77 sc1\ns_mov_b64 exec, -1")
    a("s_cmp_lt_u32 s3, 4\ns_cbranch_scc1 out_comp")
    a(f"""s_sub_u32 s60, s3, 4
    s_lshr_b32 s9, s72, 1
    s_lshl_b32 s9, s9, 4
    s_lshl_b32 s10, s73, 3
    s_add_u32 s9, s9, s10
    s_lshl_b32 s9, s9, 4
    s_add_u32 s9, s9, s60
    s_lshl_b32 s9, s9, 8
    s_add_u32 s9, s9, {FL2}
    v_and_b32 v5, 7, v0
    v_lshlrev_b32 v5, 12, v5
    v_lshrrev_b32 v6, 3, v0
    v_lshl_add_u32 v5, v6, 10, v5
    s_mul_i32 s8, s72, {OP}
    s_lshl_b32 s10, s73, 16
    s_add_u32 s8, s8, s10
    s_lshl_b32 s10, s60, 12
    s_add_u32 s8, s8, s10
    s_add_u32 s8, s8, {OF}
    s_mov_b32 s15, 0
    s_waitcnt vmcnt(1)
    s_barrier
    s_mov_b32 exec_hi, 0""")
    a(f"o_poll:\nbuffer_load_dword v6, v5, {W}, s9 offen sc1\ns_add_u32 s15, s15, 1\ns_waitcnt vmcnt(0)\nv_cmp_ne_u32 vcc, s63, v6")
    a(f"s_cmp_gt_u32 s15, 0x40000\ns_cbranch_scc1 o_polled\ns_cbranch_vccz o_polled\ns_sleep {int(opt('psleep2', 4))}\ns_branch o_poll")
    a("o_polled:\ns_mov_b64 exec, -1")
    stamp(a, 7)
    def oissue(c):
        a(f"s_add_u32 m0, s10, {R[1] + 16384*c}")
        a("s_add_u32 s8, s8, 16384" if c else "s_nop 0")
        for i in range(4): a(f"buffer_load_dwordx4 v14, {W}, s8 offen offset:{1024*i} sc1 lds")
    for c in range(4): oissue(c)
    for c in range(4): a(f"s_waitcnt vmcnt({12-4*c})\ns_barrier")
    stamp_out(a, 0)
    a("s_endpgm")
    AB, AY, FR = 64, 80, 192
    a.label("out_comp")
    a("s_lshr_b32 s66, s3, 1\ns_and_b32 s67, s3, 1")
    srd(a, sOUT, 34, 2048 * 512 * 2)
    a(f"""v_and_b32 v1, 31, v0
    v_lshrrev_b32 v2, 5, v0
    s_lshl_b32 s9, s67, 5
    s_lshl_b32 s10, s73, 6
    s_add_u32 s9, s9, s10
    v_add_u32 v3, s9, v1
    v_bfe_u32 v9, v0, 3, 2
    v_lshlrev_b32 v6, 9, v9
    v_and_b32 v9, 1, v9
    v_xor_b32 v9, v9, v2
    v_lshl_add_u32 v6, v9, 7, v6
    v_and_b32 v9, 7, v0
    v_lshl_add_u32 v6, v9, 4, v6
    s_lshl_b32 s9, s67, 11
    s_add_u32 s9, s9, {R[1]}
    v_add_u32 v6, s9, v6
    v_bfe_u32 v9, v0, 2, 2
    v_lshl_add_u32 v7, v2, 2, v9
    v_lshlrev_b32 v7, 7, v7
    v_lshrrev_b32 v9, 1, v9
    v_xor_b32 v9, s66, v9
    v_lshl_add_u32 v7, v9, 6, v7
    v_and_b32 v9, 1, v0
    v_lshl_add_u32 v7, v9, 5, v7
    v_bfe_u32 v9, v0, 4, 1
    v_lshl_add_u32 v7, v9, 4, v7
    v_bfe_u32 v9, v0, 1, 1
    v_lshl_add_u32 v7, v9, 3, v7
    v_add_u32 v7, {R[3]}, v7
    v_bfe_u32 v9, v0, 2, 1
    v_lshlrev_b32 v8, 4, v9
    v_and_b32 v9, 3, v0
    v_add_u32 v8, v8, v9
    v_bfe_u32 v9, v0, 3, 2
    v_lshl_add_u32 v8, v9, 2, v8
    s_lshl_b32 s9, s66, 5
    v_add_u32 v8, s9, v8
    v_lshlrev_b32 v8, 4, v8
    v_lshl_add_u32 v8, v2, 10, v8
    v_lshlrev_b32 v25, 14, v3
    v_lshl_add_u32 v25, v2, 5, v25
    s_lshl_b32 s15, s72, 10
    s_lshl_b32 s10, s74, 7
    s_add_u32 s15, s15, s10
    s_lshl_b32 s10, s66, 6
    s_add_u32 s15, s15, s10
    v_lshlrev_b32 v5, 2, v3
    s_lshl_b32 s11, s72, 9
    s_add_u32 s11, s11, {GF}
    s_waitcnt vmcnt(1)
    s_barrier""")
    stamp(a, 7)
    ab = vr(AB, 16); ay = vr(AY, 16)
    for ks in range(8): a(f"ds_read_b128 v[{FR+4*ks}:{FR+4*ks+3}], v8 offset:{R[0]+2048*ks}")
    for ks in range(16):
        a(f"s_waitcnt lgkmcnt({min(7, 15-ks)})")
        a(f"{MF} {ay}, {vr(FR+4*ks,4)}, {vr(FREG[ks],4)}, {'0' if ks == 0 else ay}")
        if ks < 8: a(f"ds_read_b128 v[{FR+4*ks+32}:{FR+4*ks+35}], v8 offset:{R[0]+2048*(ks+8)}")
    WF = [96 + 4 * k for k in range(24)] + [32 + 4 * k for k in range(8)]
    for h in range(32):
        a(f"ds_read_b64_tr_b16 v[{WF[h]}:{WF[h]+1}], v7 offset:{2048*h}")
        a(f"ds_read_b64_tr_b16 v[{WF[h]+2}:{WF[h]+3}], v7 offset:{2048*h+1024}")
    for c in range(4):
        a("s_barrier")
        if c == 0: a(f"buffer_load_dword v24, v5, {W}, s11 offen sc1")
        for h in range(8): a(f"ds_read_b128 v[{FR+32*(c&1)+4*h}:{FR+32*(c&1)+4*h+3}], v6 offset:{16384*c+4096*(h>>1)+256*(h&1)}")
        for h in range(8):
            a(f"s_waitcnt lgkmcnt({7-h})")
            a(f"{MF} {ab}, {vr(WF[8*c+h],4)}, {vr(FR+32*(c&1)+4*h,4)}, {'0' if c + h == 0 else ab}")
    a("s_waitcnt vmcnt(0)")
    a.nop(11)
    for i in range(16):
        a(f"v_sub_f32 v{AY+i}, v{AY+i}, v{AB+i}")
        a(f"v_fmac_f32 v{AB+i}, v{AY+i}, v24")
    for i in range(8): a(f"v_cvt_pk_bf16_f32 v{FR+i}, v{AB+2*i}, v{AB+2*i+1}")
    a(f"buffer_store_dwordx4 v[{FR}:{FR+3}], v25, s[{sOUT}:{sOUT+3}], s15 offen")
    a(f"buffer_store_dwordx4 v[{FR+4}:{FR+7}], v25, s[{sOUT}:{sOUT+3}], s15 offen offset:16")
    stamp_out(a, 0)
    a("s_endpgm")
    a.label("att_fb")
    a("s_cmp_lg_u32 s15, 0\ns_cbranch_scc1 att_fin\ns_mov_b32 s15, 1\ns_mov_b32 s14, 0xff800000")
    def fbtile(j, mask):
        a(f"ds_read_b128 {vr(KRG,4)}, v{AK} offset:{4096*j}\ns_waitcnt lgkmcnt(0)")
        a(f"{MF} {vr(SA,16)}, {vr(KRG,4)}, {q}, 0")
        a.nop(12)
        if mask == 8:
            for i in range(16): a(f"v_bfi_b32 v{SA+i}, v{TM+i}, s14, v{SA+i}")
        if mask == 0:
            for i in range(16): a(f"v_bfi_b32 v{SA+i}, v{TM+i}, v{SA+i}, s14")
        for i in range(8): a(f"v_max3_f32 v{m}, v{m}, v{SA+2*i}, v{SA+2*i+1}")
    fbtile(8, 8)
    for n in range(8):
        a(f"s_cmp_eq_u32 s61, {n+1}\ns_cbranch_scc1 att_fb2")
        fbtile(7 - n, 0 if n == 7 else None)
    a.label("att_fb2")
    a(f"v_mov_b32 v4, v{m}\ns_nop 1\nv_permlane32_swap_b32 v4, v{m}\ns_nop 0\nv_max_f32 v{m}, v4, v{m}\ns_branch att_retry")

def desc(name, nv):
    return f""".p2align 6
.amdhsa_kernel {name}
  .amdhsa_next_free_vgpr {nv}
  .amdhsa_next_free_sgpr 102
  .amdhsa_accum_offset {(nv+3)//4*4}
  .amdhsa_group_segment_fixed_size 0
  .amdhsa_kernarg_size 96
  .amdhsa_user_sgpr_count 2
  .amdhsa_user_sgpr_kernarg_segment_ptr 1
  .amdhsa_system_sgpr_workgroup_id_x 1
.end_amdhsa_kernel
"""

a = Asm()
ka(a)
for m in check_hazards(a.lines): print("HAZARD", m, file=sys.stderr)
hdr = "; gated mix of FNet spectral mixing and sliding-window attention; generated by dev/gen4.py\n"
hdr += "; @launch grid=(256,1,1) block=(512,1,1) lds=163840\n"
hdr += f'.amdgcn_target "amdgcn-amd-amdhsa--gfx950"\n.text\n.globl {NAME}\n.type {NAME},@function\n'
out = hdr + a.text() + '.section .rodata,"a"\n' + desc(NAME, 256)
fn = [x for x in sys.argv[1:] if not x.startswith("--")][0]
open(fn, "w").write(out)
```

```python
import sys, math
from asmlib import *

def opt(name, default=None):
    for x in sys.argv:
        if x == "--" + name: return True
        if x.startswith("--" + name + "="): return x.split("=", 1)[1]
    return default
STAMP = opt("stamp", False)
STAG = int(opt("stag", 6))
PSLEEP = int(opt("psleep", 2))
FORCEFB = opt("forcefb", False)
KVB, TF, OF, GF, FL1, FL2, FL3 = 0x000000, 0x400000, 0x700000, 0xA00000, 0xA80000, 0xB00000, 0xB80000
STF = 0xC00000
WS_BYTES = 0x1000000
TP = 4224
OP = 131072 + 1024
MF = "v_mfma_f32_32x32x16_bf16"
MF16 = "v_mfma_f32_16x16x32_bf16"
QSCALE = 0.25 * math.log2(math.e)
sX, sW, sWS, sG, sDB, sOUT = 40, 44, 48, 52, 56, 68
NAME = 'gated_mix__spectral_fnet__sliding_block__prompt_kernel'
W = f"s[{sWS}:{sWS+3}]"
R = [32768 * i for i in range(5)]
L_KV, L_QB, L_ZX, L_OS = R[1], R[2] + 16384, R[2] + 20480, R[0] + 16384

def srd(a, d, ptr, nbytes):
    a(f"s_mov_b32 s{d}, s{ptr}\ns_mov_b32 s{d+1}, s{ptr+1}\ns_mov_b32 s{d+2}, {nbytes}\ns_mov_b32 s{d+3}, 0x00020000")

def entry(a, name):
    a(f".p2align 12\n{name}:")
    stamp(a, 0)
    a("s_load_dwordx16 s[16:31], s[0:1], 0")
    a("s_load_dwordx8 s[32:39], s[0:1], 64")
    a(f"s_cmp_ge_u32 s2, 256\ns_cbranch_scc1 {name}_end")
    a("v_lshrrev_b32 v1, 6, v0\nv_and_b32 v0, 63, v0\nv_readfirstlane_b32 s3, v1")

def stamp(a, i):
    if STAMP: a(f"s_memrealtime s[{80+2*i}:{81+2*i}]")

def stamp_out(a, kidx):
    if not STAMP: return
    a("s_memrealtime s[96:97]\ns_waitcnt vmcnt(0) lgkmcnt(0)\ns_memrealtime s[98:99]\ns_waitcnt lgkmcnt(0)")
    a(f"s_lshl_b32 s78, s2, 3\ns_add_u32 s78, s78, s3\ns_lshl_b32 s78, s78, 7\ns_add_u32 s78, s78, {STF + kidx * 262144}")
    a("s_mov_b64 exec, 1")
    for i in range(20): a(f"v_mov_b32 v{4+i}, s{80+i}")
    a("v_mov_b32 v2, s78")
    for i in range(5): a(f"buffer_store_dwordx4 v[{4+4*i}:{7+4*i}], v2, {W}, 0 offen offset:{16*i}")

QA, QB = 20, 24
TM, PM, VB, KRG, SA, SB, SC_, CN, P, O = 192, 208, 216, 144, 64, 80, 128, 112, 32, 128
GX = 248
FREG = [160 + 4 * k for k in range(8)] + [96 + 4 * k for k in range(4)] + [48 + 4 * k for k in range(4)]
AK, AV, AO, AR = 8, 9, 10, 11
NONCE = 16

def att_setup(a):
    a("""v_and_b32 v2, 31, v0
    v_lshrrev_b32 v3, 5, v0
    v_lshlrev_b32 v4, v2, -2
    v_lshlrev_b32 v5, 2, v3
    v_lshrrev_b32 v4, v5, v4
    s_mov_b32 s13, 0xffff""")
    for r in range(16): a(f"v_bfe_i32 v{TM+r}, v4, {(r & 3) + 8 * (r >> 2)}, 1")
    for p in range(8): a(f"v_bfi_b32 v{PM+p}, s13, v{TM+2*p}, v{TM+2*p+1}")
    a(f"v_mov_b32 v{VB}, 0x3f803f80\nv_mov_b32 v{VB+1}, v{VB}")
    for i in range(2, 32, 2): a(f"v_mov_b64 v[{VB+i}:{VB+i+1}], v[{VB}:{VB+1}]")
    a(f"""s_and_b32 s9, s3, 3
    s_lshr_b32 s10, s3, 2
    s_lshl_b32 s11, s9, 12
    s_add_u32 s11, s11, {L_KV}
    s_lshl_b32 s12, s10, 10
    s_add_u32 s12, s12, s11
    v_lshlrev_b32 v4, 4, v0
    v_add_u32 v{AK}, s12, v4
    s_lshl_b32 s12, s10, 8
    s_add_u32 s12, s12, s11
    v_add_u32 v{AV}, s12, v4
    v_and_b32 v5, 15, v0
    v_mul_u32_u24 v5, 528, v5
    s_and_b32 s12, s4, 1
    v_xor_b32 v6, s12, v3
    v_lshl_add_u32 v5, v6, 7, v5
    v_bfe_u32 v6, v0, 4, 1
    v_lshl_add_u32 v5, v6, 4, v5
    s_lshl_b32 s12, s10, 8
    s_lshl_b32 s11, s9, 5
    s_add_u32 s12, s12, s11
    s_add_u32 s12, s12, {L_OS}
    v_add_u32 v{AO}, s12, v5
    s_mul_i32 s12, s3, 1056
    s_add_u32 s12, s12, {L_OS}
    v_mul_u32_u24 v5, 528, v3
    v_lshl_add_u32 v5, v2, 4, v5
    v_add_u32 v{AR}, s12, v5
    v_mul_u32_u24 v5, {OP}, v3
    v_lshl_add_u32 v12, v2, 4, v5""")
    a(f"""s_lshl_b32 s61, s4, 2
    s_add_u32 s61, s61, s9
    s_add_u32 s61, s61, 1
    s_min_u32 s61, s61, 9
    s_mul_i32 s62, s3, {2*OP}
    s_lshr_b32 s11, s4, 3
    s_lshl_b32 s11, s11, 16
    s_add_u32 s62, s62, s11
    s_lshl_b32 s11, s7, 12
    s_add_u32 s62, s62, s11
    s_and_b32 s11, s4, 7
    s_lshl_b32 s11, s11, 9
    s_add_u32 s62, s62, s11
    s_add_u32 s62, s62, {OF}""")
    a("""s_and_b32 s72, s2, 7
    s_lshl_b32 s72, s72, 1
    s_bfe_u32 s11, s2, 0x10003
    s_add_u32 s72, s72, s11
    s_bfe_u32 s73, s2, 0x10004
    s_lshr_b32 s74, s2, 5
    s_mov_b32 s75, 0
    v_lshlrev_b32 v14, 4, v0
    v_lshrrev_b32 v4, 3, v0
    v_lshlrev_b32 v4, 10, v4
    v_bfe_u32 v5, v0, 2, 1
    v_bfe_u32 v6, v0, 4, 1
    v_xor_b32 v5, v5, v6
    v_lshl_add_u32 v4, v5, 6, v4
    v_and_b32 v5, 3, v0
    v_lshl_add_u32 v4, v5, 4, v4
    s_lshl_b32 s11, s3, 16
    s_lshl_b32 s12, s74, 7
    s_add_u32 s11, s11, s12
    v_add_u32 v13, s11, v4""")
    srd(a, sW, 30, 512 * 512 * 2)

L_CNT = R[2] + 32512
def signal(a, k):
    a(f"s_mov_b64 exec, 1\nds_add_u32 v{CA}, v{CA+1} offset:{4*k}\ns_mov_b64 exec, -1")
_wn = [0]
def waitcnt_lds(a, k, n):
    _wn[0] += 1; t = f"lw{_wn[0]}"
    a(f"{t}:\nds_read_b32 v{CA+2}, v{CA} offset:{4*k}\ns_waitcnt lgkmcnt(0)\nv_readfirstlane_b32 s78, v{CA+2}\ns_cmp_lt_u32 s78, {n}\ns_cbranch_scc1 {t}")
CA = 28

def get_nonce(a, tag, NONCE=None):
    NONCE = NONCE or (127 if tag == "ln" else 16)
    a("s_mov_b32 s15, 0")
    a(f"{tag}_n0:\nv_readfirstlane_b32 s63, v{NONCE}\ns_add_u32 s15, s15, 1\ns_cmp_lg_u32 s63, 0\ns_cbranch_scc1 {tag}_n1")
    a(f"s_cmp_gt_u32 s15, 0x40000\ns_cbranch_scc1 {tag}_n1\ns_sleep 2\nbuffer_load_dword v{NONCE}, off, s[{sDB}:{sDB+3}], 0 sc1\ns_waitcnt vmcnt(0)\ns_branch {tag}_n0")
    a(f"{tag}_n1:")

def ka(a):
    N = NAME
    entry(a, N)
    a("""s_and_b32 s8, s2, 7
    s_lshr_b32 s9, s2, 3
    s_lshr_b32 s10, s8, 1
    s_and_b32 s11, s8, 1
    s_lshl_b32 s4, s10, 2
    s_and_b32 s12, s9, 3
    s_add_u32 s4, s4, s12
    s_lshl_b32 s5, s11, 2
    s_bfe_u32 s13, s9, 0x20002
    s_add_u32 s5, s5, s13
    s_lshr_b32 s6, s9, 4
    s_lshl_b32 s7, s5, 1
    s_add_u32 s7, s7, s6""")
    a("s_and_b32 s60, s3, 3")
    if STAG == 1: a("s_lshr_b32 s66, s9, 2\ns_lshl_b32 s13, s12, 1\ns_add_u32 s66, s66, s13")
    elif STAG == 0: a("s_mov_b32 s66, 0")
    else:
        XM = {2: (1, 1), 3: (1, 2), 4: (3, 1), 5: (1, 0), 6: (3, 0)}[STAG]
        a(f"s_lshr_b32 s66, s9, 2\ns_add_u32 s66, s66, s12\ns_and_b32 s66, s66, {XM[0]}\ns_lshl_b32 s66, s66, {XM[1]}")
    a("s_lshl_b32 s64, s8, 2\ns_add_u32 s64, s64, s12\ns_lshr_b32 s65, s9, 2")
    XV, WV, QV, AXV, AA, WG, FP, ACC, XF, PK, ZB = 96, 100, 102, 104, 112, 128, 48, 64, 16, 32, 96
    global CA
    CA = 124
    a(f"""v_lshrrev_b32 v1, 3, v0
    v_and_b32 v2, 7, v0
    v_lshrrev_b32 v3, 4, v0
    v_xor_b32 v2, v2, v3
    v_lshlrev_b32 v2, 4, v2
    s_lshl_b32 s8, s4, 17
    s_lshl_b32 s10, s60, 15
    s_add_u32 s8, s8, s10
    v_lshl_add_u32 v5, v1, 10, v2
    v_add_u32 v{XV}, s8, v5
    v_add_u32 v{XV+1}, 7168, v{XV}
    v_xor_b32 v{XV+1}, 64, v{XV+1}
    v_add_u32 v{XV+2}, 14336, v{XV}
    v_add_u32 v{XV+3}, 14336, v{XV+1}
    v_mul_u32_u24 v5, 3072, v1
    v_bfe_u32 v6, v0, 2, 1
    v_and_b32 v7, 1, v3
    v_xor_b32 v6, v6, v7
    v_lshl_add_u32 v5, v6, 6, v5
    v_and_b32 v7, 3, v0
    v_lshl_add_u32 v5, v7, 4, v5
    s_mul_i32 s8, s60, 49152
    s_lshl_b32 s10, s6, 10
    s_add_u32 s10, s10, s8
    s_lshl_b32 s11, s5, 7
    s_add_u32 s10, s10, s11
    s_add_u32 s10, s10, 1024
    v_add_u32 v{WV}, s10, v5
    v_add_u32 v{WV+1}, 23552, v{WV}
    s_lshl_b32 s14, s60, 12
    s_lshl_b32 s67, s60, 11
    s_waitcnt lgkmcnt(0)""")
    srd(a, sX, 16, 2048 * 512 * 2)
    srd(a, sW, 28, 512 * 1536 * 2)
    SX = f"s[{sX}:{sX+3}]"; SW = f"s[{sW}:{sW+3}]"
    def chunk_idx(n):
        if STAG == 1: a(f"s_add_u32 s9, s66, {n}\ns_and_b32 s9, s9, 7")
        else: a(f"s_xor_b32 s9, s66, {n}")
    pieces = []
    PER = int(opt("per", 1))
    def dma(x):
        a(x)
        for _ in range(PER):
            if pieces: a(pieces.pop(0))
    def issue(u):
        reg = R[u % 5]
        if u < 8:
            chunk_idx(u)
            a(f"s_add_u32 m0, s14, {reg}\ns_lshl_b32 s10, s9, 7\ns_mul_i32 s11, s9, 196608")
            for i in range(4): dma(f"buffer_load_dwordx4 v{XV+i}, {SX}, s10 offen offset:{1024*i} lds")
            a(f"s_add_u32 m0, s67, {reg+16384}\ns_nop 0")
            for i in range(2): dma(f"buffer_load_dwordx4 v{WV+i}, {SW}, s11 offen offset:{1024*i} lds")
            return 6
        if u == 8:
            a(f"s_lshr_b32 s12, s67, 1")
            for n in range(8):
                chunk_idx(n)
                a(f"s_add_u32 m0, s12, {reg+4096*n}\ns_mul_i32 s11, s9, 196608")
                dma(f"buffer_load_dwordx4 v{QV}, {SW}, s11 offen lds")
            return 8
        a(f"s_lshl_b32 s12, s14, 1\ns_movk_i32 s10, {512*(u-9)}")
        for i in range(8):
            if i % 4 == 0: a(f"s_add_u32 m0, s12, {reg+1024*i}\ns_nop 0")
            dma(f"buffer_load_dwordx4 v{AXV+i}, {SX}, s10 offen offset:{1024*(i%4)} lds")
        return 8
    NGU = int(opt("ng", 2))
    a(f"s_cmp_ge_u32 s3, 4\ns_cbranch_scc1 {N}_L")
    for u in range(NGU): issue(u)
    a(f"s_branch {N}_comp")
    a.label(f"{N}_L")
    def late_setup():
        a(f"""v_lshrrev_b32 v5, 2, v0
        v_mul_u32_u24 v5, 3072, v5
        v_lshl_add_u32 v5, v7, 4, v5
        s_lshl_b32 s10, s7, 6
        s_add_u32 s10, s10, s8
        v_add_u32 v{QV}, s10, v5""")
        a(f"""v_and_b32 v1, 31, v0
        v_lshrrev_b32 v2, 5, v0
        v_xor_b32 v5, v1, v2
        v_lshlrev_b32 v5, 4, v5
        v_lshl_add_u32 v5, v2, 17, v5
        s_lshl_b32 s10, s64, 2
        s_add_u32 s10, s10, s60
        s_lshl_b32 s10, s10, 10
        v_add_u32 v5, s10, v5""")
        for n in range(8):
            a(f"v_xor_b32 v{AXV+n}, {32*n}, v5")
            if n: a(f"v_add_u32 v{AXV+n}, {n*2*131072-1024*(n%4)}, v{AXV+n}")
        a(f"""v_and_b32 v5, 15, v0
        v_xor_b32 v5, v5, v2
        v_lshlrev_b32 v5, 4, v5
        v_lshl_add_u32 v5, v1, 9, v5
        s_lshr_b32 s10, s60, 1
        s_lshl_b32 s10, s10, 14
        s_add_u32 s10, s10, {R[4]}
        v_add_u32 v{AA}, s10, v5""")
        for ks in range(1, 8): a(f"v_xor_b32 v{AA+ks}, {32*ks}, v{AA}")
        a(f"v_mov_b32 v{CA}, {L_CNT}\nv_mov_b32 v{CA+1}, 1")
        a("""s_lshl_b32 s10, s65, 5
        v_add_u32 v5, s10, v1
        s_and_b32 s11, s60, 1
        v_lshlrev_b32 v15, 31, v5
        v_or_b32 v15, 1.0, v15
        v_sub_u32 v6, v5, s11
        v_ashrrev_i32 v6, 31, v6
        v_and_b32 v7, 256, v6
        v_or_b32 v5, v5, v7
        v_cvt_f32_u32 v13, v5
        v_mul_f32 v13, 0x3b000000, v13
        s_mul_i32 s11, s11, 0x3e800000
        v_not_b32 v6, v6
        v_and_b32 v14, s11, v6
        v_cvt_f32_u32 v5, v2
        v_mul_f32 v5, 0x41000000, v5
        v_fmac_f32 v14, v5, v13""")
    def gen_pieces():
        a("""s_lshr_b32 s9, s60, 1
        s_lshl_b32 s9, s9, 3
        v_bfe_u32 v120, v0, 1, 3
        v_add_u32 v120, s9, v120
        v_cvt_f32_u32 v120, v120
        v_and_b32 v121, 1, v0
        v_lshrrev_b32 v6, 5, v0
        v_sub_u32 v121, v121, v6
        v_cvt_f32_i32 v121, v121
        v_mul_f32 v121, 0x3e800000, v121
        v_bfe_u32 v6, v0, 4, 1
        v_lshlrev_b32 v6, 9, v6
        s_lshl_b32 s9, s64, 2
        v_add_u32 v6, s9, v6
        v_cvt_f32_u32 v6, v6
        v_mul_f32 v122, 0x3a000000, v120
        v_fmac_f32 v121, v6, v122
        v_mul_f32 v120, 0x3d800000, v120""")
        a("v_mul_f32 v123, 0x41800000, v13\nv_cos_f32 v123, v123\ns_nop 0\nv_add_f32 v123, v123, v123")
        for ks in range(16):
            r = 16 + 8 * (ks & 1); o_ = 16 + 8 * (1 - (ks & 1))
            for p in range(4):
                x, y = r + 2 * p, r + 2 * p + 1
                if ks < 2:
                    pieces.append(f"v_fmamk_f32 v{x}, v13, {fhex(float(16*ks+2*p))}, v14\nv_add_f32 v{y}, v{x}, v13\nv_cos_f32 v{x}, v{x}\nv_cos_f32 v{y}, v{y}\ns_nop 0\nv_cvt_pk_bf16_f32 v{WG+4*ks+p}, v{x}, v{y}")
                else:
                    pieces.append(f"v_fma_f32 v{x}, v123, v{o_+2*p}, -v{x}\nv_fma_f32 v{y}, v123, v{o_+2*p+1}, -v{y}\nv_cvt_pk_bf16_f32 v{WG+4*ks+p}, v{x}, v{y}")
        for u in range(4):
            for p in range(4):
                c0 = (2 * p & 3) + 8 * (p >> 1)
                pre = "v_add_f32 v121, v121, v122\n" if (u and p == 0) else ""
                pieces.append(pre + f"v_fmamk_f32 v4, v120, {fhex(float(c0))}, v121\nv_add_f32 v5, v4, v120\nv_cos_f32 v4, v4\nv_cos_f32 v5, v5\ns_nop 0\nv_cvt_pk_bf16_f32 v{FP+4*u+p}, v4, v5")
    def first():
        srd(a, sWS, 38, WS_BYTES)
        srd(a, sDB, 36, 256)
        a(f"s_or_b32 s9, s2, s60\ns_cmp_lg_u32 s9, 0\ns_cbranch_scc1 {N}_nn")
        a(f"v_lshlrev_b32 v4, 8, v0\nv_mov_b32 v5, 0\ns_mov_b32 s9, {FL2}\nbuffer_store_dword v5, v4, {W}, s9 offen sc1")
        a("s_memrealtime s[10:11]\ns_waitcnt vmcnt(0) lgkmcnt(0)\ns_or_b32 s10, s10, 1\nv_mov_b32 v4, s10\ns_mov_b64 exec, 1")
        a(f"buffer_store_dword v4, off, s[{sDB}:{sDB+3}], 0 sc1\ns_mov_b64 exec, -1")
        a.label(f"{N}_nn")
        a(f"s_cmp_ge_u32 s60, 3\ns_cbranch_scc1 {N}_npf")
        a(f"s_getpc_b64 s[10:11]\n{N}_pc:\ns_sub_u32 s10, s10, {N}_pc-{N}\ns_subb_u32 s11, s11, 0\ns_lshl_b32 s9, s60, 13\nv_lshlrev_b32 v4, 7, v0\nv_add_u32 v4, s9, v4")
        a("v_mov_b32 v5, s11\nv_add_co_u32 v4, vcc, s10, v4\ns_nop 1\nv_addc_co_u32 v5, vcc, 0, v5, vcc\nglobal_load_dword v127, v[4:5], off")
        a.label(f"{N}_npf")
    def gw_loads():
        srd(a, sG, 32, 1024)
        a(f"""v_lshlrev_b32 v6, 5, v0
        v_and_b32 v6, 1023, v6
        buffer_load_dwordx4 v[72:75], v6, s[{sG}:{sG+3}], 0 offen
        buffer_load_dwordx4 v[76:79], v6, s[{sG}:{sG+3}], 0 offen offset:16""")
    def gate_loads():
        a(f"""s_lshl_b32 s76, s4, 7
        s_lshl_b32 s9, s7, 3
        s_add_u32 s76, s76, s9
        s_lshl_b32 s9, s60, 1
        s_add_u32 s76, s76, s9
        s_lshl_b32 s9, s76, 10
        v_lshlrev_b32 v6, 5, v0
        buffer_load_dwordx4 v[64:67], v6, {SX}, s9 offen
        buffer_load_dwordx4 v[68:71], v6, {SX}, s9 offen offset:16""")
    def gate_comp():
        a("s_waitcnt vmcnt(9)")
        a("v_mov_b32 v5, 0")
        for i in range(8): a(f"v_dot2c_f32_bf16 v5, v{64+i}, v{72+i}")
        a("v_lshrrev_b32 v6, 5, v0\nv_add_u32 v6, s76, v6\nv_and_b32 v7, 15, v6")
        a("v_add_f32_dpp v5, v5, v5 quad_perm:[1,0,3,2] row_mask:0xf bank_mask:0xf")
        a("v_lshrrev_b32 v6, 4, v6\nv_lshlrev_b32 v7, 9, v7")
        a("v_add_f32_dpp v5, v5, v5 quad_perm:[2,3,0,1] row_mask:0xf bank_mask:0xf")
        a("v_lshl_add_u32 v6, v6, 2, v7\ns_nop 0")
        a("v_add_f32_dpp v5, v5, v5 row_half_mirror row_mask:0xf bank_mask:0xf\ns_nop 1")
        a("v_add_f32_dpp v5, v5, v5 row_mirror row_mask:0xf bank_mask:0xf\ns_nop 1")
        a("v_add_f32_dpp v5, v5, v5 row_bcast:15 row_mask:0xa bank_mask:0xf")
        a(f"v_mul_f32 v5, {fhex(-math.log2(math.e))}, v5\nv_exp_f32 v5, v5\ns_nop 0\nv_add_f32 v5, 1.0, v5\nv_rcp_f32 v5, v5")
        a("s_mov_b32 exec_lo, 0x80000000\ns_mov_b32 exec_hi, 0x80000000")
        a(f"s_mov_b32 s76, {GF}\nbuffer_store_dword v5, v6, {W}, s76 offen sc1\ns_mov_b64 exec, -1")
    def flush(k):
        for _ in range(k):
            if pieces: a(pieces.pop(0))
    WORK = {0: [first, gw_loads, late_setup, gen_pieces, lambda: flush(int(opt("pre", 24)))], 9: [lambda: flush(1000), lambda: a(f"buffer_load_dword v127, off, s[{sDB}:{sDB+3}], 0 sc1"), lambda: att_setup(a), gate_comp]}
    SCHED = eval(opt("sched", "[[],[2,3],[4],[5],[6],[7],[],[8],[9],[10]]"))
    cnt = {}; issued = []
    for n in range(10):
        if n == 9: gate_loads()
        for u in SCHED[n]:
            assert u < 5 or u - 5 <= n - 3, (u, n)
            cnt[u] = issue(u); issued.append(u)
        for f in WORK.get(n, []): f()
        younger = sum(cnt[u] for u in issued if u > n) if n < 9 else 10
        if n >= NGU: a(f"s_waitcnt vmcnt({younger})")
        if n < 8: a("s_barrier")
        else: signal(a, (0, 5)[n - 8])
        if n == 7: stamp(a, 2)
        if n == 8: stamp(a, 3)
    a(f"s_lshl_b32 s77, s64, 3\ns_add_u32 s77, s77, s65\ns_lshl_b32 s77, s77, 8\ns_lshl_b32 s9, s60, 2\ns_add_u32 s77, s77, s9\ns_add_u32 s77, s77, {FL3}")
    def ard(s):
        F = XF + 4 * (s & 7)
        a(f"ds_read_b128 v[{F}:{F+3}], v{AA+(s&7)} offset:{256*((s>>3)&1)}")
        if 8 <= s < 16: a(f"v_subrev_u32 v{AA+(s&7)}, {R[4]-R[0]}, v{AA+(s&7)}")
    for half in range(2):
        if half == 0: waitcnt_lds(a, 5, 4)
        else:
            a("s_waitcnt vmcnt(1)")
            signal(a, 1)
            get_nonce(a, "ln")
            waitcnt_lds(a, 1, 4)
            stamp(a, 4)
        b = 16 * half
        for s in range(b, b + 6): ard(s)
        for s in range(b, b + 16):
            a(f"s_waitcnt lgkmcnt({min(5, b+15-s)})")
            c = vr(ACC + 16 * (s >> 4), 16)
            a(f"{MF} {c}, {vr(XF+4*(s&7),4)}, {vr(WG+4*(s&15),4)}, {'0' if (s & 15) == 0 else c}")
            if s + 6 < b + 16: ard(s + 6)
    a(f"""s_and_b32 s9, s60, 1
    s_lshl_b32 s9, s9, 12
    s_lshr_b32 s10, s60, 1
    s_lshl_b32 s11, s10, 11
    s_add_u32 s9, s9, s11
    s_add_u32 s9, s9, {L_ZX}
    v_lshlrev_b32 v1, 4, v0
    v_add_u32 v2, s9, v1
    v_lshrrev_b32 v4, 5, v0
    v_lshlrev_b32 v3, 12, v4
    v_bfe_u32 v5, v0, 4, 1
    v_lshl_add_u32 v3, v5, 9, v3
    v_and_b32 v6, 15, v0
    v_lshl_add_u32 v3, v6, 4, v3""")
    for i in range(16): a(f"v_fmac_f32 v{ACC+i}, v{ACC+16+i}, v15")
    for i in range(8): a(f"v_cvt_pk_bf16_f32 v{PK+i}, v{ACC+2*i}, v{ACC+2*i+1}")
    waitcnt_lds(a, 0, 8)
    a(f"ds_write_b128 v2, v[{PK}:{PK+3}]\nds_write_b128 v2, v[{PK+4}:{PK+7}] offset:1024")
    signal(a, 2)
    a(f"""s_and_b32 s9, s60, 1
    s_lshl_b32 s9, s9, 8
    s_add_u32 s11, s9, {L_ZX}
    v_add_u32 v3, s11, v3
    v_lshrrev_b32 v4, 4, v0
    v_mul_u32_u24 v4, {2*32*TP}, v4
    v_lshl_add_u32 v5, v6, 4, v4
    s_lshl_b32 s11, s65, 9
    s_add_u32 s9, s9, s11
    v_add_u32 v5, s9, v5
    s_mul_i32 s10, s10, {8*32*TP}
    s_mul_i32 s11, s64, {TP}
    s_add_u32 s10, s10, s11
    s_add_u32 s10, s10, {TF}
    s_add_u32 s11, s10, {32*TP}
    s_lshl_b32 s12, s60, 10
    s_add_u32 s12, s12, {L_QB}
    v_add_u32 v1, s12, v1""")
    waitcnt_lds(a, 2, 4)
    def step1():
        for u in range(4): a(f"{MF16} {vr(ACC+4*u,4)}, {vr(FP+4*u,4)}, {vr(ZB+4*u,4)}, 0")
        a.nop(5)
        for r2 in range(2):
            for u in range(4): a(f"v_cvt_pk_bf16_f32 v{PK+4*r2+u}, v{ACC+4*u+2*r2}, v{ACC+4*u+2*r2+1}")
    a(f"s_cmp_lg_u32 s9, 0\ns_cbranch_scc1 {N}_nsp")
    for u in range(4): a(f"ds_read_b128 v[{ZB+4*u}:{ZB+4*u+3}], v3 offset:{4096+1024*u}")
    a("s_waitcnt lgkmcnt(0)\ns_mov_b32 exec_lo, 0")
    for i in range(0, 16, 2): a(f"v_mov_b64 v[{ZB+i}:{ZB+i+1}], 0")
    a("s_mov_b64 exec, -1\nv_add_u32 v6, 4096, v4")
    step1()
    a("s_mov_b32 exec_lo, 0x00010001\ns_mov_b32 exec_hi, 0x00010001")
    a(f"buffer_store_dwordx4 v[{PK}:{PK+3}], v6, {W}, s10 offen sc1\nbuffer_store_dwordx4 v[{PK+4}:{PK+7}], v6, {W}, s11 offen sc1")
    a("s_mov_b32 exec_lo, -1\ns_mov_b32 exec_hi, 0xfffefffe")
    a.label(f"{N}_nsp")
    for u in range(4): a(f"ds_read_b128 v[{ZB+4*u}:{ZB+4*u+3}], v3 offset:{1024*u}")
    a("s_waitcnt lgkmcnt(0)\ns_mov_b64 exec, -1")
    step1()
    a(f"buffer_store_dwordx4 v[{PK}:{PK+3}], v5, {W}, s10 offen sc1\nbuffer_store_dwordx4 v[{PK+4}:{PK+7}], v5, {W}, s11 offen sc1")
    a(f"v_mov_b32 v28, {L_CNT}")
    CA = 28
    for i in range(0, 16, 2): a(f"v_mov_b64 v[{CN+i}:{CN+i+1}], 0")
    waitcnt_lds(a, 3, 4)
    a(f"ds_read_b128 v[{QA}:{QA+3}], v1")
    a("s_branch att_body2")
    a.label(f"{N}_end")
    a("s_endpgm")

    XR, WR, ACC, PK = 128, 96, 64, 32
    XA, WA = 8, 12
    CA = 28
    a(".p2align 8")
    a.label(f"{N}_comp")
    a(f"""v_and_b32 v1, 31, v0
    v_lshrrev_b32 v2, 5, v0
    v_bfe_u32 v3, v0, 1, 3
    v_xor_b32 v3, v3, v2
    v_lshlrev_b32 v3, 4, v3
    v_lshl_add_u32 v3, v1, 7, v3
    s_lshl_b32 s9, s3, 12
    v_add_u32 v{XA}, s9, v3""")
    for ks in range(1, 4): a(f"v_xor_b32 v{XA+ks}, {32*ks}, v{XA}")
    a(f"""v_bfe_u32 v4, v0, 2, 2
    v_lshl_add_u32 v5, v2, 3, v4
    v_bfe_u32 v6, v0, 4, 1
    v_lshlrev_b32 v6, 5, v6
    v_and_b32 v7, 3, v0
    v_lshl_add_u32 v6, v7, 3, v6
    v_lshl_add_u32 v14, v5, 6, v6
    v_add_u32 v14, {R[3]}, v14
    v_lshl_add_u32 v5, v5, 7, v6
    v_lshrrev_b32 v4, 1, v4
    v_lshl_add_u32 v{WA}, v4, 6, v5
    v_xor_b32 v{WA+1}, 64, v{WA}""")
    a(f"v_mov_b32 v{CA}, {L_CNT}\nv_mov_b32 v{CA+1}, 1\nv_mov_b64 v[4:5], 0\nv_mov_b64 v[6:7], 0\nds_write_b128 v{CA}, v[4:7]\nds_write_b128 v{CA}, v[4:7] offset:16")
    a("s_waitcnt lgkmcnt(0)")
    srd(a, sWS, 38, WS_BYTES)
    srd(a, sDB, 36, 256)
    a(f"""s_lshl_b32 s8, s5, 7
    s_lshl_b32 s9, s4, 2
    s_add_u32 s8, s8, s9
    s_add_u32 s8, s8, s3
    s_lshl_b32 s8, s8, 12
    s_lshl_b32 s9, s6, 11
    s_add_u32 s8, s8, s9
    s_add_u32 s60, s8, 262144
    s_lshl_b32 s77, s4, 4
    s_add_u32 s77, s77, s7
    s_lshl_b32 s77, s77, 2
    s_add_u32 s77, s77, s3
    s_lshl_b32 s77, s77, 8
    s_add_u32 s77, s77, {FL1}
    v_lshlrev_b32 v15, 4, v0""")
    a(f"""s_mul_i32 s66, s3, 3
    s_lshl_b32 s67, s4, 2
    s_add_u32 s66, s66, s67
    s_sub_u32 s66, s66, 8
    v_lshrrev_b32 v4, 1, v0
    v_add_u32 v4, s66, v4
    v_ashrrev_i32 v5, 31, v4
    v_mov_b32 v6, s67
    v_bfi_b32 v4, v5, v6, v4
    v_lshrrev_b32 v5, 2, v4
    v_lshlrev_b32 v5, 6, v5
    v_and_b32 v6, 3, v4
    v_and_b32 v7, 1, v0
    v_lshl_add_u32 v6, v7, 2, v6
    s_lshl_b32 s11, s5, 3
    v_add3_u32 v5, v5, v6, s11
    v_lshlrev_b32 v18, 8, v5""")
    a(f"s_cmp_eq_u32 s6, 1\ns_cbranch_scc1 {N}_V")
    def p1(swap):
        naddr = [XA + i for i in range(4)] + [WA, WA + 1]
        def rds(s):
            ks = s & 3; F = WR + 8 * ks
            o = [f"ds_read_b128 v[{XR+4*s}:{XR+4*s+3}], v{XA+ks}"]
            for nt in range(2):
                for h in range(2): o.append(f"ds_read_b64_tr_b16 v[{F+4*nt+2*h}:{F+4*nt+2*h+1}], v{WA+nt} offset:{16384+2048*ks+512*h}")
            return o
        a(f"s_waitcnt vmcnt({6*(NGU-1)})\ns_barrier")
        stamp(a, 1)
        for x in rds(0) + rds(1): a(x)
        for s in range(32):
            ks = s & 3; c = s >> 2
            a(f"s_waitcnt lgkmcnt({5 if s < 31 else 0})")
            r = rds(s + 2) if s < 30 else []
            for nt in range(2):
                x = vr(XR + 4 * s, 4); w = vr(WR + 8 * ks + 4 * nt, 4); cc = vr(ACC + 16 * nt, 16)
                ci = "0" if s == 0 else cc
                a(f"{MF} {cc}, {w}, {x}, {ci}" if swap else f"{MF} {cc}, {x}, {w}, {ci}")
                if nt == 0 and ks == 2 and c < 7:
                    d = R[(c + 1) % 5] - R[c % 5]
                    for x_ in naddr: a(f"v_add_u32 v{x_}, {d}, v{x_}" if d > 0 else f"v_subrev_u32 v{x_}, {-d}, v{x_}")
                    if c == 5: a(f"buffer_load_dword v{NONCE}, off, s[{sDB}:{sDB+3}], 0 sc1")
                    if c + 1 < NGU: a(f"s_waitcnt vmcnt({6*(NGU-2-c)})")
                    a("s_barrier")
                for x_ in (r[:3] if nt == 0 else r[3:]): a(x_)
    p1(True)
    a(f"s_branch {N}_p1d")
    a.label(f"{N}_V")
    p1(False)
    a.label(f"{N}_p1d")
    stamp(a, 2)
    a("s_waitcnt vmcnt(0)")
    get_nonce(a, "gm")
    a.nop(6)
    for nt in range(2):
        for i in range(8): a(f"v_cvt_pk_bf16_f32 v{PK+8*nt+i}, v{ACC+16*nt+2*i}, v{ACC+16*nt+2*i+1}")
        for h in range(2): a(f"buffer_store_dwordx4 v[{PK+8*nt+4*h}:{PK+8*nt+4*h+3}], v15, {W}, s{(8,60)[nt]} offen offset:{1024*h} sc1")
    signal(a, 0)
    FLAGAT = int(opt("flagat", 8))
    if FLAGAT < 0:
        a(f"s_waitcnt vmcnt(0)\ns_mov_b64 exec, 1\nbuffer_store_dword v{NONCE}, off, {W}, s77 sc1\ns_mov_b64 exec, -1")
        stamp(a, 3)
    waitcnt_lds(a, 0, 8)
    KP = f"v_mov_b32 v19, 0\nbuffer_atomic_add v19, v18, {W}, s76 offen sc0 sc1"
    POLLAT = int(opt("pollat", 31))
    def qrd(s):
        F = WR + 4 * (s & 7)
        for h in range(2): a(f"ds_read_b64_tr_b16 v[{F+2*h}:{F+2*h+1}], v14 offset:{1024*s+256*h}")
    for s in range(6): qrd(s)
    for s in range(32):
        a(f"s_waitcnt lgkmcnt({2*min(5, 31-s)})")
        a(f"{MF} {vr(ACC,16)}, {vr(WR+4*(s&7),4)}, {vr(XR+4*s,4)}, {'0' if s == 0 else vr(ACC,16)}")
        if s + 6 < 32: qrd(s + 6)
        if s == FLAGAT:
            a(f"s_waitcnt vmcnt(0)\ns_mov_b64 exec, 1\nbuffer_store_dword v{NONCE}, off, {W}, s77 sc1\ns_mov_b64 exec, -1")
            stamp(a, 3)
        if s == POLLAT: a(f"s_mov_b32 s76, {FL1}\ns_mov_b64 exec, 63\n{KP}\ns_mov_b64 exec, -1")
    a(f"""s_lshl_b32 s9, s3, 10
    s_add_u32 s9, s9, {L_QB}
    v_add_u32 v4, s9, v15""")
    a.nop(9)
    for i in range(16): a(f"v_mul_f32 v{ACC+i}, {fhex(QSCALE)}, v{ACC+i}")
    for i in range(8): a(f"v_cvt_pk_bf16_f32 v{QA+i}, v{ACC+2*i}, v{ACC+2*i+1}")
    a(f"ds_write_b128 v4, v[{QB}:{QB+3}]")
    a("s_mov_b32 s15, 0\ns_mov_b64 exec, 63")
    a(f"gm_poll:\ns_add_u32 s15, s15, 1\ns_waitcnt vmcnt(0)\nv_cmp_ne_u32 vcc, s63, v19")
    a(f"s_cmp_gt_u32 s15, 0x40000\ns_cbranch_scc1 gm_polled\ns_cbranch_vccz gm_polled\ns_sleep {PSLEEP}")
    a(f"{KP}\ns_branch gm_poll")
    a("gm_polled:\ns_mov_b64 exec, -1")
    stamp(a, 4)
    a(f"s_mul_i32 s12, s3, 12288\ns_lshl_b32 s13, s7, 6")
    for t in range(3):
        a(f"s_add_u32 s11, s66, {t}\ns_cmp_lt_i32 s11, 0\ns_cselect_b32 s11, s67, s11\ns_add_u32 s11, s11, s13\ns_lshl_b32 s11, s11, 12")
        a(f"s_add_u32 m0, s12, {L_KV + 4096*t}\ns_nop 0")
        for i in range(4): a(f"buffer_load_dwordx4 v15, {W}, s11 offen offset:{1024*i} sc1 lds")
    att_setup(a)
    a(f"""s_lshl_b32 s9, s74, 1
    s_lshr_b32 s10, s3, 1
    s_add_u32 s9, s9, s10
    s_sub_u32 s10, 15, s9
    s_min_u32 s10, s10, s9
    v_and_b32 v5, 1, v0
    v_add_u32 v5, s10, v5
    v_and_b32 v5, 7, v5
    v_lshrrev_b32 v6, 1, v0
    v_lshl_add_u32 v5, v6, 3, v5
    v_lshlrev_b32 v18, 8, v5
    s_and_b32 s79, s3, 1
    s_lshl_b32 s79, s79, 15
    s_add_u32 s79, s79, {FL3}""")
    for i in range(0, 16, 2): a(f"v_mov_b64 v[{CN+i}:{CN+i+1}], 0")
    a("s_waitcnt vmcnt(0)")
    signal(a, 3)
    waitcnt_lds(a, 3, 4)

    a.label("att_body2")
    stamp(a, 5)
    q = vr(QA, 4); cn = vr(CN, 16); o = vr(O, 16); m = 3
    kslot = {8: 0, 0: 1}; vslot = {8: 0, 0: 1}
    for n in range(7): kslot[7 - n] = (2 + n) & 3; vslot[7 - n] = (2 + n) & 3
    kf = lambda j: vr(KRG + 4 * kslot[j], 4)
    vf = lambda j, ks: vr(VB + 8 * vslot[j] + 4 * ks, 4)
    def krd(j): a(f"ds_read_b128 {kf(j)}, v{AK} offset:{4096*j}")
    def vrd(js):
        a("s_mov_b64 exec, s[12:13]")
        for j in js:
            for ks in range(2): a(f"ds_read_b128 {vf(j,ks)}, v{AV} offset:{4096*j+2048+1024*ks}")
        a("s_mov_b64 exec, -1")
    def wo_dma():
        a(f"s_add_u32 m0, s75, s8\ns_lshl_b32 s9, s75, 3\nbuffer_load_dwordx4 v13, s[{sW}:{sW+3}], s9 offen lds\ns_add_u32 s75, s75, 1024")
    TPL = f"s_mov_b32 exec_hi, 0\nbuffer_load_dwordx4 v[24:27], v18, {W}, s79 offen sc1\ns_mov_b64 exec, -1"
    TCHK = "s_mov_b32 exec_hi, 0\nv_xor_b32 v24, s63, v24\nv_xor_b32 v25, s63, v25\nv_xor_b32 v26, s63, v26\nv_xor_b32 v27, s63, v27\nv_or3_b32 v24, v24, v25, v26\nv_or_b32 v24, v24, v27\nv_cmp_ne_u32 vcc, 0, v24\ns_mov_b64 exec, -1"
    a(f"""s_mov_b32 s12, 0xffff
    s_mov_b32 s13, 0xffff
    s_mov_b32 s15, 0
    s_lshl_b32 s8, s3, 13
    s_add_u32 s8, s8, {R[3]}""")
    a.label("att_retry")
    for j in (8, 0, 7, 6): krd(j)
    vrd((8, 0, 7))
    a("s_setprio 3")
    a("s_waitcnt lgkmcnt(7)\ns_nop 0")
    a(f"{MF} {vr(SB,16)}, {kf(8)}, {q}, {cn}")
    a(f"{MF} {vr(SC_,16)}, {kf(0)}, {q}, {cn}")
    a(f"{MF} {vr(SA,16)}, {kf(7)}, {q}, {cn}")
    wo_dma()
    a("s_cmp_lg_u32 s61, 9")
    a.nop(5)
    a("s_cbranch_scc1 att_no0a")
    for i in range(16): a(f"v_bfi_b32 v{SB+i}, v{TM+i}, v{SC_+i}, v{SB+i}")
    a.label("att_no0a")
    for i in range(16): a(f"v_exp_f32 v{SB+i}, v{SB+i}")
    for i in range(8): a(f"v_cvt_pk_bf16_f32 v{P+i}, v{SB+2*i}, v{SB+2*i+1}")
    for i in range(8): a(f"v_and_b32 v{P+8+i}, v{PM+i}, v{P+i}")
    for i in range(8): a(f"v_xor_b32 v{P+i}, v{P+8+i}, v{P+i}")
    a("s_waitcnt lgkmcnt(0)\ns_cmp_lg_u32 s61, 9")
    a(f"{MF} {o}, {vf(8,0)}, {vr(P,4)}, 0")
    a(f"{MF} {o}, {vf(8,1)}, {vr(P+4,4)}, {o}")
    a("s_cbranch_scc1 att_no0b")
    a(f"{MF} {o}, {vf(0,0)}, {vr(P+8,4)}, {o}")
    a(f"{MF} {o}, {vf(0,1)}, {vr(P+12,4)}, {o}")
    a.label("att_no0b")
    a("s_cmp_lt_u32 s3, 4\ns_cbranch_scc1 att_nof3")
    a(f"v_mov_b32 v4, s63\ns_waitcnt vmcnt(1)\ns_mov_b64 exec, 1\nbuffer_store_dword v4, off, {W}, s77 sc1\ns_mov_b64 exec, -1")
    a.label("att_nof3")
    a("s_cmp_eq_u32 s61, 1\ns_cbranch_scc1 att_done")
    S = [SA, SB]
    for n in range(7):
        j = 7 - n
        s = S[n & 1]; p = P + 8 * (n & 1)
        if n in (1, 3, 5): a(f"s_setprio {2 - n // 2}")
        if n < 6:
            a(f"{MF} {vr(S[(n+1)&1],16)}, {kf(j-1)}, {q}, {cn}")
            if n < 5: krd(j - 2)
            vrd((j - 1,))
        if n < 3 and opt('wo2'): wo_dma()
        for i in range(8): a(f"v_exp_f32 v{s+i}, v{s+i}")
        for i in range(4): a(f"v_cvt_pk_bf16_f32 v{p+i}, v{s+2*i}, v{s+2*i+1}")
        for i in range(8, 10): a(f"v_exp_f32 v{s+i}, v{s+i}")
        a(f"{MF} {o}, {vf(j,0)}, {vr(p,4)}, {o}")
        if n < 4 or not opt('wo2'): wo_dma()
        for i in range(10, 16): a(f"v_exp_f32 v{s+i}, v{s+i}")
        for i in range(4, 8): a(f"v_cvt_pk_bf16_f32 v{p+i}, v{s+2*i}, v{s+2*i+1}")
        a(f"s_cmp_eq_u32 s61, {n+2}\ns_waitcnt lgkmcnt(0)")
        a(f"{MF} {o}, {vf(j,1)}, {vr(p+4,4)}, {o}")
        if n < 6: a("s_cbranch_scc1 att_done")
    a.label("att_done")
    a(f"ds_read_b32 v30, v28 offset:8\ns_mov_b32 s14, {fhex(0.0 if FORCEFB else 2.0**90)}\nv_mov_b32 v6, 0")
    a(f"""s_lshl_b32 s101, s3, 3
    s_bfe_u32 s9, s4, 0x10003
    s_lshl_b32 s9, s9, 2
    s_add_u32 s101, s101, s9
    s_and_b32 s9, s7, 3
    s_add_u32 s101, s101, s9
    s_lshl_b32 s101, s101, 8
    s_add_u32 s101, s101, {FL2}""")
    a.nop(1)
    a(f"v_rcp_f32 v4, v{O+8}\nv_mov_b32 v7, v{O+8}")
    for i in range(8): a(f"v_fmac_f32 v7, v{O+i}, v6")
    a("v_add_f32 v7, v7, v4\nv_cmp_nge_f32 vcc, s14, v7\ns_cbranch_vccnz att_fb")
    a.label("att_fin")
    for i in range(8): a(f"v_mul_f32 v{O+i}, v{O+i}, v4")
    for i in range(4): a(f"v_cvt_pk_bf16_f32 v{P+i}, v{O+2*i}, v{O+2*i+1}")
    a("s_waitcnt lgkmcnt(0)\nv_readfirstlane_b32 s78, v30\ns_cmp_ge_u32 s78, 4\ns_cbranch_scc1 att_st")
    waitcnt_lds(a, 2, 4)
    a.label("att_st")
    a(f"ds_write_b128 v{AO}, v[{P}:{P+3}]")
    stamp(a, 6)
    a.label("att_wo")
    a("s_cmp_ge_u32 s75, 8192\ns_cbranch_scc1 att_wo2")
    wo_dma()
    a("s_branch att_wo")
    a.label("att_wo2")
    a(f"s_setprio 0\nv_mov_b32 v4, 1\ns_waitcnt vmcnt(0)\ns_cmp_lt_u32 s3, 4\ns_cbranch_scc0 att_nt\n{TPL}\natt_nt:")
    a(f"s_waitcnt lgkmcnt(0)\ns_barrier\nds_read_b128 v[{P}:{P+3}], v{AR}\ns_waitcnt lgkmcnt(0)")
    a(f"buffer_store_dwordx4 v[{P}:{P+3}], v12, {W}, s62 offen sc1")
    def flag2(n): a(f"s_waitcnt vmcnt({n})\ns_mov_b64 exec, 1\nbuffer_atomic_add v4, off, {W}, s101 sc1\ns_mov_b64 exec, -1")
    a("s_cmp_lt_u32 s3, 4\ns_cbranch_scc1 out_comp")
    a(f"""s_sub_u32 s60, s3, 4
    s_lshr_b32 s9, s72, 1
    s_lshl_b32 s9, s9, 3
    s_lshl_b32 s10, s73, 2
    s_add_u32 s9, s9, s10
    s_add_u32 s9, s9, s60
    s_lshl_b32 s9, s9, 8
    s_add_u32 s9, s9, {FL2}
    s_mul_i32 s8, s72, {OP}
    s_lshl_b32 s10, s73, 16
    s_add_u32 s8, s8, s10
    s_lshl_b32 s10, s60, 12
    s_add_u32 s8, s8, s10
    s_add_u32 s8, s8, {OF}
    s_mov_b32 s15, 0""")
    flag2(0)
    a("s_mov_b64 exec, 1")
    PLD = f"buffer_load_dword v6, off, {W}, s9 sc1" if opt("pld") else f"v_mov_b32 v6, 0\nbuffer_atomic_add v6, off, {W}, s9 sc0 sc1"
    a(f"o_poll:\n{PLD}\ns_add_u32 s15, s15, 1\ns_waitcnt vmcnt(0)\nv_cmp_gt_u32 vcc, 32, v6")
    a(f"s_cmp_gt_u32 s15, 0x40000\ns_cbranch_scc1 o_polled\ns_cbranch_vccz o_polled\ns_sleep {int(opt('psleep2', 2))}\ns_branch o_poll")
    a("o_polled:\ns_mov_b64 exec, -1")
    stamp(a, 7)
    def oissue(c):
        a(f"s_add_u32 m0, s10, {R[1] + 16384*c}")
        a("s_add_u32 s8, s8, 16384" if c else "s_nop 0")
        for i in range(4): a(f"buffer_load_dwordx4 v14, {W}, s8 offen offset:{1024*i} sc1 lds")
    for c in range(4): oissue(c)
    for c in range(4): a(f"s_waitcnt vmcnt({12-4*c})\ns_barrier")
    stamp_out(a, 0)
    a("s_endpgm")
    AB, AY, FR = 64, 80, 192
    a.label("out_comp")
    a("s_lshr_b32 s66, s3, 1\ns_and_b32 s67, s3, 1")
    srd(a, sOUT, 34, 2048 * 512 * 2)
    a(f"""v_and_b32 v1, 31, v0
    v_lshrrev_b32 v2, 5, v0
    s_lshl_b32 s9, s67, 5
    s_lshl_b32 s10, s73, 6
    s_add_u32 s9, s9, s10
    v_add_u32 v3, s9, v1
    v_bfe_u32 v9, v0, 3, 2
    v_lshlrev_b32 v6, 9, v9
    v_and_b32 v9, 1, v9
    v_xor_b32 v9, v9, v2
    v_lshl_add_u32 v6, v9, 7, v6
    v_and_b32 v9, 7, v0
    v_lshl_add_u32 v6, v9, 4, v6
    s_lshl_b32 s9, s67, 11
    s_add_u32 s9, s9, {R[1]}
    v_add_u32 v6, s9, v6
    v_bfe_u32 v9, v0, 2, 2
    v_lshl_add_u32 v7, v2, 2, v9
    v_lshlrev_b32 v7, 7, v7
    v_lshrrev_b32 v9, 1, v9
    v_xor_b32 v9, s66, v9
    v_lshl_add_u32 v7, v9, 6, v7
    v_and_b32 v9, 1, v0
    v_lshl_add_u32 v7, v9, 5, v7
    v_bfe_u32 v9, v0, 4, 1
    v_lshl_add_u32 v7, v9, 4, v7
    v_bfe_u32 v9, v0, 1, 1
    v_lshl_add_u32 v7, v9, 3, v7
    v_add_u32 v7, {R[3]}, v7
    v_bfe_u32 v9, v0, 2, 1
    v_lshlrev_b32 v8, 4, v9
    v_and_b32 v9, 3, v0
    v_add_u32 v8, v8, v9
    v_bfe_u32 v9, v0, 3, 2
    v_lshl_add_u32 v8, v9, 2, v8
    s_lshl_b32 s9, s66, 5
    s_lshl_b32 s10, s74, 6
    s_add_u32 s9, s9, s10
    v_add_u32 v8, s9, v8
    v_sub_u32 v9, 512, v8
    s_sub_u32 s12, 16, s72
    s_and_b32 s12, s12, 15
    s_cmp_ge_u32 s74, 4
    s_cselect_b32 s12, s12, s72
    s_cselect_b32 s13, -1, 0
    v_bfi_b32 v8, s13, v9, v8
    v_lshlrev_b32 v8, 4, v8
    v_mul_u32_u24 v9, {TP}, v2
    v_add_u32 v8, v8, v9
    s_lshl_b32 s12, s12, 1
    s_add_u32 s12, s12, s67
    s_mul_i32 s12, s12, {16*TP}
    s_add_u32 s12, s12, {TF}
    s_lshl_b32 s9, s3, 12
    v_add_u32 v29, s9, v14
    v_xor_b32 v30, 4096, v29
    v_lshlrev_b32 v28, 14, v3
    v_lshl_add_u32 v28, v2, 5, v28
    s_lshl_b32 s14, s72, 10
    s_lshl_b32 s10, s74, 7
    s_add_u32 s14, s14, s10
    s_lshl_b32 s10, s66, 6
    s_add_u32 s14, s14, s10
    v_lshlrev_b32 v5, 2, v3
    s_lshl_b32 s11, s72, 9
    s_add_u32 s11, s11, {GF}
    s_mov_b32 s15, 0""")
    ab = vr(AB, 16); ay = vr(AY, 16)
    AZ = 224
    FG0 = len(a.lines)
    a("""s_cmp_eq_u32 s72, 0
    s_cselect_b32 s9, 1, 0
    s_add_u32 s9, s9, 127
    s_lshl_b32 s10, s67, 4
    v_add_u32 v15, s10, v2
    v_cvt_f32_u32 v15, v15
    v_mul_f32 v15, 4.0, v15""")
    for seq in range(2):
        a(f"""v_xor_b32 v13, {32*seq}, v3
        v_sub_u32 v10, s9, v13
        v_and_b32 v10, 127, v10
        v_bfi_b32 v10, s13, v10, v13
        v_cvt_f32_u32 v10, v10
        v_mul_f32 v10, 0x3c000000, v10
        v_mul_f32 v11, v15, v10
        v_mul_f32 v12, 0x41000000, v10
        v_cos_f32 v12, v12
        s_nop 0
        v_add_f32 v12, v12, v12""")
        for k in range(8):
            r = 112 + 8 * (k & 1); o_ = 112 + 8 * (1 - (k & 1))
            for u in range(4):
                x, y = r + 2 * u, r + 2 * u + 1
                if k < 2: a(f"v_fmamk_f32 v13, v10, {fhex(float(8*k+u))}, v11\nv_cos_f32 v{x}, v13\nv_sin_f32 v{y}, v13\ns_nop 0")
                else: a(f"v_fma_f32 v{x}, v12, v{o_+2*u}, -v{x}\nv_fma_f32 v{y}, v12, v{o_+2*u+1}, -v{y}")
                a(f"v_cvt_pk_bf16_f32 v{FREG[8*seq+k]+u}, v{x}, v{y}")
    fgl = a.lines[FG0:]; del a.lines[FG0:]
    FCUT = int(opt("fcut", 100))
    a.lines += fgl[:FCUT]
    flag2(0)
    stamp(a, 7)
    a(f"t_poll:\n{TCHK}")
    a(f"s_add_u32 s15, s15, 1\ns_cmp_gt_u32 s15, 0x40000\ns_cbranch_scc1 t_polled\ns_cbranch_vccz t_polled\ns_sleep {int(opt('psleep3', 8))}\n{TPL}\ns_waitcnt vmcnt(0)\ns_branch t_poll\nt_polled:")
    for k in range(8):
        a(f"buffer_load_dwordx4 v[{FR+4*k}:{FR+4*k+3}], v8, {W}, s12 offen sc1")
        if k < 7: a(f"s_add_u32 s12, s12, {2*TP}")
    a.lines += fgl[FCUT:]
    az = vr(AZ, 16)
    for k in range(8):
        a(f"s_waitcnt vmcnt({7-k})")
        a(f"{MF} {az}, {vr(FR+4*k,4)}, {vr(FREG[8+k],4)}, {'0' if k == 0 else az}")
        a(f"{MF} {ay}, {vr(FR+4*k,4)}, {vr(FREG[k],4)}, {'0' if k == 0 else ay}")
    WF = [96 + 4 * k for k in range(24)] + [32 + 4 * k for k in range(8)]
    for h in range(32):
        a(f"ds_read_b64_tr_b16 v[{WF[h]}:{WF[h]+1}], v7 offset:{2048*h}")
        a(f"ds_read_b64_tr_b16 v[{WF[h]+2}:{WF[h]+3}], v7 offset:{2048*h+1024}")
    for i in range(4): a(f"ds_write_b128 v29, v[{AZ+4*i}:{AZ+4*i+3}] offset:{R[0]+1024*i}")
    a("s_waitcnt lgkmcnt(0)")
    for c in range(4):
        a("s_barrier")
        if c == 0: a(f"buffer_load_dword v24, v5, {W}, s11 offen sc1")
        if c == 1:
            for i in range(4): a(f"ds_read_b128 v[{96+4*i}:{96+4*i+3}], v30 offset:{R[0]+1024*i}")
        if c == 2:
            for i in range(16): a(f"v_add_f32 v{AY+i}, v{AY+i}, v{96+i}")
        for h in range(8): a(f"ds_read_b128 v[{FR+32*(c&1)+4*h}:{FR+32*(c&1)+4*h+3}], v6 offset:{16384*c+4096*(h>>1)+256*(h&1)}")
        for h in range(8):
            a(f"s_waitcnt lgkmcnt({7-h})")
            a(f"{MF} {ab}, {vr(WF[8*c+h],4)}, {vr(FR+32*(c&1)+4*h,4)}, {'0' if c + h == 0 else ab}")
    a("s_waitcnt vmcnt(0)")
    a.nop(11)
    for i in range(16):
        a(f"v_sub_f32 v{AY+i}, v{AY+i}, v{AB+i}")
        a(f"v_fmac_f32 v{AB+i}, v{AY+i}, v24")
    for i in range(8): a(f"v_cvt_pk_bf16_f32 v{FR+i}, v{AB+2*i}, v{AB+2*i+1}")
    a(f"buffer_store_dwordx4 v[{FR}:{FR+3}], v28, s[{sOUT}:{sOUT+3}], s14 offen")
    a(f"buffer_store_dwordx4 v[{FR+4}:{FR+7}], v28, s[{sOUT}:{sOUT+3}], s14 offen offset:16")
    stamp_out(a, 0)
    a("s_endpgm")
    a.label("att_fb")
    a("s_cmp_lg_u32 s15, 0\ns_cbranch_scc1 att_fin\ns_mov_b32 s15, 1\ns_mov_b32 s75, 0\ns_mov_b32 s14, 0xff800000\nv_mov_b32 v3, s14")
    def fbtile(j, mask):
        a(f"ds_read_b128 {vr(KRG,4)}, v{AK} offset:{4096*j}\ns_waitcnt lgkmcnt(0)")
        a(f"{MF} {vr(SA,16)}, {vr(KRG,4)}, {q}, 0")
        a.nop(12)
        if mask == 8:
            for i in range(16): a(f"v_bfi_b32 v{SA+i}, v{TM+i}, s14, v{SA+i}")
        if mask == 0:
            for i in range(16): a(f"v_bfi_b32 v{SA+i}, v{TM+i}, v{SA+i}, s14")
        for i in range(8): a(f"v_max3_f32 v{m}, v{m}, v{SA+2*i}, v{SA+2*i+1}")
    fbtile(8, 8)
    for n in range(8):
        a(f"s_cmp_eq_u32 s61, {n+1}\ns_cbranch_scc1 att_fb2")
        fbtile(7 - n, 0 if n == 7 else None)
    a.label("att_fb2")
    a(f"v_mov_b32 v4, v{m}\ns_nop 1\nv_permlane32_swap_b32 v4, v{m}\ns_nop 0\nv_max_f32 v{m}, v4, v{m}")
    a(f"v_sub_f32 v{CN}, 0, v{m}\nv_sub_f32 v{CN+1}, 0, v{m}")
    for i in range(2, 16, 2): a(f"v_mov_b64 v[{CN+i}:{CN+i+1}], v[{CN}:{CN+1}]")
    a("s_branch att_retry")

def desc(name, nv):
    return f""".p2align 6
.amdhsa_kernel {name}
  .amdhsa_next_free_vgpr {nv}
  .amdhsa_next_free_sgpr 102
  .amdhsa_accum_offset {(nv+3)//4*4}
  .amdhsa_group_segment_fixed_size 0
  .amdhsa_kernarg_size 96
  .amdhsa_user_sgpr_count 2
  .amdhsa_user_sgpr_kernarg_segment_ptr 1
  .amdhsa_system_sgpr_workgroup_id_x 1
.end_amdhsa_kernel
"""

a = Asm()
ka(a)
for m in check_hazards(a.lines): print("HAZARD", m, file=sys.stderr)
hdr = "; gated mix of FNet spectral mixing and sliding-window attention; generated by dev/gen4.py\n"
hdr += "; @launch grid=(256,1,1) block=(512,1,1) lds=163840\n"
hdr += f'.amdgcn_target "amdgcn-amd-amdhsa--gfx950"\n.text\n.globl {NAME}\n.type {NAME},@function\n'
out = hdr + a.text() + '.section .rodata,"a"\n' + desc(NAME, 256)
fn = [x for x in sys.argv[1:] if not x.startswith("--")][0]
open(fn, "w").write(out)
```

```python
import sys, math
from asmlib import *

def opt(name, default=None):
    for x in sys.argv:
        if x == "--" + name: return True
        if x.startswith("--" + name + "="): return x.split("=", 1)[1]
    return default
STAMP = opt("stamp", False)
STAG = int(opt("stag", 4))
PSLEEP = int(opt("psleep", 0))
FORCEFB = opt("forcefb", False)
KVB, TF, OF, GF, FL1, FL2, FL3 = 0x000000, 0x400000, 0x700000, 0xA00000, 0xA80000, 0xB00000, 0xB80000
STF = 0xC00000
WS_BYTES = 0x1000000
TP = 4224
OP = 131072 + 1024
MF = "v_mfma_f32_32x32x16_bf16"
MF16 = "v_mfma_f32_16x16x32_bf16"
QSCALE = 0.25 * math.log2(math.e)
sX, sW, sWS, sG, sDB, sOUT = 40, 44, 48, 52, 56, 68
NAME = 'gated_mix__spectral_fnet__sliding_block__prompt_kernel'
W = f"s[{sWS}:{sWS+3}]"
R = [32768 * i for i in range(5)]
L_KV, L_QB, L_ZX, L_OS = R[1], R[2] + 16384, R[2] + 20480, R[0] + 16384

def srd(a, d, ptr, nbytes):
    a(f"s_mov_b32 s{d}, s{ptr}\ns_mov_b32 s{d+1}, s{ptr+1}\ns_mov_b32 s{d+2}, {nbytes}\ns_mov_b32 s{d+3}, 0x00020000")

def entry(a, name):
    a(f".p2align 12\n{name}:")
    stamp(a, 0)
    a("s_load_dwordx16 s[16:31], s[0:1], 0")
    a("s_load_dwordx8 s[32:39], s[0:1], 64")
    a(f"s_cmp_ge_u32 s2, 256\ns_cbranch_scc1 {name}_end")
    a("v_lshrrev_b32 v1, 6, v0\nv_and_b32 v0, 63, v0\nv_readfirstlane_b32 s3, v1")

def stamp(a, i, p1=False):
    if opt("p1st") and i and not p1: return
    if STAMP: a(f"s_memrealtime s[{80+2*i}:{81+2*i}]")

def stamp_out(a, kidx):
    if not STAMP: return
    a("s_memrealtime s[96:97]\ns_waitcnt vmcnt(0) lgkmcnt(0)\ns_memrealtime s[98:99]\ns_waitcnt lgkmcnt(0)")
    a(f"s_lshl_b32 s78, s2, 3\ns_add_u32 s78, s78, s3\ns_lshl_b32 s78, s78, 7\ns_add_u32 s78, s78, {STF + kidx * 262144}")
    a("s_mov_b64 exec, 1")
    for i in range(20): a(f"v_mov_b32 v{4+i}, s{80+i}")
    a("v_mov_b32 v2, s78")
    for i in range(5): a(f"buffer_store_dwordx4 v[{4+4*i}:{7+4*i}], v2, {W}, 0 offen offset:{16*i}")

QA, QB = 20, 24
TM, PM, VB, KRG, SA, SB, SC_, CN, P, O = 192, 208, 216, 144, 64, 80, 128, 112, 32, 128
GX = 248
FREG = [160 + 4 * k for k in range(8)] + [96 + 4 * k for k in range(4)] + [48 + 4 * k for k in range(4)]
AK, AV, AO, AR = 8, 9, 10, 11
NONCE = 16

def att_setup(a):
    a("""v_and_b32 v2, 31, v0
    v_lshrrev_b32 v3, 5, v0
    v_lshlrev_b32 v4, v2, -2
    v_lshlrev_b32 v5, 2, v3
    v_lshrrev_b32 v4, v5, v4
    s_mov_b32 s13, 0xffff""")
    for r in range(16): a(f"v_bfe_i32 v{TM+r}, v4, {(r & 3) + 8 * (r >> 2)}, 1")
    for p in range(8): a(f"v_bfi_b32 v{PM+p}, s13, v{TM+2*p}, v{TM+2*p+1}")
    a(f"v_mov_b32 v{VB}, 0x3f803f80\nv_mov_b32 v{VB+1}, v{VB}")
    for i in range(2, 32, 2): a(f"v_mov_b64 v[{VB+i}:{VB+i+1}], v[{VB}:{VB+1}]")
    a(f"""s_and_b32 s9, s3, 3
    s_lshr_b32 s10, s3, 2
    s_lshl_b32 s11, s9, 12
    s_add_u32 s11, s11, {L_KV}
    s_lshl_b32 s12, s10, 10
    s_add_u32 s12, s12, s11
    v_lshlrev_b32 v4, 4, v0
    v_add_u32 v{AK}, s12, v4
    s_lshl_b32 s12, s10, 8
    s_add_u32 s12, s12, s11
    v_add_u32 v{AV}, s12, v4
    v_and_b32 v5, 15, v0
    v_mul_u32_u24 v5, 528, v5
    s_and_b32 s12, s4, 1
    v_xor_b32 v6, s12, v3
    v_lshl_add_u32 v5, v6, 7, v5
    v_bfe_u32 v6, v0, 4, 1
    v_lshl_add_u32 v5, v6, 4, v5
    s_lshl_b32 s12, s10, 8
    s_lshl_b32 s11, s9, 5
    s_add_u32 s12, s12, s11
    s_add_u32 s12, s12, {L_OS}
    v_add_u32 v{AO}, s12, v5
    s_mul_i32 s12, s3, 1056
    s_add_u32 s12, s12, {L_OS}
    v_mul_u32_u24 v5, 528, v3
    v_lshl_add_u32 v5, v2, 4, v5
    v_add_u32 v{AR}, s12, v5
    v_mul_u32_u24 v5, {OP}, v3
    v_lshl_add_u32 v12, v2, 4, v5""")
    a(f"""s_lshl_b32 s61, s4, 2
    s_add_u32 s61, s61, s9
    s_add_u32 s61, s61, 1
    s_min_u32 s61, s61, 9
    s_mul_i32 s62, s3, {2*OP}
    s_lshr_b32 s11, s4, 3
    s_lshl_b32 s11, s11, 16
    s_add_u32 s62, s62, s11
    s_lshl_b32 s11, s7, 12
    s_add_u32 s62, s62, s11
    s_and_b32 s11, s4, 7
    s_lshl_b32 s11, s11, 9
    s_add_u32 s62, s62, s11
    s_add_u32 s62, s62, {OF}""")
    a("""s_and_b32 s72, s2, 7
    s_lshl_b32 s72, s72, 1
    s_bfe_u32 s11, s2, 0x10003
    s_add_u32 s72, s72, s11
    s_bfe_u32 s73, s2, 0x10004
    s_lshr_b32 s74, s2, 5
    s_mov_b32 s75, 0
    v_lshlrev_b32 v14, 4, v0
    v_lshrrev_b32 v4, 3, v0
    v_lshlrev_b32 v4, 10, v4
    v_bfe_u32 v5, v0, 2, 1
    v_bfe_u32 v6, v0, 4, 1
    v_xor_b32 v5, v5, v6
    v_lshl_add_u32 v4, v5, 6, v4
    v_and_b32 v5, 3, v0
    v_lshl_add_u32 v4, v5, 4, v4
    s_lshl_b32 s11, s3, 16
    s_lshl_b32 s12, s74, 7
    s_add_u32 s11, s11, s12
    v_add_u32 v13, s11, v4""")
    srd(a, sOUT, 30, 512 * 512 * 2)

L_CNT = R[2] + 32512
def signal(a, k):
    a(f"s_mov_b64 exec, 1\nds_add_u32 v{CA}, v{CA+1} offset:{4*k}\ns_mov_b64 exec, -1")
_wn = [0]
def waitcnt_lds(a, k, n):
    _wn[0] += 1; t = f"lw{_wn[0]}"
    if opt("lsleep"):
        a(f"s_branch {t}e\n{t}:\ns_sleep {int(opt('lsleep'))}\n{t}e:\nds_read_b32 v{CA+2}, v{CA} offset:{4*k}\ns_waitcnt lgkmcnt(0)\nv_readfirstlane_b32 s78, v{CA+2}\ns_cmp_lt_u32 s78, {n}\ns_cbranch_scc1 {t}")
    else:
        a(f"{t}:\nds_read_b32 v{CA+2}, v{CA} offset:{4*k}\ns_waitcnt lgkmcnt(0)\nv_readfirstlane_b32 s78, v{CA+2}\ns_cmp_lt_u32 s78, {n}\ns_cbranch_scc1 {t}")
CA = 28

def get_nonce(a, tag, NONCE=None):
    NONCE = NONCE or (127 if tag == "ln" else 16)
    a("s_mov_b32 s15, 0")
    a(f"{tag}_n0:\nv_readfirstlane_b32 s63, v{NONCE}\ns_add_u32 s15, s15, 1\ns_cmp_lg_u32 s63, 0\ns_cbranch_scc1 {tag}_n1")
    a(f"s_cmp_gt_u32 s15, 0x40000\ns_cbranch_scc1 {tag}_n1\ns_sleep 2\nbuffer_load_dword v{NONCE}, off, s[{sDB}:{sDB+3}], 0 sc1\ns_waitcnt vmcnt(0)\ns_branch {tag}_n0")
    a(f"{tag}_n1:")

def ka(a):
    N = NAME
    entry(a, N)
    a("""s_and_b32 s8, s2, 7
    s_lshr_b32 s9, s2, 3
    s_lshr_b32 s10, s8, 1
    s_and_b32 s11, s8, 1
    s_lshl_b32 s4, s10, 2
    s_and_b32 s12, s9, 3
    s_add_u32 s4, s4, s12
    s_lshl_b32 s5, s11, 2
    s_bfe_u32 s13, s9, 0x20002
    s_add_u32 s5, s5, s13
    s_lshr_b32 s6, s9, 4
    s_lshl_b32 s7, s5, 1
    s_add_u32 s7, s7, s6""")
    a(f"v_mov_b32 v8, {L_CNT}\nv_mov_b64 v[4:5], 0\nv_mov_b64 v[6:7], 0\nds_write_b128 v8, v[4:7]\nds_write_b128 v8, v[4:7] offset:16")
    a("s_and_b32 s60, s3, 3")
    if STAG == 1: a("s_lshr_b32 s66, s9, 2\ns_lshl_b32 s13, s12, 1\ns_add_u32 s66, s66, s13")
    elif STAG == 0: a("s_mov_b32 s66, 0")
    else:
        XM = {2: (1, 1), 3: (1, 2), 4: (3, 1), 5: (1, 0), 6: (3, 0)}[STAG]
        a(f"s_lshr_b32 s66, s9, 2\ns_add_u32 s66, s66, s12\ns_and_b32 s66, s66, {XM[0]}\ns_lshl_b32 s66, s66, {XM[1]}")
    a("s_lshl_b32 s64, s8, 2\ns_add_u32 s64, s64, s12\ns_lshr_b32 s65, s9, 2")
    XV, WV, QV, AXV, AA, WG, FP, ACC, XF, PK, ZB = 96, 100, 102, 104, 112, 128, 48, 64, 16, 32, 96
    global CA
    CA = 124
    a(f"""v_lshrrev_b32 v1, 3, v0
    v_and_b32 v2, 7, v0
    v_lshrrev_b32 v3, 4, v0
    v_xor_b32 v2, v2, v3
    v_lshlrev_b32 v2, 4, v2
    s_lshl_b32 s8, s4, 17
    s_lshl_b32 s10, s60, 15
    s_add_u32 s8, s8, s10
    v_lshl_add_u32 v5, v1, 10, v2
    v_add_u32 v{XV}, s8, v5
    v_add_u32 v{XV+1}, 7168, v{XV}
    v_xor_b32 v{XV+1}, 64, v{XV+1}
    v_add_u32 v{XV+2}, 14336, v{XV}
    v_add_u32 v{XV+3}, 14336, v{XV+1}
    v_mul_u32_u24 v5, 3072, v1
    v_bfe_u32 v6, v0, 2, 1
    v_and_b32 v7, 1, v3
    v_xor_b32 v6, v6, v7
    v_lshl_add_u32 v5, v6, 6, v5
    v_and_b32 v7, 3, v0
    v_lshl_add_u32 v5, v7, 4, v5
    s_mul_i32 s8, s60, 49152
    s_lshl_b32 s10, s6, 10
    s_add_u32 s10, s10, s8
    s_lshl_b32 s11, s5, 7
    s_add_u32 s10, s10, s11
    s_add_u32 s10, s10, 1024
    v_add_u32 v{WV}, s10, v5
    v_add_u32 v{WV+1}, 23552, v{WV}
    s_lshl_b32 s14, s60, 12
    s_lshl_b32 s67, s60, 11
    s_waitcnt lgkmcnt(0)""")
    srd(a, sX, 16, 2048 * 512 * 2)
    srd(a, sW, 28, 512 * 1536 * 2)
    SX = f"s[{sX}:{sX+3}]"; SW = f"s[{sW}:{sW+3}]"
    def chunk_idx(n):
        if STAG == 1: a(f"s_add_u32 s9, s66, {n}\ns_and_b32 s9, s9, 7")
        else: a(f"s_xor_b32 s9, s66, {n}")
    pieces = []
    PER = int(opt("per", 1))
    def dma(x):
        a(x)
        for _ in range(PER):
            if pieces: a(pieces.pop(0))
    def issue(u):
        reg = R[u % 5]
        if u < 8:
            chunk_idx(u)
            a(f"s_add_u32 m0, s14, {reg}\ns_lshl_b32 s10, s9, 7\ns_mul_i32 s11, s9, 196608")
            for i in range(4): dma(f"buffer_load_dwordx4 v{XV+i}, {SX}, s10 offen offset:{1024*i} lds")
            a(f"s_add_u32 m0, s67, {reg+16384}\ns_nop 0")
            for i in range(2): dma(f"buffer_load_dwordx4 v{WV+i}, {SW}, s11 offen offset:{1024*i} lds")
            return 6
        if u == 8:
            a(f"s_lshr_b32 s12, s67, 1")
            for n in range(8):
                chunk_idx(n)
                a(f"s_add_u32 m0, s12, {reg+4096*n}\ns_mul_i32 s11, s9, 196608")
                dma(f"buffer_load_dwordx4 v{QV}, {SW}, s11 offen lds")
            return 8
        a(f"s_lshl_b32 s12, s14, 1\ns_movk_i32 s10, {512*(u-9)}")
        for i in range(8):
            if i % 4 == 0: a(f"s_add_u32 m0, s12, {reg+1024*i}\ns_nop 0")
            dma(f"buffer_load_dwordx4 v{AXV+i}, {SX}, s10 offen offset:{1024*(i%4)} lds")
        return 8
    NGU = int(opt("ng", 2))
    a(f"s_cmp_ge_u32 s3, 4\ns_cbranch_scc1 {N}_L")
    for u in range(NGU): issue(u)
    a("s_barrier")
    a(f"s_branch {N}_comp")
    a.label(f"{N}_L")
    def late_setup():
        a(f"""v_lshrrev_b32 v5, 2, v0
        v_mul_u32_u24 v5, 3072, v5
        v_lshl_add_u32 v5, v7, 4, v5
        s_lshl_b32 s10, s7, 6
        s_add_u32 s10, s10, s8
        v_add_u32 v{QV}, s10, v5""")
        a(f"""v_and_b32 v1, 31, v0
        v_lshrrev_b32 v2, 5, v0
        v_xor_b32 v5, v1, v2
        v_lshlrev_b32 v5, 4, v5
        v_lshl_add_u32 v5, v2, 17, v5
        s_lshl_b32 s10, s64, 2
        s_add_u32 s10, s10, s60
        s_lshl_b32 s10, s10, 10
        v_add_u32 v5, s10, v5""")
        for n in range(8):
            a(f"v_xor_b32 v{AXV+n}, {32*n}, v5")
            if n: a(f"v_add_u32 v{AXV+n}, {n*2*131072-1024*(n%4)}, v{AXV+n}")
        a(f"""v_and_b32 v5, 15, v0
        v_xor_b32 v5, v5, v2
        v_lshlrev_b32 v5, 4, v5
        v_lshl_add_u32 v5, v1, 9, v5
        s_lshr_b32 s10, s60, 1
        s_lshl_b32 s10, s10, 14
        s_add_u32 s10, s10, {R[4]}
        v_add_u32 v{AA}, s10, v5""")
        for ks in range(1, 8): a(f"v_xor_b32 v{AA+ks}, {32*ks}, v{AA}")
        a(f"v_mov_b32 v{CA}, {L_CNT}\nv_mov_b32 v{CA+1}, 1")
        a("""s_lshl_b32 s10, s65, 5
        v_add_u32 v5, s10, v1
        s_and_b32 s11, s60, 1
        v_lshlrev_b32 v15, 31, v5
        v_or_b32 v15, 1.0, v15
        v_sub_u32 v6, v5, s11
        v_ashrrev_i32 v6, 31, v6
        v_and_b32 v7, 256, v6
        v_or_b32 v5, v5, v7
        v_cvt_f32_u32 v120, v5
        v_mul_f32 v120, 0x3b000000, v120
        s_mul_i32 s11, s11, 0x3e800000
        v_not_b32 v6, v6
        v_and_b32 v121, s11, v6
        v_cvt_f32_u32 v5, v2
        v_mul_f32 v5, 0x41000000, v5
        v_fmac_f32 v121, v5, v120""")
    def gen_pieces():
        a("v_mul_f32 v123, 0x41800000, v120\nv_cos_f32 v123, v123\ns_nop 0\nv_add_f32 v123, v123, v123")
        for ks in range(16):
            r = 16 + 8 * (ks & 1); o_ = 16 + 8 * (1 - (ks & 1))
            for p in range(4):
                x, y = r + 2 * p, r + 2 * p + 1
                if ks < 2:
                    pieces.append(f"v_fmamk_f32 v{x}, v120, {fhex(float(16*ks+2*p))}, v121\nv_add_f32 v{y}, v{x}, v120\nv_cos_f32 v{x}, v{x}\nv_cos_f32 v{y}, v{y}\ns_nop 0\nv_cvt_pk_bf16_f32 v{WG+4*ks+p}, v{x}, v{y}")
                else:
                    pieces.append(f"v_fma_f32 v{x}, v123, v{o_+2*p}, -v{x}\nv_fma_f32 v{y}, v123, v{o_+2*p+1}, -v{y}\nv_cvt_pk_bf16_f32 v{WG+4*ks+p}, v{x}, v{y}")
    def first():
        srd(a, sWS, 38, WS_BYTES)
        srd(a, sDB, 36, 256)
        a(f"s_or_b32 s9, s2, s60\ns_cmp_lg_u32 s9, 0\ns_cbranch_scc1 {N}_nn")
        a(f"v_lshlrev_b32 v4, 8, v0\nv_mov_b32 v5, 0\ns_mov_b32 s9, {FL2}\nbuffer_store_dword v5, v4, {W}, s9 offen sc1")
        a("s_memrealtime s[10:11]\ns_waitcnt vmcnt(0) lgkmcnt(0)\ns_or_b32 s10, s10, 1\nv_mov_b32 v4, s10\ns_mov_b64 exec, 1")
        a(f"buffer_store_dword v4, off, s[{sDB}:{sDB+3}], 0 sc1\ns_mov_b64 exec, -1")
        a.label(f"{N}_nn")
        a(f"s_cmp_ge_u32 s60, 3\ns_cbranch_scc1 {N}_npf")
        a(f"s_getpc_b64 s[10:11]\n{N}_pc:\ns_sub_u32 s10, s10, {N}_pc-{N}\ns_subb_u32 s11, s11, 0\ns_lshl_b32 s9, s60, 13\nv_lshlrev_b32 v4, 7, v0\nv_add_u32 v4, s9, v4")
        a("v_mov_b32 v5, s11\nv_add_co_u32 v4, vcc, s10, v4\ns_nop 1\nv_addc_co_u32 v5, vcc, 0, v5, vcc\nglobal_load_dword v127, v[4:5], off")
        a.label(f"{N}_npf")
    def touch():
        if not opt("touch"): return
        a(f"s_cmp_lg_u32 s60, 3\ns_cbranch_scc1 {N}_ntt")
        srd(a, sOUT, 34, 2048 * 512 * 2)
        srd(a, sG, 30, 512 * 512 * 2)
        a(f"v_lshlrev_b32 v4, 21, v0\nv_add_u32 v4, 0x1fff80, v4\ns_mov_b64 exec, 63\nbuffer_load_dword v127, v4, {W}, 0 offen sc1\ns_mov_b64 exec, 1")
        a(f"buffer_load_dword v127, off, s[{sOUT}:{sOUT+3}], 0 sc1\nbuffer_load_dword v127, off, s[{sG}:{sG+3}], 0\ns_mov_b64 exec, -1")
        a.label(f"{N}_ntt")
    def warm():
        WM = opt("warm", "q")
        if "q" in WM:
            a(f"""s_cmp_lg_u32 s60, 0
            s_cbranch_scc1 {N}_w1
            s_and_b32 s9, s4, 3
            s_lshl_b32 s9, s9, 1
            s_add_u32 s9, s9, s6
            s_mul_i32 s9, s9, 196608
            s_lshl_b32 s10, s5, 7
            s_add_u32 s9, s9, s10
            v_mul_u32_u24 v4, 3072, v0
            buffer_load_dword v127, v4, {SW}, s9 offen
            {N}_w1:""")
        if "x" in WM:
            a(f"""s_cmp_lg_u32 s60, 1
            s_cbranch_scc1 {N}_w2
            s_lshl_b32 s9, s64, 12
            s_lshl_b32 s10, s65, 7
            s_add_u32 s9, s9, s10
            v_lshrrev_b32 v4, 2, v0
            v_lshlrev_b32 v4, 17, v4
            v_and_b32 v5, 3, v0
            v_lshl_add_u32 v4, v5, 10, v4
            buffer_load_dword v127, v4, {SX}, s9 offen
            {N}_w2:""")
        if "o" in WM:
            srd(a, sG, 30, 512 * 512 * 2)
            a(f"""s_cmp_lt_u32 s60, 2
            s_cbranch_scc1 {N}_w3
            s_lshr_b32 s9, s2, 3
            s_lshl_b32 s9, s9, 1
            s_add_u32 s9, s9, s60
            s_sub_u32 s9, s9, 2
            s_lshl_b32 s9, s9, 13
            v_lshlrev_b32 v4, 7, v0
            buffer_load_dword v127, v4, s[{sG}:{sG+3}], s9 offen
            {N}_w3:""")
    def gw_loads():
        srd(a, sG, 32, 1024)
        a(f"""v_lshlrev_b32 v6, 5, v0
        v_and_b32 v6, 1023, v6
        buffer_load_dwordx4 v[56:59], v6, s[{sG}:{sG+3}], 0 offen
        buffer_load_dwordx4 v[60:63], v6, s[{sG}:{sG+3}], 0 offen offset:16""")
    def gate_loads():
        a(f"""s_lshl_b32 s76, s4, 7
        s_lshl_b32 s9, s7, 3
        s_add_u32 s76, s76, s9
        s_lshl_b32 s9, s60, 1
        s_add_u32 s76, s76, s9
        s_lshl_b32 s9, s76, 10
        v_lshlrev_b32 v6, 5, v0
        buffer_load_dwordx4 v[48:51], v6, {SX}, s9 offen
        buffer_load_dwordx4 v[52:55], v6, {SX}, s9 offen offset:16""")
    def gate_comp():
        a("v_mov_b32 v5, 0")
        for i in range(8): a(f"v_dot2c_f32_bf16 v5, v{48+i}, v{56+i}")
        a("v_lshrrev_b32 v6, 5, v0\nv_add_u32 v6, s76, v6\nv_and_b32 v7, 15, v6")
        a("v_add_f32_dpp v5, v5, v5 quad_perm:[1,0,3,2] row_mask:0xf bank_mask:0xf")
        a("v_lshrrev_b32 v6, 4, v6\nv_lshlrev_b32 v7, 9, v7")
        a("v_add_f32_dpp v5, v5, v5 quad_perm:[2,3,0,1] row_mask:0xf bank_mask:0xf")
        a("v_lshl_add_u32 v6, v6, 2, v7\ns_nop 0")
        a("v_add_f32_dpp v5, v5, v5 row_half_mirror row_mask:0xf bank_mask:0xf\ns_nop 1")
        a("v_add_f32_dpp v5, v5, v5 row_mirror row_mask:0xf bank_mask:0xf\ns_nop 1")
        a("v_add_f32_dpp v5, v5, v5 row_bcast:15 row_mask:0xa bank_mask:0xf")
        a(f"v_mul_f32 v5, {fhex(-math.log2(math.e))}, v5\nv_exp_f32 v5, v5\ns_nop 0\nv_add_f32 v5, 1.0, v5\nv_rcp_f32 v5, v5")
        a("s_mov_b32 exec_lo, 0x80000000\ns_mov_b32 exec_hi, 0x80000000")
        a(f"s_mov_b32 s76, {GF}\nbuffer_store_dword v5, v6, {W}, s76 offen sc1\ns_mov_b64 exec, -1")
    def flush(k):
        for _ in range(k):
            if pieces: a(pieces.pop(0))
    first(); late_setup(); gen_pieces()
    a('s_barrier')
    if not opt('wlate'): warm()
    WORK = {0: [(warm if opt('wlate') else touch), gw_loads, lambda: flush(int(opt("pre", 8)))], 9: [lambda: flush(1000)]}
    WORK[int(opt("asat", 0))] = WORK.get(int(opt("asat", 0)), []) + [lambda: att_setup(a)]
    SCHED = eval(opt("sched", "[[2],[3,4],[],[5],[6],[7],[],[8],[9],[10]]"))
    cnt = {}; issued = []
    for n in range(10):
        if n == 9:
            waitcnt_lds(a, 0, 8)
            gate_loads()
        for u in SCHED[n]:
            assert u < 5 or u - 5 <= min(n, 7) - 3 or n == 9, (u, n)
            cnt[u] = issue(u); issued.append(u)
        for f in WORK.get(n, []): f()
        if n == 7: continue
        younger = sum(cnt[u] for u in issued if u > (7 if n == 6 else n)) if n < 9 else 8 * len([u for u in SCHED[9] if u > 9]) + (2 if 9 not in SCHED[9] else 0)
        if n >= NGU: a(f"s_waitcnt vmcnt({younger})")
        if n < NGU: pass
        elif n < 8: a("s_barrier")
        else: signal(a, (0, 5)[n - 8])
        if opt("p1st") and 1 <= n <= 7: stamp(a, n, True)
        if n == 6: stamp(a, 2)
        if n == 8: stamp(a, 3)
    def ard(s):
        F = XF + 4 * (s & 7)
        a(f"ds_read_b128 v[{F}:{F+3}], v{AA+(s&7)} offset:{256*((s>>3)&1)}")
        if 8 <= s < 16: a(f"v_subrev_u32 v{AA+(s&7)}, {R[4]-R[0]}, v{AA+(s&7)}")
    for half in range(2):
        if half == 0: waitcnt_lds(a, 5, 4)
        else:
            a("s_waitcnt vmcnt(0)")
            signal(a, 1)
            waitcnt_lds(a, 1, 4)
            stamp(a, 4)
        b = 16 * half
        for s in range(b, b + 6): ard(s)
        for s in range(b, b + 16):
            a(f"s_waitcnt lgkmcnt({min(5, b+15-s)})")
            c = vr(ACC + 16 * (s >> 4), 16)
            a(f"{MF} {c}, {vr(XF+4*(s&7),4)}, {vr(WG+4*(s&15),4)}, {'0' if (s & 15) == 0 else c}")
            if s + 6 < b + 16: ard(s + 6)
    a(f"""s_and_b32 s9, s60, 1
    s_lshl_b32 s9, s9, 12
    s_lshr_b32 s10, s60, 1
    s_lshl_b32 s11, s10, 11
    s_add_u32 s9, s9, s11
    s_add_u32 s9, s9, {L_ZX}
    v_add_u32 v2, s9, v14
    s_lshl_b32 s12, s60, 10
    s_add_u32 s12, s12, {L_QB}
    v_add_u32 v1, s12, v14""")
    a.nop(2)
    for i in range(16): a(f"v_fmac_f32 v{ACC+i}, v{ACC+16+i}, v15")
    for i in range(8): a(f"v_cvt_pk_bf16_f32 v{PK+i}, v{ACC+2*i}, v{ACC+2*i+1}")
    a(f"ds_write_b128 v2, v[{PK}:{PK+3}]\nds_write_b128 v2, v[{PK+4}:{PK+7}] offset:1024")
    signal(a, 2)
    gate_comp()
    a(f"v_mov_b32 v28, {L_CNT}")
    CA = 28
    for i in range(0, 16, 2): a(f"v_mov_b64 v[{CN+i}:{CN+i+1}], 0")
    waitcnt_lds(a, 3, 4)
    a(f"ds_read_b128 v[{QA}:{QA+3}], v1")
    a("s_branch att_body2")
    a.label(f"{N}_end")
    a("s_endpgm")

    XR, WR, ACC, PK = 128, 96, 64, 32
    XA, WA = 8, 12
    CA = 28
    a(".p2align 8")
    a.label(f"{N}_comp")
    a(f"""v_and_b32 v1, 31, v0
    v_lshrrev_b32 v2, 5, v0
    v_bfe_u32 v3, v0, 1, 3
    v_xor_b32 v3, v3, v2
    v_lshlrev_b32 v3, 4, v3
    v_lshl_add_u32 v3, v1, 7, v3
    s_lshl_b32 s9, s3, 12
    v_add_u32 v{XA}, s9, v3""")
    for ks in range(1, 4): a(f"v_xor_b32 v{XA+ks}, {32*ks}, v{XA}")
    a(f"""v_bfe_u32 v4, v0, 2, 2
    v_lshl_add_u32 v5, v2, 3, v4
    v_bfe_u32 v6, v0, 4, 1
    v_lshlrev_b32 v6, 5, v6
    v_and_b32 v7, 3, v0
    v_lshl_add_u32 v6, v7, 3, v6
    v_lshl_add_u32 v14, v5, 6, v6
    v_add_u32 v14, {R[3]}, v14
    v_lshl_add_u32 v5, v5, 7, v6
    v_lshrrev_b32 v4, 1, v4
    v_lshl_add_u32 v{WA}, v4, 6, v5
    v_xor_b32 v{WA+1}, 64, v{WA}""")
    a(f"v_mov_b32 v{CA}, {L_CNT}\nv_mov_b32 v{CA+1}, 1")
    a("s_waitcnt lgkmcnt(0)")
    srd(a, sWS, 38, WS_BYTES)
    srd(a, sDB, 36, 256)
    a(f"""s_lshl_b32 s8, s5, 7
    s_lshl_b32 s9, s4, 2
    s_add_u32 s8, s8, s9
    s_add_u32 s8, s8, s3
    s_lshl_b32 s8, s8, 12
    s_lshl_b32 s9, s6, 11
    s_add_u32 s8, s8, s9
    s_add_u32 s60, s8, 262144
    s_lshl_b32 s77, s4, 4
    s_add_u32 s77, s77, s7
    s_lshl_b32 s77, s77, 2
    s_add_u32 s77, s77, s3
    s_lshl_b32 s77, s77, 8
    s_add_u32 s77, s77, {FL1}
    v_lshlrev_b32 v15, 4, v0""")
    a(f"""s_mul_i32 s66, s3, 3
    s_lshl_b32 s67, s4, 2
    s_add_u32 s66, s66, s67
    s_sub_u32 s66, s66, 8
    v_lshrrev_b32 v4, 1, v0
    v_add_u32 v4, s66, v4
    v_ashrrev_i32 v5, 31, v4
    v_mov_b32 v6, s67
    v_bfi_b32 v4, v5, v6, v4
    v_lshrrev_b32 v5, 2, v4
    v_lshlrev_b32 v5, 6, v5
    v_and_b32 v6, 3, v4
    v_and_b32 v7, 1, v0
    v_lshl_add_u32 v6, v7, 2, v6
    s_lshl_b32 s11, s5, 3
    v_add3_u32 v5, v5, v6, s11
    v_lshlrev_b32 v18, 8, v5""")
    a("""s_lshr_b32 s9, s3, 1
    s_lshl_b32 s9, s9, 3
    v_bfe_u32 v120, v0, 1, 3
    v_add_u32 v120, s9, v120
    v_cvt_f32_u32 v120, v120
    v_and_b32 v121, 1, v0
    v_lshrrev_b32 v6, 5, v0
    v_sub_u32 v121, v121, v6
    v_cvt_f32_i32 v121, v121
    v_mul_f32 v121, 0x3e800000, v121
    v_bfe_u32 v6, v0, 4, 1
    v_lshlrev_b32 v6, 9, v6
    s_lshl_b32 s9, s64, 2
    v_add_u32 v6, s9, v6
    v_cvt_f32_u32 v6, v6
    v_mul_f32 v122, 0x3a000000, v120
    v_fmac_f32 v121, v6, v122
    v_mul_f32 v120, 0x3d800000, v120""")
    for u in range(4):
        for p in range(4):
            c0 = (2 * p & 3) + 8 * (p >> 1)
            pre = "v_add_f32 v121, v121, v122\n" if (u and p == 0) else ""
            a(pre + f"v_fmamk_f32 v4, v120, {fhex(float(c0))}, v121\nv_add_f32 v5, v4, v120\nv_cos_f32 v4, v4\nv_cos_f32 v5, v5\ns_nop 0\nv_cvt_pk_bf16_f32 v{FP+4*u+p}, v4, v5")
    if opt("burn"):
        for i in range(8): a(f"v_mul_lo_u32 v{96+i}, v18, v{8+(i&3)}\nv_and_b32 v{96+i}, 0x3fff3fff, v{96+i}")
        a(f"s_mov_b32 s9, {int(opt('burn'))}\nburn:")
        for i in range(4): a(f"{MF} v[64:79], v[96:99], v[100:103], 0")
        a("s_sub_u32 s9, s9, 1\ns_cmp_lg_u32 s9, 0\ns_cbranch_scc1 burn")
    a(f"s_cmp_eq_u32 s6, 1\ns_cbranch_scc1 {N}_V")
    def p1(swap):
        naddr = [XA + i for i in range(4)] + [WA, WA + 1]
        def rds(s):
            ks = s & 3; F = WR + 8 * ks
            o = [f"ds_read_b128 v[{XR+4*s}:{XR+4*s+3}], v{XA+ks}"]
            for nt in range(2):
                for h in range(2): o.append(f"ds_read_b64_tr_b16 v[{F+4*nt+2*h}:{F+4*nt+2*h+1}], v{WA+nt} offset:{16384+2048*ks+512*h}")
            return o
        a(f"s_waitcnt vmcnt({6*(NGU-1)})")
        signal(a, 6); waitcnt_lds(a, 6, 4)
        if opt("p1st"): stamp(a, 1, True)
        stamp(a, 1)
        for x in rds(0) + rds(1): a(x)
        for s in range(32):
            ks = s & 3; c = s >> 2
            a(f"s_waitcnt lgkmcnt({5 if s < 31 else 0})")
            r = rds(s + 2) if s < 30 else []
            for nt in range(2):
                x = vr(XR + 4 * s, 4); w = vr(WR + 8 * ks + 4 * nt, 4); cc = vr(ACC + 16 * nt, 16)
                ci = "0" if s == 0 else cc
                a(f"{MF} {cc}, {w}, {x}, {ci}" if swap else f"{MF} {cc}, {x}, {w}, {ci}")
                if nt == 0 and ks == 2 and c < 7:
                    d = R[(c + 1) % 5] - R[c % 5]
                    for x_ in naddr: a(f"v_add_u32 v{x_}, {d}, v{x_}" if d > 0 else f"v_subrev_u32 v{x_}, {-d}, v{x_}")
                    if c == 5: a(f"buffer_load_dword v{NONCE}, off, s[{sDB}:{sDB+3}], 0 sc1")
                    if c + 1 < NGU:
                        a(f"s_waitcnt vmcnt({6*(NGU-2-c)})")
                        signal(a, 6); waitcnt_lds(a, 6, 4 * (c + 2))
                    else:
                        if opt("p1st"): stamp(a, c + 1, True)
                        if c < 6: a("s_barrier")
                for x_ in (r[:3] if nt == 0 else r[3:]): a(x_)
    p1(True)
    a(f"s_branch {N}_p1d")
    a.label(f"{N}_V")
    p1(False)
    a.label(f"{N}_p1d")
    stamp(a, 2)
    a("s_waitcnt vmcnt(0)")
    get_nonce(a, "gm")
    a.nop(6)
    for nt in range(2):
        for i in range(8): a(f"v_cvt_pk_bf16_f32 v{PK+8*nt+i}, v{ACC+16*nt+2*i}, v{ACC+16*nt+2*i+1}")
        for h in range(2): a(f"buffer_store_dwordx4 v[{PK+8*nt+4*h}:{PK+8*nt+4*h+3}], v15, {W}, s{(8,60)[nt]} offen offset:{1024*h} sc1")
    signal(a, 0)
    FLAGAT = int(opt("flagat", 8))
    if FLAGAT < 0:
        a(f"s_waitcnt vmcnt(0)\ns_mov_b64 exec, 1\nbuffer_store_dword v{NONCE}, off, {W}, s77 sc1\ns_mov_b64 exec, -1")
        stamp(a, 3)
    waitcnt_lds(a, 0, 8)
    KP = f"v_mov_b32 v19, 0\nbuffer_atomic_add v19, v18, {W}, s76 offen sc0 sc1"
    POLLAT = int(opt("pollat", 31))
    def qrd(s):
        F = WR + 4 * (s & 7)
        for h in range(2): a(f"ds_read_b64_tr_b16 v[{F+2*h}:{F+2*h+1}], v14 offset:{1024*s+256*h}")
    for s in range(6): qrd(s)
    for s in range(32):
        a(f"s_waitcnt lgkmcnt({2*min(5, 31-s)})")
        a(f"{MF} {vr(ACC,16)}, {vr(WR+4*(s&7),4)}, {vr(XR+4*s,4)}, {'0' if s == 0 else vr(ACC,16)}")
        if s + 6 < 32: qrd(s + 6)
        if s == FLAGAT:
            a(f"s_waitcnt vmcnt(0)\ns_mov_b64 exec, 1\nbuffer_store_dword v{NONCE}, off, {W}, s77 sc1\ns_mov_b64 exec, -1")
            stamp(a, 3)
        if s == POLLAT: a(f"s_mov_b32 s76, {FL1}\ns_mov_b64 exec, 63\n{KP}\ns_mov_b64 exec, -1")
    a(f"""s_lshl_b32 s9, s3, 10
    s_add_u32 s9, s9, {L_QB}
    v_add_u32 v4, s9, v15""")
    a.nop(9)
    for i in range(16): a(f"v_mul_f32 v{ACC+i}, {fhex(QSCALE)}, v{ACC+i}")
    for i in range(8): a(f"v_cvt_pk_bf16_f32 v{QA+i}, v{ACC+2*i}, v{ACC+2*i+1}")
    a(f"ds_write_b128 v4, v[{QB}:{QB+3}]")
    a("s_mov_b32 s15, 0\ns_mov_b64 exec, 63")
    a(f"gm_poll:\ns_add_u32 s15, s15, 1\ns_waitcnt vmcnt(0)\nv_cmp_ne_u32 vcc, s63, v19")
    a(f"s_cmp_gt_u32 s15, 0x40000\ns_cbranch_scc1 gm_polled\ns_cbranch_vccz gm_polled\ns_sleep {PSLEEP}")
    a(f"{KP}\ns_branch gm_poll")
    a("gm_polled:\ns_mov_b64 exec, -1")
    stamp(a, 4)
    a(f"s_mul_i32 s12, s3, 12288\ns_lshl_b32 s13, s7, 6")
    for t in range(3):
        a(f"s_add_u32 s11, s66, {t}\ns_cmp_lt_i32 s11, 0\ns_cselect_b32 s11, s67, s11\ns_add_u32 s11, s11, s13\ns_lshl_b32 s11, s11, 12")
        a(f"s_add_u32 m0, s12, {L_KV + 4096*t}\ns_nop 0")
        for i in range(4): a(f"buffer_load_dwordx4 v15, {W}, s11 offen offset:{1024*i} sc1 lds")
    att_setup(a)
    a(f"""s_lshl_b32 s9, s74, 1
    s_lshr_b32 s10, s3, 1
    s_add_u32 s9, s9, s10
    s_sub_u32 s10, 15, s9
    s_min_u32 s10, s10, s9
    v_and_b32 v5, 1, v0
    v_add_u32 v5, s10, v5
    v_and_b32 v5, 7, v5
    v_lshrrev_b32 v6, 1, v0
    v_lshl_add_u32 v5, v6, 3, v5
    v_lshlrev_b32 v18, 8, v5
    s_and_b32 s79, s3, 1
    s_lshl_b32 s79, s79, 15
    s_add_u32 s79, s79, {FL3}""")
    for i in range(0, 16, 2): a(f"v_mov_b64 v[{CN+i}:{CN+i+1}], 0")
    a(f"s_lshl_b32 s77, s64, 3\ns_add_u32 s77, s77, s65\ns_lshl_b32 s77, s77, 8\ns_lshl_b32 s9, s3, 2\ns_add_u32 s77, s77, s9\ns_add_u32 s77, s77, {FL3}")
    a(f"""v_lshrrev_b32 v4, 5, v0
    v_lshlrev_b32 v3, 12, v4
    v_bfe_u32 v5, v0, 4, 1
    v_lshl_add_u32 v3, v5, 9, v3
    v_and_b32 v6, 15, v0
    v_lshl_add_u32 v3, v6, 4, v3
    s_lshr_b32 s10, s3, 1
    s_and_b32 s9, s3, 1
    s_lshl_b32 s9, s9, 8
    s_add_u32 s11, s9, {L_ZX}
    v_add_u32 v3, s11, v3
    v_lshrrev_b32 v4, 4, v0
    v_mul_u32_u24 v4, {2*32*TP}, v4
    v_lshl_add_u32 v5, v6, 4, v4
    s_lshl_b32 s11, s65, 9
    s_add_u32 s9, s9, s11
    v_add_u32 v5, s9, v5
    s_mul_i32 s10, s10, {8*32*TP}
    s_mul_i32 s11, s64, {TP}
    s_add_u32 s10, s10, s11
    s_add_u32 s10, s10, {TF}
    s_add_u32 s11, s10, {32*TP}""")
    for i in range(0, 16, 2): a(f"v_mov_b64 v[{ZB+i}:{ZB+i+1}], 0")
    waitcnt_lds(a, 2, 4)
    a("s_cmp_eq_u32 s9, 0\ns_cselect_b32 exec_hi, 0xfffefffe, -1")
    def step1():
        for u in range(4): a(f"{MF16} {vr(ACC+4*u,4)}, {vr(FP+4*u,4)}, {vr(ZB+4*u,4)}, 0")
        a.nop(5)
        for r2 in range(2):
            for u in range(4): a(f"v_cvt_pk_bf16_f32 v{PK+4*r2+u}, v{ACC+4*u+2*r2}, v{ACC+4*u+2*r2+1}")
    for u in range(4): a(f"ds_read_b128 v[{ZB+4*u}:{ZB+4*u+3}], v3 offset:{1024*u}")
    a("s_waitcnt lgkmcnt(0)\ns_mov_b64 exec, -1")
    step1()
    a(f"buffer_store_dwordx4 v[{PK}:{PK+3}], v5, {W}, s10 offen sc1\nbuffer_store_dwordx4 v[{PK+4}:{PK+7}], v5, {W}, s11 offen sc1")
    a("s_waitcnt vmcnt(2)")
    signal(a, 3)
    a(f"s_cmp_lg_u32 s9, 0\ns_cbranch_scc1 {N}_nsp")
    a("s_mov_b32 exec_hi, 0")
    for u in range(4): a(f"ds_read_b128 v[{ZB+4*u}:{ZB+4*u+3}], v3 offset:{4096+1024*u}")
    a("s_mov_b64 exec, -1\nv_add_u32 v6, 4096, v4\ns_waitcnt lgkmcnt(0)")
    step1()
    a("s_mov_b32 exec_lo, 0x00010001\ns_mov_b32 exec_hi, 0x00010001")
    a(f"buffer_store_dwordx4 v[{PK}:{PK+3}], v6, {W}, s10 offen sc1\nbuffer_store_dwordx4 v[{PK+4}:{PK+7}], v6, {W}, s11 offen sc1")
    a("s_mov_b64 exec, -1")
    a.label(f"{N}_nsp")
    waitcnt_lds(a, 3, 4)

    a.label("att_body2")
    stamp(a, 5)
    q = vr(QA, 4); cn = vr(CN, 16); o = vr(O, 16); m = 3
    kslot = {8: 0, 0: 1}; vslot = {8: 0, 0: 1}
    for n in range(7): kslot[7 - n] = (2 + n) & 3; vslot[7 - n] = (2 + n) & 3
    kf = lambda j: vr(KRG + 4 * kslot[j], 4)
    vf = lambda j, ks: vr(VB + 8 * vslot[j] + 4 * ks, 4)
    def krd(j): a(f"ds_read_b128 {kf(j)}, v{AK} offset:{4096*j}")
    def vrd(js):
        a("s_mov_b64 exec, s[12:13]")
        for j in js:
            for ks in range(2): a(f"ds_read_b128 {vf(j,ks)}, v{AV} offset:{4096*j+2048+1024*ks}")
        a("s_mov_b64 exec, -1")
    def wo_dma():
        a(f"s_add_u32 m0, s75, s8\ns_lshl_b32 s9, s75, 3\nbuffer_load_dwordx4 v13, s[{sOUT}:{sOUT+3}], s9 offen lds\ns_add_u32 s75, s75, 1024")
    TPL = f"s_mov_b32 exec_hi, 0\nbuffer_load_dwordx4 v[24:27], v18, {W}, s79 offen sc1\ns_mov_b64 exec, -1"
    TCHK = "s_mov_b32 exec_hi, 0\nv_xor_b32 v24, s63, v24\nv_xor_b32 v25, s63, v25\nv_xor_b32 v26, s63, v26\nv_xor_b32 v27, s63, v27\nv_or3_b32 v24, v24, v25, v26\nv_or_b32 v24, v24, v27\nv_cmp_ne_u32 vcc, 0, v24\ns_mov_b64 exec, -1"
    a(f"""s_mov_b32 s12, 0xffff
    s_mov_b32 s13, 0xffff
    s_mov_b32 s15, 0
    s_lshl_b32 s8, s3, 13
    s_add_u32 s8, s8, {R[3]}""")
    a.label("att_retry")
    for j in (8, 0, 7, 6): krd(j)
    vrd((8, 0, 7))
    PR = opt("prio", "a")
    if PR == "a": a("s_setprio 3")
    if PR == "b": a("s_cmp_lt_u32 s3, 4\ns_cbranch_scc1 att_np\ns_setprio 1\natt_np:")
    a("s_waitcnt lgkmcnt(7)\ns_nop 0")
    a(f"{MF} {vr(SB,16)}, {kf(8)}, {q}, {cn}")
    a(f"{MF} {vr(SC_,16)}, {kf(0)}, {q}, {cn}")
    a(f"{MF} {vr(SA,16)}, {kf(7)}, {q}, {cn}")
    wo_dma()
    a("s_cmp_lg_u32 s61, 9")
    a.nop(5)
    a("s_cbranch_scc1 att_no0a")
    for i in range(16): a(f"v_bfi_b32 v{SB+i}, v{TM+i}, v{SC_+i}, v{SB+i}")
    a.label("att_no0a")
    for i in range(16): a(f"v_exp_f32 v{SB+i}, v{SB+i}")
    for i in range(8): a(f"v_cvt_pk_bf16_f32 v{P+i}, v{SB+2*i}, v{SB+2*i+1}")
    for i in range(8): a(f"v_and_b32 v{P+8+i}, v{PM+i}, v{P+i}")
    for i in range(8): a(f"v_xor_b32 v{P+i}, v{P+8+i}, v{P+i}")
    a("s_waitcnt lgkmcnt(0)\ns_cmp_lg_u32 s61, 9")
    a(f"{MF} {o}, {vf(8,0)}, {vr(P,4)}, 0")
    a(f"{MF} {o}, {vf(8,1)}, {vr(P+4,4)}, {o}")
    a("s_cbranch_scc1 att_no0b")
    a(f"{MF} {o}, {vf(0,0)}, {vr(P+8,4)}, {o}")
    a(f"{MF} {o}, {vf(0,1)}, {vr(P+12,4)}, {o}")
    a.label("att_no0b")
    a("s_cmp_ge_u32 s3, 4\ns_cbranch_scc1 att_nof3")
    a(f"v_mov_b32 v4, s63\ns_waitcnt vmcnt(1)\ns_mov_b64 exec, 1\nbuffer_store_dword v4, off, {W}, s77 sc1\ns_mov_b64 exec, -1")
    a.label("att_nof3")
    a("s_cmp_eq_u32 s61, 1\ns_cbranch_scc1 att_done")
    S = [SA, SB]
    for n in range(7):
        j = 7 - n
        s = S[n & 1]; p = P + 8 * (n & 1)
        if PR == "a" and n in (1, 3, 5): a(f"s_setprio {2 - n // 2}")
        if PR == "c" : a(f"s_setprio {(3,2,2,1,1,0,0)[n]}")
        if n < 6:
            a(f"{MF} {vr(S[(n+1)&1],16)}, {kf(j-1)}, {q}, {cn}")
            if n < 5: krd(j - 2)
            vrd((j - 1,))
        if n < 3 and (not opt('wo1')): wo_dma()
        for i in range(8): a(f"v_exp_f32 v{s+i}, v{s+i}")
        for i in range(4): a(f"v_cvt_pk_bf16_f32 v{p+i}, v{s+2*i}, v{s+2*i+1}")
        for i in range(8, 10): a(f"v_exp_f32 v{s+i}, v{s+i}")
        a(f"{MF} {o}, {vf(j,0)}, {vr(p,4)}, {o}")
        if n < 4 or not (not opt('wo1')): wo_dma()
        for i in range(10, 16): a(f"v_exp_f32 v{s+i}, v{s+i}")
        for i in range(4, 8): a(f"v_cvt_pk_bf16_f32 v{p+i}, v{s+2*i}, v{s+2*i+1}")
        a(f"s_cmp_eq_u32 s61, {n+2}\ns_waitcnt lgkmcnt(0)")
        a(f"{MF} {o}, {vf(j,1)}, {vr(p+4,4)}, {o}")
        if n < 6 and not opt("nobr"): a("s_cbranch_scc1 att_done")
    a.label("att_done")
    a(f"s_nop 0\ns_mov_b32 s14, {fhex(0.0 if FORCEFB else 2.0**90)}\nv_mov_b32 v6, 0")
    a(f"""s_lshl_b32 s101, s3, 3
    s_bfe_u32 s9, s4, 0x10003
    s_lshl_b32 s9, s9, 2
    s_add_u32 s101, s101, s9
    s_and_b32 s9, s7, 3
    s_add_u32 s101, s101, s9
    s_lshl_b32 s101, s101, 8
    s_add_u32 s101, s101, {FL2}""")
    a.nop(1)
    a(f"v_rcp_f32 v4, v{O+8}\nv_mov_b32 v7, v{O+8}")
    for i in range(8): a(f"v_fmac_f32 v7, v{O+i}, v6")
    a("v_add_f32 v7, v7, v4\nv_cmp_nge_f32 vcc, s14, v7\ns_cbranch_vccnz att_fb")
    a.label("att_fin")
    for i in range(8): a(f"v_mul_f32 v{O+i}, v{O+i}, v4")
    for i in range(4): a(f"v_cvt_pk_bf16_f32 v{P+i}, v{O+2*i}, v{O+2*i+1}")
    a(f"ds_write_b128 v{AO}, v[{P}:{P+3}]")
    stamp(a, 6)
    a.label("att_wo")
    a("s_cmp_ge_u32 s75, 8192\ns_cbranch_scc1 att_wo2")
    wo_dma()
    a("s_branch att_wo")
    a.label("att_wo2")
    a(f"s_setprio 0\nv_mov_b32 v4, 1\ns_waitcnt vmcnt(0)\ns_cmp_lt_u32 s3, 4\ns_cbranch_scc0 att_nt\n{TPL}\natt_nt:")
    a(f"s_waitcnt lgkmcnt(0)\ns_barrier\nds_read_b128 v[{P}:{P+3}], v{AR}\ns_waitcnt lgkmcnt(0)")
    a(f"buffer_store_dwordx4 v[{P}:{P+3}], v12, {W}, s62 offen sc1")
    def flag2(n): a(f"s_waitcnt vmcnt({n})\ns_mov_b64 exec, 1\nbuffer_atomic_add v4, off, {W}, s101 sc1\ns_mov_b64 exec, -1")
    a("s_cmp_lt_u32 s3, 4\ns_cbranch_scc1 out_comp")
    a(f"""s_sub_u32 s60, s3, 4
    s_lshr_b32 s9, s72, 1
    s_lshl_b32 s9, s9, 3
    s_lshl_b32 s10, s73, 2
    s_add_u32 s9, s9, s10
    s_add_u32 s9, s9, s60
    s_lshl_b32 s9, s9, 8
    s_add_u32 s9, s9, {FL2}
    s_mul_i32 s8, s72, {OP}
    s_lshl_b32 s10, s73, 16
    s_add_u32 s8, s8, s10
    s_lshl_b32 s10, s60, 12
    s_add_u32 s8, s8, s10
    s_add_u32 s8, s8, {OF}
    s_mov_b32 s15, 0""")
    flag2(0)
    a("s_mov_b64 exec, 1")
    PA = lambda r: f"v_mov_b32 v{r}, 0\nbuffer_atomic_add v{r}, off, {W}, s9 sc0 sc1"
    if opt("pp"):
        g = int(opt("pp"))
        a(f"{PA(6)}\ns_sleep {g}\no_poll:")
        for x, y in ((7, 6), (6, 7)):
            a(f"{PA(x)}\ns_waitcnt vmcnt(1)\nv_cmp_gt_u32 vcc, 32, v{y}\ns_add_u32 s15, s15, 1\ns_cbranch_vccz o_polled")
        a("s_cmp_lt_u32 s15, 0x80000\ns_cbranch_scc1 o_poll")
    else:
        a(f"o_poll:\n{PA(6)}\ns_add_u32 s15, s15, 1\ns_waitcnt vmcnt(0)\nv_cmp_gt_u32 vcc, 32, v6")
        a(f"s_cmp_gt_u32 s15, 0x40000\ns_cbranch_scc1 o_polled\ns_cbranch_vccz o_polled\ns_sleep {int(opt('psleep2', 0))}\ns_branch o_poll")
    a("o_polled:\ns_mov_b64 exec, -1")
    stamp(a, 7)
    def oissue(c):
        a(f"s_add_u32 m0, s10, {R[1] + 16384*c}")
        a("s_add_u32 s8, s8, 16384" if c else "s_nop 0")
        for i in range(4): a(f"buffer_load_dwordx4 v14, {W}, s8 offen offset:{1024*i} sc1 lds")
    for c in range(4): oissue(c)
    for c in range(4): a(f"s_waitcnt vmcnt({12-4*c})\ns_barrier")
    stamp_out(a, 0)
    a("s_endpgm")
    AB, AY, FR = 64, 80, 192
    a.label("out_comp")
    a("s_lshr_b32 s66, s3, 1\ns_and_b32 s67, s3, 1")
    srd(a, sOUT, 34, 2048 * 512 * 2)
    a(f"""v_and_b32 v1, 31, v0
    v_lshrrev_b32 v2, 5, v0
    s_lshl_b32 s9, s67, 5
    s_lshl_b32 s10, s73, 6
    s_add_u32 s9, s9, s10
    v_add_u32 v3, s9, v1
    v_bfe_u32 v9, v0, 3, 2
    v_lshlrev_b32 v6, 9, v9
    v_and_b32 v9, 1, v9
    v_xor_b32 v9, v9, v2
    v_lshl_add_u32 v6, v9, 7, v6
    v_and_b32 v9, 7, v0
    v_lshl_add_u32 v6, v9, 4, v6
    s_lshl_b32 s9, s67, 11
    s_add_u32 s9, s9, {R[1]}
    v_add_u32 v6, s9, v6
    v_bfe_u32 v9, v0, 2, 2
    v_lshl_add_u32 v7, v2, 2, v9
    v_lshlrev_b32 v7, 7, v7
    v_lshrrev_b32 v9, 1, v9
    v_xor_b32 v9, s66, v9
    v_lshl_add_u32 v7, v9, 6, v7
    v_and_b32 v9, 1, v0
    v_lshl_add_u32 v7, v9, 5, v7
    v_bfe_u32 v9, v0, 4, 1
    v_lshl_add_u32 v7, v9, 4, v7
    v_bfe_u32 v9, v0, 1, 1
    v_lshl_add_u32 v7, v9, 3, v7
    v_add_u32 v7, {R[3]}, v7
    v_bfe_u32 v9, v0, 2, 1
    v_lshlrev_b32 v8, 4, v9
    v_and_b32 v9, 3, v0
    v_add_u32 v8, v8, v9
    v_bfe_u32 v9, v0, 3, 2
    v_lshl_add_u32 v8, v9, 2, v8
    s_lshl_b32 s9, s66, 5
    s_lshl_b32 s10, s74, 6
    s_add_u32 s9, s9, s10
    v_add_u32 v8, s9, v8
    v_sub_u32 v9, 512, v8
    s_sub_u32 s12, 16, s72
    s_and_b32 s12, s12, 15
    s_cmp_ge_u32 s74, 4
    s_cselect_b32 s12, s12, s72
    s_cselect_b32 s13, -1, 0
    v_bfi_b32 v8, s13, v9, v8
    v_lshlrev_b32 v8, 4, v8
    v_mul_u32_u24 v9, {TP}, v2
    v_add_u32 v8, v8, v9
    s_lshl_b32 s12, s12, 1
    s_add_u32 s12, s12, s67
    s_mul_i32 s12, s12, {16*TP}
    s_add_u32 s12, s12, {TF}
    s_lshl_b32 s9, s3, 12
    v_add_u32 v29, s9, v14
    v_xor_b32 v30, 4096, v29
    v_lshlrev_b32 v28, 14, v3
    v_lshl_add_u32 v28, v2, 5, v28
    s_lshl_b32 s14, s72, 10
    s_lshl_b32 s10, s74, 7
    s_add_u32 s14, s14, s10
    s_lshl_b32 s10, s66, 6
    s_add_u32 s14, s14, s10
    v_lshlrev_b32 v5, 2, v3
    s_lshl_b32 s11, s72, 9
    s_add_u32 s11, s11, {GF}
    s_mov_b32 s15, 0""")
    ab = vr(AB, 16); ay = vr(AY, 16)
    AZ = 224
    FG0 = len(a.lines)
    a("""s_cmp_eq_u32 s72, 0
    s_cselect_b32 s9, 1, 0
    s_add_u32 s9, s9, 127
    s_lshl_b32 s10, s67, 4
    v_add_u32 v15, s10, v2
    v_cvt_f32_u32 v15, v15
    v_mul_f32 v15, 4.0, v15""")
    for seq in range(2):
        a(f"""v_xor_b32 v13, {32*seq}, v3
        v_sub_u32 v10, s9, v13
        v_and_b32 v10, 127, v10
        v_bfi_b32 v10, s13, v10, v13
        v_cvt_f32_u32 v10, v10
        v_mul_f32 v10, 0x3c000000, v10
        v_mul_f32 v11, v15, v10
        v_mul_f32 v12, 0x41000000, v10
        v_cos_f32 v12, v12
        s_nop 0
        v_add_f32 v12, v12, v12""")
        for k in range(8):
            r = 112 + 8 * (k & 1); o_ = 112 + 8 * (1 - (k & 1))
            for u in range(4):
                x, y = r + 2 * u, r + 2 * u + 1
                if k < 2: a(f"v_fmamk_f32 v13, v10, {fhex(float(8*k+u))}, v11\nv_cos_f32 v{x}, v13\nv_sin_f32 v{y}, v13\ns_nop 0")
                else: a(f"v_fma_f32 v{x}, v12, v{o_+2*u}, -v{x}\nv_fma_f32 v{y}, v12, v{o_+2*u+1}, -v{y}")
                a(f"v_cvt_pk_bf16_f32 v{FREG[8*seq+k]+u}, v{x}, v{y}")
    fgl = a.lines[FG0:]; del a.lines[FG0:]
    FCUT = int(opt("fcut", 70))
    a.lines += fgl[:FCUT]
    flag2(0)
    stamp(a, 7)
    a(f"t_poll:\n{TCHK}")
    a(f"s_add_u32 s15, s15, 1\ns_cmp_gt_u32 s15, 0x40000\ns_cbranch_scc1 t_polled\ns_cbranch_vccz t_polled\ns_sleep {int(opt('psleep3', 8))}\n{TPL}\ns_waitcnt vmcnt(0)\ns_branch t_poll\nt_polled:")
    for k in range(8):
        a(f"buffer_load_dwordx4 v[{FR+4*k}:{FR+4*k+3}], v8, {W}, s12 offen sc1")
        if k < 7: a(f"s_add_u32 s12, s12, {2*TP}")
    a.lines += fgl[FCUT:]
    az = vr(AZ, 16)
    for k in range(8):
        a(f"s_waitcnt vmcnt({7-k})")
        a(f"{MF} {az}, {vr(FR+4*k,4)}, {vr(FREG[8+k],4)}, {'0' if k == 0 else az}")
        a(f"{MF} {ay}, {vr(FR+4*k,4)}, {vr(FREG[k],4)}, {'0' if k == 0 else ay}")
    WF = [96 + 4 * k for k in range(24)] + [32 + 4 * k for k in range(8)]
    for h in range(32):
        a(f"ds_read_b64_tr_b16 v[{WF[h]}:{WF[h]+1}], v7 offset:{2048*h}")
        a(f"ds_read_b64_tr_b16 v[{WF[h]+2}:{WF[h]+3}], v7 offset:{2048*h+1024}")
    for i in range(4): a(f"ds_write_b128 v29, v[{AZ+4*i}:{AZ+4*i+3}] offset:{R[0]+1024*i}")
    a("s_waitcnt lgkmcnt(0)")
    def ords(c):
        for h in range(8): a(f"ds_read_b128 v[{FR+32*(c&1)+4*h}:{FR+32*(c&1)+4*h+3}], v6 offset:{16384*c+4096*(h>>1)+256*(h&1)}")
    SPL = int(opt("spl", 3))
    a("s_barrier")
    ords(0)
    a(f"buffer_load_dword v24, v5, {W}, s11 offen sc1")
    for c in range(4):
        for h in range(8):
            if h <= SPL: a(f"s_waitcnt lgkmcnt({7-h if h < SPL else 0})")
            a(f"{MF} {ab}, {vr(WF[8*c+h],4)}, {vr(FR+32*(c&1)+4*h,4)}, {'0' if c + h == 0 else ab}")
            if h == SPL and c < 3:
                a("s_barrier")
                if c == 1:
                    for i in range(4): a(f"ds_read_b128 v[{96+4*i}:{96+4*i+3}], v30 offset:{R[0]+1024*i}")
                ords(c + 1)
            if c == 3 and 4 <= h:
                for i in range(4 * (h - 4), 4 * (h - 3)): a(f"v_add_f32 v{AY+i}, v{AY+i}, v{96+i}")
    a("s_waitcnt vmcnt(0)")
    a.nop(7)
    for i in range(16):
        a(f"v_sub_f32 v{AY+i}, v{AY+i}, v{AB+i}")
        a(f"v_fmac_f32 v{AB+i}, v{AY+i}, v24")
    for i in range(8): a(f"v_cvt_pk_bf16_f32 v{FR+i}, v{AB+2*i}, v{AB+2*i+1}")
    a(f"buffer_store_dwordx4 v[{FR}:{FR+3}], v28, s[{sOUT}:{sOUT+3}], s14 offen")
    a(f"buffer_store_dwordx4 v[{FR+4}:{FR+7}], v28, s[{sOUT}:{sOUT+3}], s14 offen offset:16")
    stamp_out(a, 0)
    a("s_endpgm")
    a.label("att_fb")
    a("s_cmp_lg_u32 s15, 0\ns_cbranch_scc1 att_fin\ns_mov_b32 s15, 1\ns_mov_b32 s75, 0\ns_mov_b32 s14, 0xff800000\nv_mov_b32 v3, s14")
    def fbtile(j, mask):
        a(f"ds_read_b128 {vr(KRG,4)}, v{AK} offset:{4096*j}\ns_waitcnt lgkmcnt(0)")
        a(f"{MF} {vr(SA,16)}, {vr(KRG,4)}, {q}, 0")
        a.nop(12)
        if mask == 8:
            for i in range(16): a(f"v_bfi_b32 v{SA+i}, v{TM+i}, s14, v{SA+i}")
        if mask == 0:
            for i in range(16): a(f"v_bfi_b32 v{SA+i}, v{TM+i}, v{SA+i}, s14")
        for i in range(8): a(f"v_max3_f32 v{m}, v{m}, v{SA+2*i}, v{SA+2*i+1}")
    fbtile(8, 8)
    for n in range(8):
        a(f"s_cmp_eq_u32 s61, {n+1}\ns_cbranch_scc1 att_fb2")
        fbtile(7 - n, 0 if n == 7 else None)
    a.label("att_fb2")
    a(f"v_mov_b32 v4, v{m}\ns_nop 1\nv_permlane32_swap_b32 v4, v{m}\ns_nop 0\nv_max_f32 v{m}, v4, v{m}")
    a(f"v_sub_f32 v{CN}, 0, v{m}\nv_sub_f32 v{CN+1}, 0, v{m}")
    for i in range(2, 16, 2): a(f"v_mov_b64 v[{CN+i}:{CN+i+1}], v[{CN}:{CN+1}]")
    a("s_branch att_retry")

def desc(name, nv):
    return f""".p2align 6
.amdhsa_kernel {name}
  .amdhsa_next_free_vgpr {nv}
  .amdhsa_next_free_sgpr 102
  .amdhsa_accum_offset {(nv+3)//4*4}
  .amdhsa_group_segment_fixed_size 0
  .amdhsa_kernarg_size 96
  .amdhsa_user_sgpr_count 2
  .amdhsa_user_sgpr_kernarg_segment_ptr 1
  .amdhsa_system_sgpr_workgroup_id_x 1
.end_amdhsa_kernel
"""

a = Asm()
ka(a)
for m in check_hazards(a.lines): print("HAZARD", m, file=sys.stderr)
hdr = "; gated mix of FNet spectral mixing and sliding-window attention; generated by dev/gen4.py\n"
hdr += "; @launch grid=(256,1,1) block=(512,1,1) lds=163840\n"
hdr += f'.amdgcn_target "amdgcn-amd-amdhsa--gfx950"\n.text\n.globl {NAME}\n.type {NAME},@function\n'
out = hdr + a.text() + '.section .rodata,"a"\n' + desc(NAME, 256)
fn = [x for x in sys.argv[1:] if not x.startswith("--")][0]
open(fn, "w").write(out)
```

```python
import sys, math
from asmlib import *

def opt(name, default=None):
    for x in sys.argv:
        if x == "--" + name: return True
        if x.startswith("--" + name + "="): return x.split("=", 1)[1]
    return default
STAMP = opt("stamp", False)
STAG = int(opt("stag", 4))
PSLEEP = int(opt("psleep", 0))
FORCEFB = opt("forcefb", False)
KVB, TF, OF, GF, FL1, FL2, FL3 = 0x000000, 0x400000, 0x700000, 0xA00000, 0xA80000, 0xB00000, 0xB80000
STF = 0xC00000
WS_BYTES = 0x1000000
TP = 4224
OP = 131072 + 1024
MF = "v_mfma_f32_32x32x16_bf16"
MF16 = "v_mfma_f32_16x16x32_bf16"
QSCALE = 0.25 * math.log2(math.e)
sX, sW, sWS, sG, sDB, sOUT = 40, 44, 48, 52, 56, 68
NAME = 'gated_mix__spectral_fnet__sliding_block__prompt_kernel'
W = f"s[{sWS}:{sWS+3}]"
R = [32768 * i for i in range(5)]
L_KV, L_QB, L_ZX, L_OS = R[1], R[2] + 16384, R[2] + 20480, R[0] + 16384

def srd(a, d, ptr, nbytes):
    a(f"s_mov_b32 s{d}, s{ptr}\ns_mov_b32 s{d+1}, s{ptr+1}\ns_mov_b32 s{d+2}, {nbytes}\ns_mov_b32 s{d+3}, 0x00020000")

def entry(a, name):
    a(f".p2align 12\n{name}:")
    stamp(a, 0)
    a("s_load_dwordx16 s[16:31], s[0:1], 0")
    a("s_load_dwordx8 s[32:39], s[0:1], 64")
    a(f"s_cmp_ge_u32 s2, 256\ns_cbranch_scc1 {name}_end")
    a("v_lshrrev_b32 v1, 6, v0\nv_and_b32 v0, 63, v0\nv_readfirstlane_b32 s3, v1")

def stamp(a, i, p1=False):
    if opt("p1st") and i and not p1: return
    if STAMP: a(f"s_memrealtime s[{80+2*i}:{81+2*i}]")

def stamp_out(a, kidx):
    if not STAMP: return
    a("s_memrealtime s[96:97]\ns_waitcnt vmcnt(0) lgkmcnt(0)\ns_memrealtime s[98:99]\ns_waitcnt lgkmcnt(0)")
    a(f"s_lshl_b32 s78, s2, 3\ns_add_u32 s78, s78, s3\ns_lshl_b32 s78, s78, 7\ns_add_u32 s78, s78, {STF + kidx * 262144}")
    a("s_mov_b64 exec, 1")
    for i in range(20): a(f"v_mov_b32 v{4+i}, s{80+i}")
    a("v_mov_b32 v2, s78")
    for i in range(5): a(f"buffer_store_dwordx4 v[{4+4*i}:{7+4*i}], v2, {W}, 0 offen offset:{16*i}")

QA, QB = 20, 24
TM, PM, VB, KRG, SA, SB, SC_, CN, P, O = 192, 208, 216, 144, 64, 80, 128, 112, 32, 128
GX = 248
FREG = [160 + 4 * k for k in range(8)] + [96 + 4 * k for k in range(4)] + [48 + 4 * k for k in range(4)]
AK, AV, AO, AR = 8, 9, 10, 11
NONCE = 16

def att_setup(a):
    a("""v_and_b32 v2, 31, v0
    v_lshrrev_b32 v3, 5, v0
    v_lshlrev_b32 v4, v2, -2
    v_lshlrev_b32 v5, 2, v3
    v_lshrrev_b32 v4, v5, v4
    s_mov_b32 s13, 0xffff""")
    for r in range(16): a(f"v_bfe_i32 v{TM+r}, v4, {(r & 3) + 8 * (r >> 2)}, 1")
    for p in range(8): a(f"v_bfi_b32 v{PM+p}, s13, v{TM+2*p}, v{TM+2*p+1}")
    a(f"v_mov_b32 v{VB}, 0x3f803f80\nv_mov_b32 v{VB+1}, v{VB}")
    for i in range(2, 32, 2): a(f"v_mov_b64 v[{VB+i}:{VB+i+1}], v[{VB}:{VB+1}]")
    a(f"""s_and_b32 s9, s3, 3
    s_lshr_b32 s10, s3, 2
    s_lshl_b32 s11, s9, 12
    s_add_u32 s11, s11, {L_KV}
    s_lshl_b32 s12, s10, 10
    s_add_u32 s12, s12, s11
    v_lshlrev_b32 v4, 4, v0
    v_add_u32 v{AK}, s12, v4
    s_lshl_b32 s12, s10, 8
    s_add_u32 s12, s12, s11
    v_add_u32 v{AV}, s12, v4
    v_and_b32 v5, 15, v0
    v_mul_u32_u24 v5, 528, v5
    s_and_b32 s12, s4, 1
    v_xor_b32 v6, s12, v3
    v_lshl_add_u32 v5, v6, 7, v5
    v_bfe_u32 v6, v0, 4, 1
    v_lshl_add_u32 v5, v6, 4, v5
    s_lshl_b32 s12, s10, 8
    s_lshl_b32 s11, s9, 5
    s_add_u32 s12, s12, s11
    s_add_u32 s12, s12, {L_OS}
    v_add_u32 v{AO}, s12, v5
    s_mul_i32 s12, s3, 1056
    s_add_u32 s12, s12, {L_OS}
    v_mul_u32_u24 v5, 528, v3
    v_lshl_add_u32 v5, v2, 4, v5
    v_add_u32 v{AR}, s12, v5
    v_mul_u32_u24 v5, {OP}, v3
    v_lshl_add_u32 v12, v2, 4, v5""")
    a(f"""s_lshl_b32 s61, s4, 2
    s_add_u32 s61, s61, s9
    s_add_u32 s61, s61, 1
    s_min_u32 s61, s61, 9
    s_mul_i32 s62, s3, {2*OP}
    s_lshr_b32 s11, s4, 3
    s_lshl_b32 s11, s11, 16
    s_add_u32 s62, s62, s11
    s_lshl_b32 s11, s7, 12
    s_add_u32 s62, s62, s11
    s_and_b32 s11, s4, 7
    s_lshl_b32 s11, s11, 9
    s_add_u32 s62, s62, s11
    s_add_u32 s62, s62, {OF}""")
    a("""s_and_b32 s72, s2, 7
    s_lshl_b32 s72, s72, 1
    s_bfe_u32 s11, s2, 0x10003
    s_add_u32 s72, s72, s11
    s_bfe_u32 s73, s2, 0x10004
    s_lshr_b32 s74, s2, 5
    s_mov_b32 s75, 0
    v_lshlrev_b32 v14, 4, v0
    v_lshrrev_b32 v4, 3, v0
    v_lshlrev_b32 v4, 10, v4
    v_bfe_u32 v5, v0, 2, 1
    v_bfe_u32 v6, v0, 4, 1
    v_xor_b32 v5, v5, v6
    v_lshl_add_u32 v4, v5, 6, v4
    v_and_b32 v5, 3, v0
    v_lshl_add_u32 v4, v5, 4, v4
    s_lshl_b32 s11, s3, 16
    s_lshl_b32 s12, s74, 7
    s_add_u32 s11, s11, s12
    v_add_u32 v13, s11, v4""")
    srd(a, sOUT, 30, 512 * 512 * 2)

L_CNT = R[2] + 32512
def signal(a, k):
    a(f"s_mov_b64 exec, 1\nds_add_u32 v{CA}, v{CA+1} offset:{4*k}\ns_mov_b64 exec, -1")
_wn = [0]
def waitcnt_lds(a, k, n):
    _wn[0] += 1; t = f"lw{_wn[0]}"
    if opt("lsleep"):
        a(f"s_branch {t}e\n{t}:\ns_sleep {int(opt('lsleep'))}\n{t}e:\nds_read_b32 v{CA+2}, v{CA} offset:{4*k}\ns_waitcnt lgkmcnt(0)\nv_readfirstlane_b32 s78, v{CA+2}\ns_cmp_lt_u32 s78, {n}\ns_cbranch_scc1 {t}")
    else:
        a(f"{t}:\nds_read_b32 v{CA+2}, v{CA} offset:{4*k}\ns_waitcnt lgkmcnt(0)\nv_readfirstlane_b32 s78, v{CA+2}\ns_cmp_lt_u32 s78, {n}\ns_cbranch_scc1 {t}")
CA = 28

def get_nonce(a, tag, NONCE=None):
    NONCE = NONCE or (127 if tag == "ln" else 16)
    a("s_mov_b32 s15, 0")
    a(f"{tag}_n0:\nv_readfirstlane_b32 s63, v{NONCE}\ns_add_u32 s15, s15, 1\ns_cmp_lg_u32 s63, 0\ns_cbranch_scc1 {tag}_n1")
    a(f"s_cmp_gt_u32 s15, 0x40000\ns_cbranch_scc1 {tag}_n1\ns_sleep 2\nbuffer_load_dword v{NONCE}, off, s[{sDB}:{sDB+3}], 0 sc1\ns_waitcnt vmcnt(0)\ns_branch {tag}_n0")
    a(f"{tag}_n1:")

def ka(a):
    N = NAME
    entry(a, N)
    a(f"""s_getpc_b64 s[10:11]
    {N}_pc:
    s_nop 2
    s_sub_u32 s9, s3, 4
    s_cmp_ge_u32 s9, 3
    s_cbranch_scc1 {N}_npf
    s_lshl_b32 s9, s9, 13
    s_sub_u32 s9, s9, {N}_pc-{N}
    v_lshl_add_u32 v4, v0, 7, s9
    v_ashrrev_i32 v5, 31, v4
    v_add_co_u32 v4, vcc, s10, v4
    v_mov_b32 v6, s11
    s_nop 0
    v_addc_co_u32 v5, vcc, v6, v5, vcc
    global_load_dword v127, v[4:5], off
    {N}_npf:""")
    a("""s_and_b32 s8, s2, 7
    s_lshr_b32 s9, s2, 3
    s_lshr_b32 s10, s8, 1
    s_and_b32 s11, s8, 1
    s_lshl_b32 s4, s10, 2
    s_and_b32 s12, s9, 3
    s_add_u32 s4, s4, s12
    s_lshl_b32 s5, s11, 2
    s_bfe_u32 s13, s9, 0x20002
    s_add_u32 s5, s5, s13
    s_lshr_b32 s6, s9, 4
    s_lshl_b32 s7, s5, 1
    s_add_u32 s7, s7, s6""")
    a(f"v_mov_b32 v8, {L_CNT}\nv_mov_b64 v[4:5], 0\nv_mov_b64 v[6:7], 0\nds_write_b128 v8, v[4:7]\nds_write_b128 v8, v[4:7] offset:16")
    a("s_and_b32 s60, s3, 3")
    if STAG == 1: a("s_lshr_b32 s66, s9, 2\ns_lshl_b32 s13, s12, 1\ns_add_u32 s66, s66, s13")
    elif STAG == 0: a("s_mov_b32 s66, 0")
    else:
        XM = {2: (1, 1), 3: (1, 2), 4: (3, 1), 5: (1, 0), 6: (3, 0)}[STAG]
        a(f"s_lshr_b32 s66, s9, 2\ns_add_u32 s66, s66, s12\ns_and_b32 s66, s66, {XM[0]}\ns_lshl_b32 s66, s66, {XM[1]}")
    a("s_lshl_b32 s64, s8, 2\ns_add_u32 s64, s64, s12\ns_lshr_b32 s65, s9, 2")
    XV, WV, QV, AXV, AA, WG, FP, ACC, XF, PK, ZB = 96, 100, 102, 104, 112, 128, 48, 64, 16, 32, 96
    global CA
    CA = 124
    a(f"""v_lshrrev_b32 v1, 3, v0
    v_and_b32 v2, 7, v0
    v_lshrrev_b32 v3, 4, v0
    v_xor_b32 v2, v2, v3
    v_lshlrev_b32 v2, 4, v2
    s_lshl_b32 s8, s4, 17
    s_lshl_b32 s10, s60, 15
    s_add_u32 s8, s8, s10
    v_lshl_add_u32 v5, v1, 10, v2
    v_add_u32 v{XV}, s8, v5
    v_add_u32 v{XV+1}, 7168, v{XV}
    v_xor_b32 v{XV+1}, 64, v{XV+1}
    v_add_u32 v{XV+2}, 14336, v{XV}
    v_add_u32 v{XV+3}, 14336, v{XV+1}
    v_mul_u32_u24 v5, 3072, v1
    v_bfe_u32 v6, v0, 2, 1
    v_and_b32 v7, 1, v3
    v_xor_b32 v6, v6, v7
    v_lshl_add_u32 v5, v6, 6, v5
    v_and_b32 v7, 3, v0
    v_lshl_add_u32 v5, v7, 4, v5
    s_mul_i32 s8, s60, 49152
    s_lshl_b32 s10, s6, 10
    s_add_u32 s10, s10, s8
    s_lshl_b32 s11, s5, 7
    s_add_u32 s10, s10, s11
    s_add_u32 s10, s10, 1024
    v_add_u32 v{WV}, s10, v5
    v_add_u32 v{WV+1}, 23552, v{WV}
    s_lshl_b32 s14, s60, 12
    s_lshl_b32 s67, s60, 11
    s_waitcnt lgkmcnt(0)""")
    srd(a, sX, 16, 2048 * 512 * 2)
    srd(a, sW, 28, 512 * 1536 * 2)
    SX = f"s[{sX}:{sX+3}]"; SW = f"s[{sW}:{sW+3}]"
    def chunk_idx(n):
        if STAG == 1: a(f"s_add_u32 s9, s66, {n}\ns_and_b32 s9, s9, 7")
        else: a(f"s_xor_b32 s9, s66, {n}")
    pieces = []
    PER = int(opt("per", 1))
    def dma(x):
        a(x)
        for _ in range(PER):
            if pieces: a(pieces.pop(0))
    def issue(u):
        reg = R[u % 5]
        if u < 8:
            chunk_idx(u)
            a(f"s_add_u32 m0, s14, {reg}\ns_lshl_b32 s10, s9, 7\ns_mul_i32 s11, s9, 196608")
            for i in range(4): dma(f"buffer_load_dwordx4 v{XV+i}, {SX}, s10 offen offset:{1024*i} lds")
            a(f"s_add_u32 m0, s67, {reg+16384}\ns_nop 0")
            for i in range(2): dma(f"buffer_load_dwordx4 v{WV+i}, {SW}, s11 offen offset:{1024*i} lds")
            return 6
        if u == 8:
            a(f"s_lshr_b32 s12, s67, 1")
            for n in range(8):
                chunk_idx(n)
                a(f"s_add_u32 m0, s12, {reg+4096*n}\ns_mul_i32 s11, s9, 196608")
                dma(f"buffer_load_dwordx4 v{QV}, {SW}, s11 offen lds")
            return 8
        a(f"s_lshl_b32 s12, s14, 1\ns_movk_i32 s10, {512*(u-9)}")
        for i in range(8):
            if i % 4 == 0: a(f"s_add_u32 m0, s12, {reg+1024*i}\ns_nop 0")
            dma(f"buffer_load_dwordx4 v{AXV+i}, {SX}, s10 offen offset:{1024*(i%4)} lds")
        return 8
    NGU = int(opt("ng", 2))
    a(f"s_cmp_ge_u32 s3, 4\ns_cbranch_scc1 {N}_L")
    for u in range(NGU): issue(u)
    main_lines = a.lines; a.lines = []
    a(".p2align 6")
    a.label(f"{N}_L")
    def late_setup():
        a(f"""v_lshrrev_b32 v5, 2, v0
        v_mul_u32_u24 v5, 3072, v5
        v_lshl_add_u32 v5, v7, 4, v5
        s_lshl_b32 s10, s7, 6
        s_add_u32 s10, s10, s8
        v_add_u32 v{QV}, s10, v5""")
        a(f"""v_and_b32 v1, 31, v0
        v_lshrrev_b32 v2, 5, v0
        v_xor_b32 v5, v1, v2
        v_lshlrev_b32 v5, 4, v5
        v_lshl_add_u32 v5, v2, 17, v5
        s_lshl_b32 s10, s64, 2
        s_add_u32 s10, s10, s60
        s_lshl_b32 s10, s10, 10
        v_add_u32 v5, s10, v5""")
        for n in range(8):
            a(f"v_xor_b32 v{AXV+n}, {32*n}, v5")
            if n: a(f"v_add_u32 v{AXV+n}, {n*2*131072-1024*(n%4)}, v{AXV+n}")
        a(f"""v_and_b32 v5, 15, v0
        v_xor_b32 v5, v5, v2
        v_lshlrev_b32 v5, 4, v5
        v_lshl_add_u32 v5, v1, 9, v5
        s_lshr_b32 s10, s60, 1
        s_lshl_b32 s10, s10, 14
        s_add_u32 s10, s10, {R[4]}
        v_add_u32 v{AA}, s10, v5""")
        for ks in range(1, 8): a(f"v_xor_b32 v{AA+ks}, {32*ks}, v{AA}")
        a(f"v_mov_b32 v{CA}, {L_CNT}\nv_mov_b32 v{CA+1}, 1")
        a("""s_lshl_b32 s10, s65, 5
        v_add_u32 v5, s10, v1
        s_and_b32 s11, s60, 1
        v_lshlrev_b32 v15, 31, v5
        v_or_b32 v15, 1.0, v15
        v_sub_u32 v6, v5, s11
        v_ashrrev_i32 v6, 31, v6
        v_and_b32 v7, 256, v6
        v_or_b32 v5, v5, v7
        v_cvt_f32_u32 v120, v5
        v_mul_f32 v120, 0x3b000000, v120
        s_mul_i32 s11, s11, 0x3e800000
        v_not_b32 v6, v6
        v_and_b32 v121, s11, v6
        v_cvt_f32_u32 v5, v2
        v_mul_f32 v5, 0x41000000, v5
        v_fmac_f32 v121, v5, v120""")
    def gen_pieces():
        a("v_mul_f32 v123, 0x41800000, v120\nv_cos_f32 v123, v123\ns_nop 0\nv_add_f32 v123, v123, v123")
        for ks in range(16):
            r = 16 + 8 * (ks & 1); o_ = 16 + 8 * (1 - (ks & 1))
            for p in range(4):
                x, y = r + 2 * p, r + 2 * p + 1
                if ks < 2:
                    pieces.append(f"v_fmamk_f32 v{x}, v120, {fhex(float(16*ks+2*p))}, v121\nv_add_f32 v{y}, v{x}, v120\nv_cos_f32 v{x}, v{x}\nv_cos_f32 v{y}, v{y}\ns_nop 0\nv_cvt_pk_bf16_f32 v{WG+4*ks+p}, v{x}, v{y}")
                else:
                    pieces.append(f"v_fma_f32 v{x}, v123, v{o_+2*p}, -v{x}\nv_fma_f32 v{y}, v123, v{o_+2*p+1}, -v{y}\nv_cvt_pk_bf16_f32 v{WG+4*ks+p}, v{x}, v{y}")
    def first():
        srd(a, sWS, 38, WS_BYTES)
        srd(a, sDB, 36, 256)
        a(f"s_xor_b32 s9, s60, 3\ns_or_b32 s9, s9, s2\ns_cmp_lg_u32 s9, 0\ns_cbranch_scc1 {N}_nn")
        a(f"v_lshlrev_b32 v4, 8, v0\nv_mov_b32 v5, 0\ns_mov_b32 s9, {FL2}\nbuffer_store_dword v5, v4, {W}, s9 offen sc1")
        a("s_memrealtime s[10:11]\ns_waitcnt vmcnt(0) lgkmcnt(0)\ns_or_b32 s10, s10, 1\nv_mov_b32 v4, s10\ns_mov_b64 exec, 1")
        a(f"buffer_store_dword v4, off, s[{sDB}:{sDB+3}], 0 sc1\ns_mov_b64 exec, -1")
        a.label(f"{N}_nn")
    def touch():
        if opt("notouch"): return
        a(f"s_cmp_lg_u32 s60, 3\ns_cbranch_scc1 {N}_ntt")
        srd(a, sOUT, 34, 2048 * 512 * 2)
        srd(a, sG, 30, 512 * 512 * 2)
        a(f"v_lshlrev_b32 v4, 21, v0\nv_add_u32 v4, 0x1fff80, v4\ns_mov_b64 exec, 63\nbuffer_load_dword v127, v4, {W}, 0 offen sc1\ns_mov_b64 exec, 1")
        a(f"buffer_load_dword v127, off, s[{sOUT}:{sOUT+3}], 0 sc1\nbuffer_load_dword v127, off, s[{sG}:{sG+3}], 0")
        if True: a(f"buffer_load_dword v127, off, s[{sDB}:{sDB+3}], 0 offset:128 sc1")
        a("s_mov_b64 exec, -1")
        a.label(f"{N}_ntt")
    def warm():
        WM = opt("warm", "q")
        if "q" in WM:
            a(f"""s_cmp_lg_u32 s60, 0
            s_cbranch_scc1 {N}_w1
            s_and_b32 s9, s4, 3
            s_lshl_b32 s9, s9, 1
            s_add_u32 s9, s9, s6
            s_mul_i32 s9, s9, 196608
            s_lshl_b32 s10, s5, 7
            s_add_u32 s9, s9, s10
            v_mul_u32_u24 v4, 3072, v0
            buffer_load_dword v127, v4, {SW}, s9 offen
            {N}_w1:""")
        if "x" in WM:
            a(f"""s_cmp_lg_u32 s60, 1
            s_cbranch_scc1 {N}_w2
            s_lshl_b32 s9, s64, 12
            s_lshl_b32 s10, s65, 7
            s_add_u32 s9, s9, s10
            v_lshrrev_b32 v4, 2, v0
            v_lshlrev_b32 v4, 17, v4
            v_and_b32 v5, 3, v0
            v_lshl_add_u32 v4, v5, 10, v4
            buffer_load_dword v127, v4, {SX}, s9 offen
            {N}_w2:""")
        if "o" in WM:
            srd(a, sG, 30, 512 * 512 * 2)
            a(f"""s_cmp_lt_u32 s60, 2
            s_cbranch_scc1 {N}_w3
            s_lshr_b32 s9, s2, 3
            s_lshl_b32 s9, s9, 1
            s_add_u32 s9, s9, s60
            s_sub_u32 s9, s9, 2
            s_lshl_b32 s9, s9, 13
            v_lshlrev_b32 v4, 7, v0
            buffer_load_dword v127, v4, s[{sG}:{sG+3}], s9 offen
            {N}_w3:""")
    def gw_loads():
        srd(a, sG, 32, 1024)
        a(f"""v_lshlrev_b32 v6, 5, v0
        v_and_b32 v6, 1023, v6
        buffer_load_dwordx4 v[56:59], v6, s[{sG}:{sG+3}], 0 offen
        buffer_load_dwordx4 v[60:63], v6, s[{sG}:{sG+3}], 0 offen offset:16""")
    def gate_loads():
        a(f"""s_lshl_b32 s76, s4, 7
        s_lshl_b32 s9, s7, 3
        s_add_u32 s76, s76, s9
        s_lshl_b32 s9, s60, 1
        s_add_u32 s76, s76, s9
        s_lshl_b32 s9, s76, 10
        v_lshlrev_b32 v6, 5, v0
        buffer_load_dwordx4 v[48:51], v6, {SX}, s9 offen
        buffer_load_dwordx4 v[52:55], v6, {SX}, s9 offen offset:16""")
    def gate_comp():
        a("v_mov_b32 v5, 0")
        for i in range(8): a(f"v_dot2c_f32_bf16 v5, v{48+i}, v{56+i}")
        a("v_lshrrev_b32 v6, 5, v0\nv_add_u32 v6, s76, v6\nv_and_b32 v7, 15, v6")
        a("v_add_f32_dpp v5, v5, v5 quad_perm:[1,0,3,2] row_mask:0xf bank_mask:0xf")
        a("v_lshrrev_b32 v6, 4, v6\nv_lshlrev_b32 v7, 9, v7")
        a("v_add_f32_dpp v5, v5, v5 quad_perm:[2,3,0,1] row_mask:0xf bank_mask:0xf")
        a("v_lshl_add_u32 v6, v6, 2, v7\ns_nop 0")
        a("v_add_f32_dpp v5, v5, v5 row_half_mirror row_mask:0xf bank_mask:0xf\ns_nop 1")
        a("v_add_f32_dpp v5, v5, v5 row_mirror row_mask:0xf bank_mask:0xf\ns_nop 1")
        a("v_add_f32_dpp v5, v5, v5 row_bcast:15 row_mask:0xa bank_mask:0xf")
        a(f"v_mul_f32 v5, {fhex(-math.log2(math.e))}, v5\nv_exp_f32 v5, v5\ns_nop 0\nv_add_f32 v5, 1.0, v5\nv_rcp_f32 v5, v5")
        a("s_mov_b32 exec_lo, 0x80000000\ns_mov_b32 exec_hi, 0x80000000")
        a(f"s_mov_b32 s76, {GF}\nbuffer_store_dword v5, v6, {W}, s76 offen sc1\ns_mov_b64 exec, -1")
    def flush(k):
        for _ in range(k):
            if pieces: a(pieces.pop(0))
    if opt("lfast"):
        a('s_barrier')
        warm()
        WORK = {0: [first, touch, gw_loads, late_setup, gen_pieces, lambda: flush(int(opt("pre", 0)))], 9: [lambda: flush(1000)]}
    else:
        first(); late_setup(); gen_pieces()
        a('s_barrier')
        warm()
        WORK = {0: [touch, gw_loads, lambda: flush(int(opt("pre", 0)))], 9: [lambda: flush(1000)]}
    WORK[int(opt("asat", 0))] = WORK.get(int(opt("asat", 0)), []) + [lambda: att_setup(a)]
    SCHED = eval(opt("sched", "[[2],[3,4],[],[5],[6],[7],[],[8],[9],[10]]"))
    cnt = {}; issued = []
    for n in range(10):
        if n == 9:
            waitcnt_lds(a, 0, 8)
            gate_loads()
        for u in SCHED[n]:
            assert u < 5 or u - 5 <= min(n, 7) - 3 or n == 9, (u, n)
            cnt[u] = issue(u); issued.append(u)
        for f in WORK.get(n, []): f()
        if n == 7: continue
        younger = sum(cnt[u] for u in issued if u > (7 if n == 6 else n)) if n < 9 else 8 * len([u for u in SCHED[9] if u > 9]) + (2 if 9 not in SCHED[9] else 0)
        if n >= NGU: a(f"s_waitcnt vmcnt({younger})")
        if n < NGU: pass
        elif n < 8: a("s_barrier")
        else: signal(a, (0, 5)[n - 8])
        if opt("p1st") and 1 <= n <= 7: stamp(a, n, True)
        if n == 6: stamp(a, 2)
        if n == 8: stamp(a, 3)
    def ard(s):
        F = XF + 4 * (s & 7)
        a(f"ds_read_b128 v[{F}:{F+3}], v{AA+(s&7)} offset:{256*((s>>3)&1)}")
        if 8 <= s < 16: a(f"v_subrev_u32 v{AA+(s&7)}, {R[4]-R[0]}, v{AA+(s&7)}")
    for half in range(2):
        if half == 0: waitcnt_lds(a, 5, 4)
        else:
            a("s_waitcnt vmcnt(0)")
            signal(a, 1)
            waitcnt_lds(a, 1, 4)
            stamp(a, 4)
        b = 16 * half
        for s in range(b, b + 6): ard(s)
        for s in range(b, b + 16):
            a(f"s_waitcnt lgkmcnt({min(5, b+15-s)})")
            c = vr(ACC + 16 * (s >> 4), 16)
            a(f"{MF} {c}, {vr(XF+4*(s&7),4)}, {vr(WG+4*(s&15),4)}, {'0' if (s & 15) == 0 else c}")
            if s + 6 < b + 16: ard(s + 6)
    a(f"""s_and_b32 s9, s60, 1
    s_lshl_b32 s9, s9, 12
    s_lshr_b32 s10, s60, 1
    s_lshl_b32 s11, s10, 11
    s_add_u32 s9, s9, s11
    s_add_u32 s9, s9, {L_ZX}
    v_add_u32 v2, s9, v14
    s_lshl_b32 s12, s60, 10
    s_add_u32 s12, s12, {L_QB}
    v_add_u32 v1, s12, v14""")
    a.nop(2)
    for i in range(16): a(f"v_fmac_f32 v{ACC+i}, v{ACC+16+i}, v15")
    for i in range(8): a(f"v_cvt_pk_bf16_f32 v{PK+i}, v{ACC+2*i}, v{ACC+2*i+1}")
    a(f"ds_write_b128 v2, v[{PK}:{PK+3}]\nds_write_b128 v2, v[{PK+4}:{PK+7}] offset:1024")
    signal(a, 2)
    gate_comp()
    a(f"v_mov_b32 v28, {L_CNT}")
    CA = 28
    for i in range(0, 16, 2): a(f"v_mov_b64 v[{CN+i}:{CN+i+1}], 0")
    waitcnt_lds(a, 3, 4)
    a(f"ds_read_b128 v[{QA}:{QA+3}], v1")
    a("s_branch att_body2")
    a.label(f"{N}_end")
    a("s_endpgm")

    XR, WR, ACC, PK = 128, 96, 64, 32
    XA, WA = 8, 12
    CA = 28
    l_lines = a.lines; a.lines = main_lines
    a.label(f"{N}_comp")
    a(f"""v_and_b32 v1, 31, v0
    v_lshrrev_b32 v2, 5, v0
    v_bfe_u32 v3, v0, 1, 3
    v_xor_b32 v3, v3, v2
    v_lshlrev_b32 v3, 4, v3
    v_lshl_add_u32 v3, v1, 7, v3
    s_lshl_b32 s9, s3, 12
    v_add_u32 v{XA}, s9, v3""")
    for ks in range(1, 4): a(f"v_xor_b32 v{XA+ks}, {32*ks}, v{XA}")
    a(f"""v_bfe_u32 v4, v0, 2, 2
    v_lshl_add_u32 v5, v2, 3, v4
    v_bfe_u32 v6, v0, 4, 1
    v_lshlrev_b32 v6, 5, v6
    v_and_b32 v7, 3, v0
    v_lshl_add_u32 v6, v7, 3, v6
    v_lshl_add_u32 v14, v5, 6, v6
    v_add_u32 v14, {R[3]}, v14
    v_lshl_add_u32 v5, v5, 7, v6
    v_lshrrev_b32 v4, 1, v4
    v_lshl_add_u32 v{WA}, v4, 6, v5
    v_xor_b32 v{WA+1}, 64, v{WA}""")
    a(f"v_mov_b32 v{CA}, {L_CNT}\nv_mov_b32 v{CA+1}, 1")
    a("s_waitcnt lgkmcnt(0)")
    srd(a, sWS, 38, WS_BYTES)
    srd(a, sDB, 36, 256)
    a(f"""s_lshl_b32 s8, s5, 7
    s_lshl_b32 s9, s4, 2
    s_add_u32 s8, s8, s9
    s_add_u32 s8, s8, s3
    s_lshl_b32 s8, s8, 12
    s_lshl_b32 s9, s6, 11
    s_add_u32 s8, s8, s9
    s_add_u32 s60, s8, 262144
    s_lshl_b32 s77, s4, 4
    s_add_u32 s77, s77, s7
    s_lshl_b32 s77, s77, 2
    s_add_u32 s77, s77, s3
    s_lshl_b32 s77, s77, 8
    s_add_u32 s77, s77, {FL1}
    v_lshlrev_b32 v15, 4, v0""")
    a(f"""s_mul_i32 s66, s3, 3
    s_lshl_b32 s67, s4, 2
    s_add_u32 s66, s66, s67
    s_sub_u32 s66, s66, 8
    v_lshrrev_b32 v4, 1, v0
    v_add_u32 v4, s66, v4
    v_ashrrev_i32 v5, 31, v4
    v_mov_b32 v6, s67
    v_bfi_b32 v4, v5, v6, v4
    v_lshrrev_b32 v5, 2, v4
    v_lshlrev_b32 v5, 6, v5
    v_and_b32 v6, 3, v4
    v_and_b32 v7, 1, v0
    v_lshl_add_u32 v6, v7, 2, v6
    s_lshl_b32 s11, s5, 3
    v_add3_u32 v5, v5, v6, s11
    v_lshlrev_b32 v18, 8, v5""")
    a(f"s_cmp_eq_u32 s6, 1\ns_cbranch_scc1 {N}_V")
    def p1(swap):
        naddr = [XA + i for i in range(4)] + [WA, WA + 1]
        def rds(s):
            ks = s & 3; F = WR + 8 * ks
            o = [f"ds_read_b128 v[{XR+4*s}:{XR+4*s+3}], v{XA+ks}"]
            for nt in range(2):
                for h in range(2): o.append(f"ds_read_b64_tr_b16 v[{F+4*nt+2*h}:{F+4*nt+2*h+1}], v{WA+nt} offset:{16384+2048*ks+512*h}")
            return o
        a(f"s_barrier\ns_waitcnt vmcnt({6*(NGU-1)})")
        signal(a, 6); waitcnt_lds(a, 6, 4)
        if opt("p1st"): stamp(a, 1, True)
        stamp(a, 1)
        for x in rds(0) + rds(1): a(x)
        for s in range(32):
            ks = s & 3; c = s >> 2
            a(f"s_waitcnt lgkmcnt({5 if s < 31 else 0})")
            r = rds(s + 2) if s < 30 else []
            for nt in range(2):
                x = vr(XR + 4 * s, 4); w = vr(WR + 8 * ks + 4 * nt, 4); cc = vr(ACC + 16 * nt, 16)
                ci = "0" if s == 0 else cc
                a(f"{MF} {cc}, {w}, {x}, {ci}" if swap else f"{MF} {cc}, {x}, {w}, {ci}")
                if nt == 0 and ks == 2 and c < 7:
                    d = R[(c + 1) % 5] - R[c % 5]
                    for x_ in naddr: a(f"v_add_u32 v{x_}, {d}, v{x_}" if d > 0 else f"v_subrev_u32 v{x_}, {-d}, v{x_}")
                    if c == 5: a(f"buffer_load_dword v{NONCE}, off, s[{sDB}:{sDB+3}], 0 sc1")
                    if c + 1 < NGU:
                        a(f"s_waitcnt vmcnt({6*(NGU-2-c)})")
                        signal(a, 6); waitcnt_lds(a, 6, 4 * (c + 2))
                    else:
                        if opt("p1st"): stamp(a, c + 1, True)
                        if c < 6: a("s_barrier")
                for x_ in (r[:3] if nt == 0 else r[3:]): a(x_)
    p1(True)
    a(f"s_branch {N}_p1d")
    if opt("lpos", "end") == "mid": a.lines += l_lines
    a.label(f"{N}_V")
    p1(False)
    a.label(f"{N}_p1d")
    stamp(a, 2)
    a("s_waitcnt vmcnt(0)")
    get_nonce(a, "gm")
    a.nop(6)
    for nt in range(2):
        for i in range(8): a(f"v_cvt_pk_bf16_f32 v{PK+8*nt+i}, v{ACC+16*nt+2*i}, v{ACC+16*nt+2*i+1}")
        for h in range(2): a(f"buffer_store_dwordx4 v[{PK+8*nt+4*h}:{PK+8*nt+4*h+3}], v15, {W}, s{(8,60)[nt]} offen offset:{1024*h} sc1")
    signal(a, 0)
    a("""s_lshr_b32 s9, s3, 1
    s_lshl_b32 s9, s9, 3
    v_bfe_u32 v120, v0, 1, 3
    v_add_u32 v120, s9, v120
    v_cvt_f32_u32 v120, v120
    v_and_b32 v121, 1, v0
    v_lshrrev_b32 v6, 5, v0
    v_sub_u32 v121, v121, v6
    v_cvt_f32_i32 v121, v121
    v_mul_f32 v121, 0x3e800000, v121
    v_bfe_u32 v6, v0, 4, 1
    v_lshlrev_b32 v6, 9, v6
    s_lshl_b32 s9, s64, 2
    v_add_u32 v6, s9, v6
    v_cvt_f32_u32 v6, v6
    v_mul_f32 v122, 0x3a000000, v120
    v_fmac_f32 v121, v6, v122
    v_mul_f32 v120, 0x3d800000, v120""")
    for u in range(4):
        for p in range(4):
            c0 = (2 * p & 3) + 8 * (p >> 1)
            pre = "v_add_f32 v121, v121, v122\n" if (u and p == 0) else ""
            a(pre + f"v_fmamk_f32 v4, v120, {fhex(float(c0))}, v121\nv_add_f32 v5, v4, v120\nv_cos_f32 v4, v4\nv_cos_f32 v5, v5\ns_nop 0\nv_cvt_pk_bf16_f32 v{FP+4*u+p}, v4, v5")
    FLAGAT = int(opt("flagat", 8))
    if FLAGAT < 0:
        a(f"s_waitcnt vmcnt(0)\ns_mov_b64 exec, 1\nbuffer_store_dword v{NONCE}, off, {W}, s77 sc1\ns_mov_b64 exec, -1")
        stamp(a, 3)
    waitcnt_lds(a, 0, 8)
    KP = f"v_mov_b32 v19, 0\nbuffer_atomic_add v19, v18, {W}, s76 offen sc0 sc1"
    POLLAT = int(opt("pollat", 31))
    def qrd(s):
        F = WR + 4 * (s & 7)
        for h in range(2): a(f"ds_read_b64_tr_b16 v[{F+2*h}:{F+2*h+1}], v14 offset:{1024*s+256*h}")
    for s in range(6): qrd(s)
    for s in range(32):
        a(f"s_waitcnt lgkmcnt({2*min(5, 31-s)})")
        a(f"{MF} {vr(ACC,16)}, {vr(WR+4*(s&7),4)}, {vr(XR+4*s,4)}, {'0' if s == 0 else vr(ACC,16)}")
        if s + 6 < 32: qrd(s + 6)
        if s == FLAGAT:
            a(f"s_waitcnt vmcnt(0)\ns_mov_b64 exec, 1\nbuffer_store_dword v{NONCE}, off, {W}, s77 sc1\ns_mov_b64 exec, -1")
            stamp(a, 3)
        if s == POLLAT: a(f"s_mov_b32 s76, {FL1}\ns_mov_b64 exec, 63\n{KP}\ns_mov_b64 exec, -1")
    a(f"""s_lshl_b32 s9, s3, 10
    s_add_u32 s9, s9, {L_QB}
    v_add_u32 v4, s9, v15""")
    a.nop(9)
    for i in range(16): a(f"v_mul_f32 v{ACC+i}, {fhex(QSCALE)}, v{ACC+i}")
    for i in range(8): a(f"v_cvt_pk_bf16_f32 v{QA+i}, v{ACC+2*i}, v{ACC+2*i+1}")
    a(f"ds_write_b128 v4, v[{QB}:{QB+3}]")
    a("s_mov_b32 s15, 0\ns_mov_b64 exec, 63")
    a(f"gm_poll:\ns_add_u32 s15, s15, 1\ns_waitcnt vmcnt(0)\nv_cmp_ne_u32 vcc, s63, v19")
    a(f"s_cmp_gt_u32 s15, 0x40000\ns_cbranch_scc1 gm_polled\ns_cbranch_vccz gm_polled\ns_sleep {PSLEEP}")
    a(f"{KP}\ns_branch gm_poll")
    a("gm_polled:\ns_mov_b64 exec, -1")
    stamp(a, 4)
    a(f"s_mul_i32 s12, s3, 12288\ns_lshl_b32 s13, s7, 6")
    for t in range(3):
        a(f"s_add_u32 s11, s66, {t}\ns_cmp_lt_i32 s11, 0\ns_cselect_b32 s11, s67, s11\ns_add_u32 s11, s11, s13\ns_lshl_b32 s11, s11, 12")
        a(f"s_add_u32 m0, s12, {L_KV + 4096*t}\ns_nop 0")
        for i in range(4): a(f"buffer_load_dwordx4 v15, {W}, s11 offen offset:{1024*i} sc1 lds")
    att_setup(a)
    a(f"""s_lshl_b32 s9, s74, 1
    s_lshr_b32 s10, s3, 1
    s_add_u32 s9, s9, s10
    s_sub_u32 s10, 15, s9
    s_min_u32 s10, s10, s9
    v_and_b32 v5, 1, v0
    v_add_u32 v5, s10, v5
    v_and_b32 v5, 7, v5
    v_lshrrev_b32 v6, 1, v0
    v_lshl_add_u32 v5, v6, 3, v5
    v_lshlrev_b32 v18, 8, v5
    s_and_b32 s79, s3, 1
    s_lshl_b32 s79, s79, 15
    s_add_u32 s79, s79, {FL3}""")
    for i in range(0, 16, 2): a(f"v_mov_b64 v[{CN+i}:{CN+i+1}], 0")
    a(f"s_lshl_b32 s77, s64, 3\ns_add_u32 s77, s77, s65\ns_lshl_b32 s77, s77, 8\ns_lshl_b32 s9, s3, 2\ns_add_u32 s77, s77, s9\ns_add_u32 s77, s77, {FL3}")
    a(f"""v_lshrrev_b32 v4, 5, v0
    v_lshlrev_b32 v3, 12, v4
    v_bfe_u32 v5, v0, 4, 1
    v_lshl_add_u32 v3, v5, 9, v3
    v_and_b32 v6, 15, v0
    v_lshl_add_u32 v3, v6, 4, v3
    s_lshr_b32 s10, s3, 1
    s_and_b32 s9, s3, 1
    s_lshl_b32 s9, s9, 8
    s_add_u32 s11, s9, {L_ZX}
    v_add_u32 v3, s11, v3
    v_lshrrev_b32 v4, 4, v0
    v_mul_u32_u24 v4, {2*32*TP}, v4
    v_lshl_add_u32 v5, v6, 4, v4
    s_lshl_b32 s11, s65, 9
    s_add_u32 s9, s9, s11
    v_add_u32 v5, s9, v5
    s_mul_i32 s10, s10, {8*32*TP}
    s_mul_i32 s11, s64, {TP}
    s_add_u32 s10, s10, s11
    s_add_u32 s10, s10, {TF}
    s_add_u32 s11, s10, {32*TP}""")
    for i in range(0, 16, 2): a(f"v_mov_b64 v[{ZB+i}:{ZB+i+1}], 0")
    waitcnt_lds(a, 2, 4)
    a("s_cmp_eq_u32 s9, 0\ns_cselect_b32 exec_hi, 0xfffefffe, -1")
    def step1():
        for u in range(4): a(f"{MF16} {vr(ACC+4*u,4)}, {vr(FP+4*u,4)}, {vr(ZB+4*u,4)}, 0")
        a.nop(5)
        for r2 in range(2):
            for u in range(4): a(f"v_cvt_pk_bf16_f32 v{PK+4*r2+u}, v{ACC+4*u+2*r2}, v{ACC+4*u+2*r2+1}")
    for u in range(4): a(f"ds_read_b128 v[{ZB+4*u}:{ZB+4*u+3}], v3 offset:{1024*u}")
    a("s_waitcnt lgkmcnt(0)\ns_mov_b64 exec, -1")
    step1()
    a(f"buffer_store_dwordx4 v[{PK}:{PK+3}], v5, {W}, s10 offen sc1\nbuffer_store_dwordx4 v[{PK+4}:{PK+7}], v5, {W}, s11 offen sc1")
    a("s_waitcnt vmcnt(2)")
    signal(a, 3)
    a(f"s_cmp_lg_u32 s9, 0\ns_cbranch_scc1 {N}_nsp")
    a("s_mov_b32 exec_hi, 0")
    for u in range(4): a(f"ds_read_b128 v[{ZB+4*u}:{ZB+4*u+3}], v3 offset:{4096+1024*u}")
    a("s_mov_b64 exec, -1\nv_add_u32 v6, 4096, v4\ns_waitcnt lgkmcnt(0)")
    step1()
    a("s_mov_b32 exec_lo, 0x00010001\ns_mov_b32 exec_hi, 0x00010001")
    a(f"buffer_store_dwordx4 v[{PK}:{PK+3}], v6, {W}, s10 offen sc1\nbuffer_store_dwordx4 v[{PK+4}:{PK+7}], v6, {W}, s11 offen sc1")
    a("s_mov_b64 exec, -1")
    a.label(f"{N}_nsp")
    waitcnt_lds(a, 3, 4)

    a.label("att_body2")
    stamp(a, 5)
    q = vr(QA, 4); cn = vr(CN, 16); o = vr(O, 16); m = 3
    kslot = {8: 0, 0: 1}; vslot = {8: 0, 0: 1}
    for n in range(7): kslot[7 - n] = (2 + n) & 3; vslot[7 - n] = (2 + n) & 3
    kf = lambda j: vr(KRG + 4 * kslot[j], 4)
    vf = lambda j, ks: vr(VB + 8 * vslot[j] + 4 * ks, 4)
    def krd(j): a(f"ds_read_b128 {kf(j)}, v{AK} offset:{4096*j}")
    def vrd(js):
        a("s_mov_b64 exec, s[12:13]")
        for j in js:
            for ks in range(2): a(f"ds_read_b128 {vf(j,ks)}, v{AV} offset:{4096*j+2048+1024*ks}")
        a("s_mov_b64 exec, -1")
    def wo_dma():
        a(f"s_add_u32 m0, s75, s8\ns_lshl_b32 s9, s75, 3\nbuffer_load_dwordx4 v13, s[{sOUT}:{sOUT+3}], s9 offen lds\ns_add_u32 s75, s75, 1024")
    TPL = f"s_mov_b32 exec_hi, 0\nbuffer_load_dwordx4 v[24:27], v18, {W}, s79 offen sc1\ns_mov_b64 exec, -1"
    TCHK = "s_mov_b32 exec_hi, 0\nv_xor_b32 v24, s63, v24\nv_xor_b32 v25, s63, v25\nv_xor_b32 v26, s63, v26\nv_xor_b32 v27, s63, v27\nv_or3_b32 v24, v24, v25, v26\nv_or_b32 v24, v24, v27\nv_cmp_ne_u32 vcc, 0, v24\ns_mov_b64 exec, -1"
    a(f"""s_mov_b32 s12, 0xffff
    s_mov_b32 s13, 0xffff
    s_mov_b32 s15, 0
    s_lshl_b32 s8, s3, 13
    s_add_u32 s8, s8, {R[3]}""")
    a.label("att_retry")
    for j in (8, 0, 7, 6): krd(j)
    vrd((8, 0, 7))
    PR = opt("prio", "a")
    if PR == "a": a("s_setprio 3")
    if PR == "b": a("s_cmp_lt_u32 s3, 4\ns_cbranch_scc1 att_np\ns_setprio 1\natt_np:")
    a("s_waitcnt lgkmcnt(7)\ns_nop 0")
    a(f"{MF} {vr(SB,16)}, {kf(8)}, {q}, {cn}")
    a(f"{MF} {vr(SC_,16)}, {kf(0)}, {q}, {cn}")
    a(f"{MF} {vr(SA,16)}, {kf(7)}, {q}, {cn}")
    wo_dma()
    a("s_cmp_lg_u32 s61, 9")
    a.nop(5)
    a("s_cbranch_scc1 att_no0a")
    for i in range(16): a(f"v_bfi_b32 v{SB+i}, v{TM+i}, v{SC_+i}, v{SB+i}")
    a.label("att_no0a")
    for i in range(16): a(f"v_exp_f32 v{SB+i}, v{SB+i}")
    for i in range(8): a(f"v_cvt_pk_bf16_f32 v{P+i}, v{SB+2*i}, v{SB+2*i+1}")
    for i in range(8): a(f"v_and_b32 v{P+8+i}, v{PM+i}, v{P+i}")
    for i in range(8): a(f"v_xor_b32 v{P+i}, v{P+8+i}, v{P+i}")
    a("s_waitcnt lgkmcnt(0)\ns_cmp_lg_u32 s61, 9")
    a(f"{MF} {o}, {vf(8,0)}, {vr(P,4)}, 0")
    a(f"{MF} {o}, {vf(8,1)}, {vr(P+4,4)}, {o}")
    a("s_cbranch_scc1 att_no0b")
    a(f"{MF} {o}, {vf(0,0)}, {vr(P+8,4)}, {o}")
    a(f"{MF} {o}, {vf(0,1)}, {vr(P+12,4)}, {o}")
    a.label("att_no0b")
    a("s_cmp_ge_u32 s3, 4\ns_cbranch_scc1 att_nof3")
    a(f"v_mov_b32 v4, s63\ns_waitcnt vmcnt(1)\ns_mov_b64 exec, 1\nbuffer_store_dword v4, off, {W}, s77 sc1\ns_mov_b64 exec, -1")
    a.label("att_nof3")
    a("s_cmp_eq_u32 s61, 1\ns_cbranch_scc1 att_done")
    S = [SA, SB]
    for n in range(7):
        j = 7 - n
        s = S[n & 1]; p = P + 8 * (n & 1)
        if PR == "a" and n in (1, 3, 5): a(f"s_setprio {2 - n // 2}")
        if PR == "c" : a(f"s_setprio {(3,2,2,1,1,0,0)[n]}")
        if n < 6:
            a(f"{MF} {vr(S[(n+1)&1],16)}, {kf(j-1)}, {q}, {cn}")
            if n < 5: krd(j - 2)
            vrd((j - 1,))
        if n < 3 and (not opt('wo1')): wo_dma()
        for i in range(8): a(f"v_exp_f32 v{s+i}, v{s+i}")
        for i in range(4): a(f"v_cvt_pk_bf16_f32 v{p+i}, v{s+2*i}, v{s+2*i+1}")
        for i in range(8, 10): a(f"v_exp_f32 v{s+i}, v{s+i}")
        a(f"{MF} {o}, {vf(j,0)}, {vr(p,4)}, {o}")
        if n < 4 or not (not opt('wo1')): wo_dma()
        for i in range(10, 16): a(f"v_exp_f32 v{s+i}, v{s+i}")
        for i in range(4, 8): a(f"v_cvt_pk_bf16_f32 v{p+i}, v{s+2*i}, v{s+2*i+1}")
        a(f"s_cmp_eq_u32 s61, {n+2}\ns_waitcnt lgkmcnt(0)")
        a(f"{MF} {o}, {vf(j,1)}, {vr(p+4,4)}, {o}")
        if n < 6 and not opt("nobr"): a("s_cbranch_scc1 att_done")
    a.label("att_done")
    a(f"s_nop 0\ns_mov_b32 s14, {fhex(0.0 if FORCEFB else 2.0**90)}\nv_mov_b32 v6, 0")
    a(f"""s_lshl_b32 s101, s3, 3
    s_bfe_u32 s9, s4, 0x10003
    s_lshl_b32 s9, s9, 2
    s_add_u32 s101, s101, s9
    s_and_b32 s9, s7, 3
    s_add_u32 s101, s101, s9
    s_lshl_b32 s101, s101, 8
    s_add_u32 s101, s101, {FL2}""")
    a.nop(1)
    a(f"v_rcp_f32 v4, v{O+8}\nv_mov_b32 v7, v{O+8}")
    for i in range(8): a(f"v_fmac_f32 v7, v{O+i}, v6")
    a("v_add_f32 v7, v7, v4\nv_cmp_nge_f32 vcc, s14, v7\ns_cbranch_vccnz att_fb")
    a.label("att_fin")
    for i in range(8): a(f"v_mul_f32 v{O+i}, v{O+i}, v4")
    for i in range(4): a(f"v_cvt_pk_bf16_f32 v{P+i}, v{O+2*i}, v{O+2*i+1}")
    a(f"ds_write_b128 v{AO}, v[{P}:{P+3}]")
    stamp(a, 6)
    a.label("att_wo")
    a("s_cmp_ge_u32 s75, 8192\ns_cbranch_scc1 att_wo2")
    wo_dma()
    a("s_branch att_wo")
    a.label("att_wo2")
    a(f"s_setprio 0\nv_mov_b32 v4, 1\ns_waitcnt vmcnt(0)\ns_cmp_lt_u32 s3, 4\ns_cbranch_scc0 att_nt\n{TPL}\natt_nt:")
    a(f"s_waitcnt lgkmcnt(0)\ns_barrier\nds_read_b128 v[{P}:{P+3}], v{AR}\ns_waitcnt lgkmcnt(0)")
    a(f"buffer_store_dwordx4 v[{P}:{P+3}], v12, {W}, s62 offen sc1")
    def flag2(n): a(f"s_waitcnt vmcnt({n})\ns_mov_b64 exec, 1\nbuffer_atomic_add v4, off, {W}, s101 sc1\ns_mov_b64 exec, -1")
    a("s_cmp_lt_u32 s3, 4\ns_cbranch_scc1 out_comp")
    a(f"""s_sub_u32 s60, s3, 4
    s_lshr_b32 s9, s72, 1
    s_lshl_b32 s9, s9, 3
    s_lshl_b32 s10, s73, 2
    s_add_u32 s9, s9, s10
    s_add_u32 s9, s9, s60
    s_lshl_b32 s9, s9, 8
    s_add_u32 s9, s9, {FL2}
    s_mul_i32 s8, s72, {OP}
    s_lshl_b32 s10, s73, 16
    s_add_u32 s8, s8, s10
    s_lshl_b32 s10, s60, 12
    s_add_u32 s8, s8, s10
    s_add_u32 s8, s8, {OF}
    s_mov_b32 s15, 0""")
    flag2(0)
    a("s_mov_b64 exec, 1")
    PA = lambda r: f"v_mov_b32 v{r}, 0\nbuffer_atomic_add v{r}, off, {W}, s9 sc0 sc1"
    if opt("pp"):
        g = int(opt("pp"))
        a(f"{PA(6)}\ns_sleep {g}\no_poll:")
        for x, y in ((7, 6), (6, 7)):
            a(f"{PA(x)}\ns_waitcnt vmcnt(1)\nv_cmp_gt_u32 vcc, 32, v{y}\ns_add_u32 s15, s15, 1\ns_cbranch_vccz o_polled")
        a("s_cmp_lt_u32 s15, 0x80000\ns_cbranch_scc1 o_poll")
    else:
        a(f"o_poll:\n{PA(6)}\ns_add_u32 s15, s15, 1\ns_waitcnt vmcnt(0)\nv_cmp_gt_u32 vcc, 32, v6")
        a(f"s_cmp_gt_u32 s15, 0x40000\ns_cbranch_scc1 o_polled\ns_cbranch_vccz o_polled\ns_sleep {int(opt('psleep2', 0))}\ns_branch o_poll")
    a("o_polled:\ns_mov_b64 exec, -1")
    stamp(a, 7)
    def oissue(c):
        a(f"s_add_u32 m0, s10, {R[1] + 16384*c}")
        a("s_add_u32 s8, s8, 16384" if c else "s_nop 0")
        for i in range(4): a(f"buffer_load_dwordx4 v14, {W}, s8 offen offset:{1024*i} sc1 lds")
    for c in range(4): oissue(c)
    for c in range(4): a(f"s_waitcnt vmcnt({12-4*c})\ns_barrier")
    stamp_out(a, 0)
    a("s_endpgm")
    AB, AY, FR = 64, 80, 192
    a.label("out_comp")
    a("s_lshr_b32 s66, s3, 1\ns_and_b32 s67, s3, 1")
    srd(a, sOUT, 34, 2048 * 512 * 2)
    a(f"""v_and_b32 v1, 31, v0
    v_lshrrev_b32 v2, 5, v0
    s_lshl_b32 s9, s67, 5
    s_lshl_b32 s10, s73, 6
    s_add_u32 s9, s9, s10
    v_add_u32 v3, s9, v1
    v_bfe_u32 v9, v0, 3, 2
    v_lshlrev_b32 v6, 9, v9
    v_and_b32 v9, 1, v9
    v_xor_b32 v9, v9, v2
    v_lshl_add_u32 v6, v9, 7, v6
    v_and_b32 v9, 7, v0
    v_lshl_add_u32 v6, v9, 4, v6
    s_lshl_b32 s9, s67, 11
    s_add_u32 s9, s9, {R[1]}
    v_add_u32 v6, s9, v6
    v_bfe_u32 v9, v0, 2, 2
    v_lshl_add_u32 v7, v2, 2, v9
    v_lshlrev_b32 v7, 7, v7
    v_lshrrev_b32 v9, 1, v9
    v_xor_b32 v9, s66, v9
    v_lshl_add_u32 v7, v9, 6, v7
    v_and_b32 v9, 1, v0
    v_lshl_add_u32 v7, v9, 5, v7
    v_bfe_u32 v9, v0, 4, 1
    v_lshl_add_u32 v7, v9, 4, v7
    v_bfe_u32 v9, v0, 1, 1
    v_lshl_add_u32 v7, v9, 3, v7
    v_add_u32 v7, {R[3]}, v7
    v_bfe_u32 v9, v0, 2, 1
    v_lshlrev_b32 v8, 4, v9
    v_and_b32 v9, 3, v0
    v_add_u32 v8, v8, v9
    v_bfe_u32 v9, v0, 3, 2
    v_lshl_add_u32 v8, v9, 2, v8
    s_lshl_b32 s9, s66, 5
    s_lshl_b32 s10, s74, 6
    s_add_u32 s9, s9, s10
    v_add_u32 v8, s9, v8
    v_sub_u32 v9, 512, v8
    s_sub_u32 s12, 16, s72
    s_and_b32 s12, s12, 15
    s_cmp_ge_u32 s74, 4
    s_cselect_b32 s12, s12, s72
    s_cselect_b32 s13, -1, 0
    v_bfi_b32 v8, s13, v9, v8
    v_lshlrev_b32 v8, 4, v8
    v_mul_u32_u24 v9, {TP}, v2
    v_add_u32 v8, v8, v9
    s_lshl_b32 s12, s12, 1
    s_add_u32 s12, s12, s67
    s_mul_i32 s12, s12, {16*TP}
    s_add_u32 s12, s12, {TF}
    s_lshl_b32 s9, s3, 12
    v_add_u32 v29, s9, v14
    v_xor_b32 v30, 4096, v29
    v_lshlrev_b32 v28, 14, v3
    v_lshl_add_u32 v28, v2, 5, v28
    s_lshl_b32 s14, s72, 10
    s_lshl_b32 s10, s74, 7
    s_add_u32 s14, s14, s10
    s_lshl_b32 s10, s66, 6
    s_add_u32 s14, s14, s10
    v_lshlrev_b32 v5, 2, v3
    s_lshl_b32 s11, s72, 9
    s_add_u32 s11, s11, {GF}
    s_mov_b32 s15, 0""")
    ab = vr(AB, 16); ay = vr(AY, 16)
    AZ = 224
    FG0 = len(a.lines)
    a("""s_cmp_eq_u32 s72, 0
    s_cselect_b32 s9, 1, 0
    s_add_u32 s9, s9, 127
    s_lshl_b32 s10, s67, 4
    v_add_u32 v15, s10, v2
    v_cvt_f32_u32 v15, v15
    v_mul_f32 v15, 4.0, v15""")
    for seq in range(2):
        a(f"""v_xor_b32 v13, {32*seq}, v3
        v_sub_u32 v10, s9, v13
        v_and_b32 v10, 127, v10
        v_bfi_b32 v10, s13, v10, v13
        v_cvt_f32_u32 v10, v10
        v_mul_f32 v10, 0x3c000000, v10
        v_mul_f32 v11, v15, v10
        v_mul_f32 v12, 0x41000000, v10
        v_cos_f32 v12, v12
        s_nop 0
        v_add_f32 v12, v12, v12""")
        for k in range(8):
            r = 112 + 8 * (k & 1); o_ = 112 + 8 * (1 - (k & 1))
            for u in range(4):
                x, y = r + 2 * u, r + 2 * u + 1
                if k < 2: a(f"v_fmamk_f32 v13, v10, {fhex(float(8*k+u))}, v11\nv_cos_f32 v{x}, v13\nv_sin_f32 v{y}, v13\ns_nop 0")
                else: a(f"v_fma_f32 v{x}, v12, v{o_+2*u}, -v{x}\nv_fma_f32 v{y}, v12, v{o_+2*u+1}, -v{y}")
                a(f"v_cvt_pk_bf16_f32 v{FREG[8*seq+k]+u}, v{x}, v{y}")
    fgl = a.lines[FG0:]; del a.lines[FG0:]
    FCUT = int(opt("fcut", 70))
    a.lines += fgl[:FCUT]
    flag2(0)
    stamp(a, 7)
    a(f"t_poll:\n{TCHK}")
    a(f"s_add_u32 s15, s15, 1\ns_cmp_gt_u32 s15, 0x40000\ns_cbranch_scc1 t_polled\ns_cbranch_vccz t_polled\ns_sleep {int(opt('psleep3', 8))}\n{TPL}\ns_waitcnt vmcnt(0)\ns_branch t_poll\nt_polled:")
    for k in range(8):
        a(f"buffer_load_dwordx4 v[{FR+4*k}:{FR+4*k+3}], v8, {W}, s12 offen sc1")
        if k < 7: a(f"s_add_u32 s12, s12, {2*TP}")
    a.lines += fgl[FCUT:]
    az = vr(AZ, 16)
    for k in range(8):
        a(f"s_waitcnt vmcnt({7-k})")
        a(f"{MF} {az}, {vr(FR+4*k,4)}, {vr(FREG[8+k],4)}, {'0' if k == 0 else az}")
        a(f"{MF} {ay}, {vr(FR+4*k,4)}, {vr(FREG[k],4)}, {'0' if k == 0 else ay}")
    WF = [96 + 4 * k for k in range(24)] + [32 + 4 * k for k in range(8)]
    for h in range(32):
        a(f"ds_read_b64_tr_b16 v[{WF[h]}:{WF[h]+1}], v7 offset:{2048*h}")
        a(f"ds_read_b64_tr_b16 v[{WF[h]+2}:{WF[h]+3}], v7 offset:{2048*h+1024}")
    for i in range(4): a(f"ds_write_b128 v29, v[{AZ+4*i}:{AZ+4*i+3}] offset:{R[0]+1024*i}")
    a("s_waitcnt lgkmcnt(0)")
    def ords(c):
        for h in range(8): a(f"ds_read_b128 v[{FR+32*(c&1)+4*h}:{FR+32*(c&1)+4*h+3}], v6 offset:{16384*c+4096*(h>>1)+256*(h&1)}")
    SPL = int(opt("spl", 3))
    a("s_barrier")
    ords(0)
    a(f"buffer_load_dword v24, v5, {W}, s11 offen sc1")
    for c in range(4):
        for h in range(8):
            if h <= SPL: a(f"s_waitcnt lgkmcnt({7-h if h < SPL else 0})")
            a(f"{MF} {ab}, {vr(WF[8*c+h],4)}, {vr(FR+32*(c&1)+4*h,4)}, {'0' if c + h == 0 else ab}")
            if h == SPL and c < 3:
                a("s_barrier")
                if c == 1:
                    for i in range(4): a(f"ds_read_b128 v[{96+4*i}:{96+4*i+3}], v30 offset:{R[0]+1024*i}")
                ords(c + 1)
            if c == 3 and 4 <= h:
                for i in range(4 * (h - 4), 4 * (h - 3)): a(f"v_add_f32 v{AY+i}, v{AY+i}, v{96+i}")
    a("s_waitcnt vmcnt(0)")
    a.nop(7)
    for i in range(16):
        a(f"v_sub_f32 v{AY+i}, v{AY+i}, v{AB+i}")
        a(f"v_fmac_f32 v{AB+i}, v{AY+i}, v24")
    for i in range(8): a(f"v_cvt_pk_bf16_f32 v{FR+i}, v{AB+2*i}, v{AB+2*i+1}")
    a(f"buffer_store_dwordx4 v[{FR}:{FR+3}], v28, s[{sOUT}:{sOUT+3}], s14 offen")
    a(f"buffer_store_dwordx4 v[{FR+4}:{FR+7}], v28, s[{sOUT}:{sOUT+3}], s14 offen offset:16")
    stamp_out(a, 0)
    a("s_endpgm")
    a.label("att_fb")
    a("s_cmp_lg_u32 s15, 0\ns_cbranch_scc1 att_fin\ns_mov_b32 s15, 1\ns_mov_b32 s75, 0\ns_mov_b32 s14, 0xff800000\nv_mov_b32 v3, s14")
    def fbtile(j, mask):
        a(f"ds_read_b128 {vr(KRG,4)}, v{AK} offset:{4096*j}\ns_waitcnt lgkmcnt(0)")
        a(f"{MF} {vr(SA,16)}, {vr(KRG,4)}, {q}, 0")
        a.nop(12)
        if mask == 8:
            for i in range(16): a(f"v_bfi_b32 v{SA+i}, v{TM+i}, s14, v{SA+i}")
        if mask == 0:
            for i in range(16): a(f"v_bfi_b32 v{SA+i}, v{TM+i}, v{SA+i}, s14")
        for i in range(8): a(f"v_max3_f32 v{m}, v{m}, v{SA+2*i}, v{SA+2*i+1}")
    fbtile(8, 8)
    for n in range(8):
        a(f"s_cmp_eq_u32 s61, {n+1}\ns_cbranch_scc1 att_fb2")
        fbtile(7 - n, 0 if n == 7 else None)
    a.label("att_fb2")
    a(f"v_mov_b32 v4, v{m}\ns_nop 1\nv_permlane32_swap_b32 v4, v{m}\ns_nop 0\nv_max_f32 v{m}, v4, v{m}")
    a(f"v_sub_f32 v{CN}, 0, v{m}\nv_sub_f32 v{CN+1}, 0, v{m}")
    for i in range(2, 16, 2): a(f"v_mov_b64 v[{CN+i}:{CN+i+1}], v[{CN}:{CN+1}]")
    a("s_branch att_retry")
    if opt("lpos", "end") == "end": a.lines += l_lines

def desc(name, nv):
    return f""".p2align 6
.amdhsa_kernel {name}
  .amdhsa_next_free_vgpr {nv}
  .amdhsa_next_free_sgpr 102
  .amdhsa_accum_offset {(nv+3)//4*4}
  .amdhsa_group_segment_fixed_size 0
  .amdhsa_kernarg_size 96
  .amdhsa_user_sgpr_count 2
  .amdhsa_user_sgpr_kernarg_segment_ptr 1
  .amdhsa_system_sgpr_workgroup_id_x 1
.end_amdhsa_kernel
"""

a = Asm()
ka(a)
for m in check_hazards(a.lines): print("HAZARD", m, file=sys.stderr)
hdr = "; gated mix of FNet spectral mixing and sliding-window attention; generated by dev/gen4.py\n"
hdr += "; @launch grid=(256,1,1) block=(512,1,1) lds=163840\n"
hdr += f'.amdgcn_target "amdgcn-amd-amdhsa--gfx950"\n.text\n.globl {NAME}\n.type {NAME},@function\n'
out = hdr + a.text() + '.section .rodata,"a"\n' + desc(NAME, 256)
fn = [x for x in sys.argv[1:] if not x.startswith("--")][0]
open(fn, "w").write(out)
```

```python
import sys, math
from asmlib import *

def opt(name, default=None):
    for x in sys.argv:
        if x == "--" + name: return True
        if x.startswith("--" + name + "="): return x.split("=", 1)[1]
    return default
STAMP = opt("stamp", False)
STAG = int(opt("stag", 4))
PSLEEP = int(opt("psleep", 0))
FORCEFB = opt("forcefb", False)
KVB, TF, OF, GF, FL1, FL2, FL3 = 0x000000, 0x400000, 0x700000, 0xA00000, 0xA80000, 0xB00000, 0xB80000
STF = 0xC00000
WS_BYTES = 0x1000000
TP = 4224
OP = 131072 + 1024
MF = "v_mfma_f32_32x32x16_bf16"
MF16 = "v_mfma_f32_16x16x32_bf16"
QSCALE = 0.25 * math.log2(math.e)
sX, sW, sWS, sG, sDB, sOUT = 40, 44, 48, 52, 56, 68
NAME = 'gated_mix__spectral_fnet__sliding_block__prompt_kernel'
W = f"s[{sWS}:{sWS+3}]"
R = [32768 * i for i in range(5)]
L_KV, L_QB, L_ZX, L_OS = R[1], R[2] + 16384, R[2] + 20480, R[0] + 16384

def srd(a, d, ptr, nbytes):
    a(f"s_mov_b32 s{d}, s{ptr}\ns_mov_b32 s{d+1}, s{ptr+1}\ns_mov_b32 s{d+2}, {nbytes}\ns_mov_b32 s{d+3}, 0x00020000")

def entry(a, name):
    a(f".p2align 12\n{name}:")
    stamp(a, 0)
    a("s_load_dwordx16 s[16:31], s[0:1], 0")
    a("s_load_dwordx8 s[32:39], s[0:1], 64")
    a(f"s_cmp_ge_u32 s2, 256\ns_cbranch_scc1 {name}_end")
    a("v_lshrrev_b32 v1, 6, v0\nv_and_b32 v0, 63, v0\nv_readfirstlane_b32 s3, v1")

def stamp(a, i, p1=False):
    if opt("p1st") and i and not p1: return
    if STAMP: a(f"s_memrealtime s[{80+2*i}:{81+2*i}]")

def stamp_out(a, kidx):
    if not STAMP: return
    a("s_memrealtime s[96:97]\ns_waitcnt vmcnt(0) lgkmcnt(0)\ns_memrealtime s[98:99]\ns_waitcnt lgkmcnt(0)")
    a(f"s_lshl_b32 s78, s2, 3\ns_add_u32 s78, s78, s3\ns_lshl_b32 s78, s78, 7\ns_add_u32 s78, s78, {STF + kidx * 262144}")
    a("s_mov_b64 exec, 1")
    for i in range(20): a(f"v_mov_b32 v{4+i}, s{80+i}")
    a("v_mov_b32 v2, s78")
    for i in range(5): a(f"buffer_store_dwordx4 v[{4+4*i}:{7+4*i}], v2, {W}, 0 offen offset:{16*i}")

QA, QB = 20, 24
TM, PM, VB, KRG, SA, SB, SC_, CN, P, O = 192, 208, 216, 144, 64, 80, 128, 112, 32, 128
GX = 248
FREG = [160 + 4 * k for k in range(8)] + [96 + 4 * k for k in range(4)] + [48 + 4 * k for k in range(4)]
AK, AV, AO, AR = 8, 9, 10, 11
NONCE = 16

def att_setup(a):
    a("""v_and_b32 v2, 31, v0
    v_lshrrev_b32 v3, 5, v0
    v_lshlrev_b32 v4, v2, -2
    v_lshlrev_b32 v5, 2, v3
    v_lshrrev_b32 v4, v5, v4
    s_mov_b32 s13, 0xffff""")
    for r in range(16): a(f"v_bfe_i32 v{TM+r}, v4, {(r & 3) + 8 * (r >> 2)}, 1")
    for p in range(8): a(f"v_bfi_b32 v{PM+p}, s13, v{TM+2*p}, v{TM+2*p+1}")
    a(f"v_mov_b32 v{VB}, 0x3f803f80\nv_mov_b32 v{VB+1}, v{VB}")
    for i in range(2, 32, 2): a(f"v_mov_b64 v[{VB+i}:{VB+i+1}], v[{VB}:{VB+1}]")
    a(f"""s_and_b32 s9, s3, 3
    s_lshr_b32 s10, s3, 2
    s_lshl_b32 s11, s9, 12
    s_add_u32 s11, s11, {L_KV}
    s_lshl_b32 s12, s10, 10
    s_add_u32 s12, s12, s11
    v_lshlrev_b32 v4, 4, v0
    v_add_u32 v{AK}, s12, v4
    s_lshl_b32 s12, s10, 8
    s_add_u32 s12, s12, s11
    v_add_u32 v{AV}, s12, v4
    v_and_b32 v5, 15, v0
    v_mul_u32_u24 v5, 528, v5
    s_and_b32 s12, s4, 1
    v_xor_b32 v6, s12, v3
    v_lshl_add_u32 v5, v6, 7, v5
    v_bfe_u32 v6, v0, 4, 1
    v_lshl_add_u32 v5, v6, 4, v5
    s_lshl_b32 s12, s10, 8
    s_lshl_b32 s11, s9, 5
    s_add_u32 s12, s12, s11
    s_add_u32 s12, s12, {L_OS}
    v_add_u32 v{AO}, s12, v5
    s_mul_i32 s12, s3, 1056
    s_add_u32 s12, s12, {L_OS}
    v_mul_u32_u24 v5, 528, v3
    v_lshl_add_u32 v5, v2, 4, v5
    v_add_u32 v{AR}, s12, v5
    v_mul_u32_u24 v5, {OP}, v3
    v_lshl_add_u32 v12, v2, 4, v5""")
    a(f"""s_lshl_b32 s61, s4, 2
    s_add_u32 s61, s61, s9
    s_add_u32 s61, s61, 1
    s_min_u32 s61, s61, 9
    s_mul_i32 s62, s3, {2*OP}
    s_lshr_b32 s11, s4, 3
    s_lshl_b32 s11, s11, 16
    s_add_u32 s62, s62, s11
    s_lshl_b32 s11, s7, 12
    s_add_u32 s62, s62, s11
    s_and_b32 s11, s4, 7
    s_lshl_b32 s11, s11, 9
    s_add_u32 s62, s62, s11
    s_add_u32 s62, s62, {OF}""")
    a("""s_and_b32 s72, s2, 7
    s_lshl_b32 s72, s72, 1
    s_bfe_u32 s11, s2, 0x10003
    s_add_u32 s72, s72, s11
    s_bfe_u32 s73, s2, 0x10004
    s_lshr_b32 s74, s2, 5
    s_mov_b32 s75, 0
    v_lshlrev_b32 v14, 4, v0
    v_lshrrev_b32 v4, 3, v0
    v_lshlrev_b32 v4, 10, v4
    v_bfe_u32 v5, v0, 2, 1
    v_bfe_u32 v6, v0, 4, 1
    v_xor_b32 v5, v5, v6
    v_lshl_add_u32 v4, v5, 6, v4
    v_and_b32 v5, 3, v0
    v_lshl_add_u32 v4, v5, 4, v4
    s_lshl_b32 s11, s3, 16
    s_lshl_b32 s12, s74, 7
    s_add_u32 s11, s11, s12
    v_add_u32 v13, s11, v4""")
    srd(a, sOUT, 30, 512 * 512 * 2)

L_CNT = R[2] + 32512
def signal(a, k):
    a(f"s_mov_b64 exec, 1\nds_add_u32 v{CA}, v{CA+1} offset:{4*k}\ns_mov_b64 exec, -1")
_wn = [0]
def waitcnt_lds(a, k, n):
    _wn[0] += 1; t = f"lw{_wn[0]}"
    if opt("lsleep"):
        a(f"s_branch {t}e\n{t}:\ns_sleep {int(opt('lsleep'))}\n{t}e:\nds_read_b32 v{CA+2}, v{CA} offset:{4*k}\ns_waitcnt lgkmcnt(0)\nv_readfirstlane_b32 s78, v{CA+2}\ns_cmp_lt_u32 s78, {n}\ns_cbranch_scc1 {t}")
    else:
        a(f"{t}:\nds_read_b32 v{CA+2}, v{CA} offset:{4*k}\ns_waitcnt lgkmcnt(0)\nv_readfirstlane_b32 s78, v{CA+2}\ns_cmp_lt_u32 s78, {n}\ns_cbranch_scc1 {t}")
CA = 28

def get_nonce(a, tag, NONCE=None):
    NONCE = NONCE or (127 if tag == "ln" else 16)
    a("s_mov_b32 s15, 0")
    a(f"{tag}_n0:\nv_readfirstlane_b32 s63, v{NONCE}\ns_add_u32 s15, s15, 1\ns_cmp_lg_u32 s63, 0\ns_cbranch_scc1 {tag}_n1")
    a(f"s_cmp_gt_u32 s15, 0x40000\ns_cbranch_scc1 {tag}_n1\ns_sleep 2\nbuffer_load_dword v{NONCE}, off, s[{sDB}:{sDB+3}], 0 sc1\ns_waitcnt vmcnt(0)\ns_branch {tag}_n0")
    a(f"{tag}_n1:")

def ka(a):
    N = NAME
    entry(a, N)
    a(f"""s_getpc_b64 s[10:11]
    {N}_pc:
    s_nop 2
    s_sub_u32 s9, s3, 4
    s_cmp_ge_u32 s9, 3
    s_cbranch_scc1 {N}_npf
    s_lshl_b32 s9, s9, 13
    s_sub_u32 s9, s9, {N}_pc-{N}
    v_lshl_add_u32 v4, v0, 7, s9
    v_ashrrev_i32 v5, 31, v4
    v_add_co_u32 v4, vcc, s10, v4
    v_mov_b32 v6, s11
    s_nop 0
    v_addc_co_u32 v5, vcc, v6, v5, vcc
    global_load_dword v127, v[4:5], off
    {N}_npf:""")
    a("""s_and_b32 s8, s2, 7
    s_lshr_b32 s9, s2, 3
    s_lshr_b32 s10, s8, 1
    s_and_b32 s11, s8, 1
    s_lshl_b32 s4, s10, 2
    s_and_b32 s12, s9, 3
    s_add_u32 s4, s4, s12
    s_lshl_b32 s5, s11, 2
    s_bfe_u32 s13, s9, 0x20002
    s_add_u32 s5, s5, s13
    s_lshr_b32 s6, s9, 4
    s_lshl_b32 s7, s5, 1
    s_add_u32 s7, s7, s6""")
    a(f"v_mov_b32 v8, {L_CNT}\nv_mov_b64 v[4:5], 0\nv_mov_b64 v[6:7], 0\nds_write_b128 v8, v[4:7]\nds_write_b128 v8, v[4:7] offset:16")
    a("s_and_b32 s60, s3, 3")
    if STAG == 1: a("s_lshr_b32 s66, s9, 2\ns_lshl_b32 s13, s12, 1\ns_add_u32 s66, s66, s13")
    elif STAG == 0: a("s_mov_b32 s66, 0")
    else:
        XM = {2: (1, 1), 3: (1, 2), 4: (3, 1), 5: (1, 0), 6: (3, 0)}[STAG]
        a(f"s_lshr_b32 s66, s9, 2\ns_add_u32 s66, s66, s12\ns_and_b32 s66, s66, {XM[0]}\ns_lshl_b32 s66, s66, {XM[1]}")
    a("s_lshl_b32 s64, s8, 2\ns_add_u32 s64, s64, s12\ns_lshr_b32 s65, s9, 2")
    XV, WV, QV, AXV, AA, WG, FP, ACC, XF, PK, ZB = 96, 100, 102, 104, 112, 128, 48, 64, 16, 32, 96
    global CA
    CA = 124
    a(f"""v_lshrrev_b32 v1, 3, v0
    v_and_b32 v2, 7, v0
    v_lshrrev_b32 v3, 4, v0
    v_xor_b32 v2, v2, v3
    v_lshlrev_b32 v2, 4, v2
    s_lshl_b32 s8, s4, 17
    s_lshl_b32 s10, s60, 15
    s_add_u32 s8, s8, s10
    v_lshl_add_u32 v5, v1, 10, v2
    v_add_u32 v{XV}, s8, v5
    v_add_u32 v{XV+1}, 7168, v{XV}
    v_xor_b32 v{XV+1}, 64, v{XV+1}
    v_add_u32 v{XV+2}, 14336, v{XV}
    v_add_u32 v{XV+3}, 14336, v{XV+1}
    v_mul_u32_u24 v5, 3072, v1
    v_bfe_u32 v6, v0, 2, 1
    v_and_b32 v7, 1, v3
    v_xor_b32 v6, v6, v7
    v_lshl_add_u32 v5, v6, 6, v5
    v_and_b32 v7, 3, v0
    v_lshl_add_u32 v5, v7, 4, v5
    s_mul_i32 s8, s60, 49152
    s_lshl_b32 s10, s6, 10
    s_add_u32 s10, s10, s8
    s_lshl_b32 s11, s5, 7
    s_add_u32 s10, s10, s11
    s_add_u32 s10, s10, 1024
    v_add_u32 v{WV}, s10, v5
    v_add_u32 v{WV+1}, 23552, v{WV}
    s_lshl_b32 s14, s60, 12
    s_lshl_b32 s67, s60, 11
    s_waitcnt lgkmcnt(0)""")
    srd(a, sX, 16, 2048 * 512 * 2)
    srd(a, sW, 28, 512 * 1536 * 2)
    SX = f"s[{sX}:{sX+3}]"; SW = f"s[{sW}:{sW+3}]"
    def chunk_idx(n):
        if STAG == 1: a(f"s_add_u32 s9, s66, {n}\ns_and_b32 s9, s9, 7")
        else: a(f"s_xor_b32 s9, s66, {n}")
    pieces = []
    PER = int(opt("per", 1))
    def dma(x):
        a(x)
        for _ in range(PER):
            if pieces: a(pieces.pop(0))
    def issue(u):
        reg = R[u % 5]
        if u < 8:
            chunk_idx(u)
            a(f"s_add_u32 m0, s14, {reg}\ns_lshl_b32 s10, s9, 7\ns_mul_i32 s11, s9, 196608")
            for i in range(4): dma(f"buffer_load_dwordx4 v{XV+i}, {SX}, s10 offen offset:{1024*i} lds")
            a(f"s_add_u32 m0, s67, {reg+16384}\ns_nop 0")
            for i in range(2): dma(f"buffer_load_dwordx4 v{WV+i}, {SW}, s11 offen offset:{1024*i} lds")
            return 6
        if u == 8:
            a(f"s_lshr_b32 s12, s67, 1")
            for n in range(8):
                chunk_idx(n)
                a(f"s_add_u32 m0, s12, {reg+4096*n}\ns_mul_i32 s11, s9, 196608")
                dma(f"buffer_load_dwordx4 v{QV}, {SW}, s11 offen lds")
            return 8
        a(f"s_lshl_b32 s12, s14, 1\ns_movk_i32 s10, {512*(u-9)}")
        for i in range(8):
            if i % 4 == 0: a(f"s_add_u32 m0, s12, {reg+1024*i}\ns_nop 0")
            dma(f"buffer_load_dwordx4 v{AXV+i}, {SX}, s10 offen offset:{1024*(i%4)} lds")
        return 8
    NGU = int(opt("ng", 2))
    a(f"s_cmp_ge_u32 s3, 4\ns_cbranch_scc1 {N}_L")
    for u in range(NGU): issue(u)
    main_lines = a.lines; a.lines = []
    a(".p2align 6")
    a.label(f"{N}_L")
    def late_setup():
        a(f"""v_lshrrev_b32 v5, 2, v0
        v_mul_u32_u24 v5, 3072, v5
        v_lshl_add_u32 v5, v7, 4, v5
        s_lshl_b32 s10, s7, 6
        s_add_u32 s10, s10, s8
        v_add_u32 v{QV}, s10, v5""")
        a(f"""v_and_b32 v1, 31, v0
        v_lshrrev_b32 v2, 5, v0
        v_xor_b32 v5, v1, v2
        v_lshlrev_b32 v5, 4, v5
        v_lshl_add_u32 v5, v2, 17, v5
        s_lshl_b32 s10, s64, 2
        s_add_u32 s10, s10, s60
        s_lshl_b32 s10, s10, 10
        v_add_u32 v5, s10, v5""")
        for n in range(8):
            a(f"v_xor_b32 v{AXV+n}, {32*n}, v5")
            if n: a(f"v_add_u32 v{AXV+n}, {n*2*131072-1024*(n%4)}, v{AXV+n}")
        a(f"""v_and_b32 v5, 15, v0
        v_xor_b32 v5, v5, v2
        v_lshlrev_b32 v5, 4, v5
        v_lshl_add_u32 v5, v1, 9, v5
        s_lshr_b32 s10, s60, 1
        s_lshl_b32 s10, s10, 14
        s_add_u32 s10, s10, {R[4]}
        v_add_u32 v{AA}, s10, v5""")
        for ks in range(1, 8): a(f"v_xor_b32 v{AA+ks}, {32*ks}, v{AA}")
        a(f"v_mov_b32 v{CA}, {L_CNT}\nv_mov_b32 v{CA+1}, 1")
        a("""s_lshl_b32 s10, s65, 5
        v_add_u32 v5, s10, v1
        s_and_b32 s11, s60, 1
        v_lshlrev_b32 v15, 31, v5
        v_or_b32 v15, 1.0, v15
        v_sub_u32 v6, v5, s11
        v_ashrrev_i32 v6, 31, v6
        v_and_b32 v7, 256, v6
        v_or_b32 v5, v5, v7
        v_cvt_f32_u32 v120, v5
        v_mul_f32 v120, 0x3b000000, v120
        s_mul_i32 s11, s11, 0x3e800000
        v_not_b32 v6, v6
        v_and_b32 v121, s11, v6
        v_cvt_f32_u32 v5, v2
        v_mul_f32 v5, 0x41000000, v5
        v_fmac_f32 v121, v5, v120""")
    def gen_pieces():
        a("v_mul_f32 v123, 0x41800000, v120\nv_cos_f32 v123, v123\ns_nop 0\nv_add_f32 v123, v123, v123")
        for ks in range(16):
            r = 16 + 8 * (ks & 1); o_ = 16 + 8 * (1 - (ks & 1))
            for p in range(4):
                x, y = r + 2 * p, r + 2 * p + 1
                if ks < 2:
                    pieces.append(f"v_fmamk_f32 v{x}, v120, {fhex(float(16*ks+2*p))}, v121\nv_add_f32 v{y}, v{x}, v120\nv_cos_f32 v{x}, v{x}\nv_cos_f32 v{y}, v{y}\ns_nop 0\nv_cvt_pk_bf16_f32 v{WG+4*ks+p}, v{x}, v{y}")
                else:
                    pieces.append(f"v_fma_f32 v{x}, v123, v{o_+2*p}, -v{x}\nv_fma_f32 v{y}, v123, v{o_+2*p+1}, -v{y}\nv_cvt_pk_bf16_f32 v{WG+4*ks+p}, v{x}, v{y}")
    def first():
        srd(a, sWS, 38, WS_BYTES)
        srd(a, sDB, 36, 256)
        a(f"s_xor_b32 s9, s60, 3\ns_or_b32 s9, s9, s2\ns_cmp_lg_u32 s9, 0\ns_cbranch_scc1 {N}_nn")
        a(f"v_lshlrev_b32 v4, 8, v0\nv_mov_b32 v5, 0\ns_mov_b32 s9, {FL2}\nbuffer_store_dword v5, v4, {W}, s9 offen sc1")
        a("s_memrealtime s[10:11]\ns_waitcnt vmcnt(0) lgkmcnt(0)\ns_or_b32 s10, s10, 1\nv_mov_b32 v4, s10\ns_mov_b64 exec, 1")
        a(f"buffer_store_dword v4, off, s[{sDB}:{sDB+3}], 0 sc1\ns_mov_b64 exec, -1")
        a.label(f"{N}_nn")
    def touch():
        if opt("notouch"): return
        a(f"s_cmp_lg_u32 s60, 3\ns_cbranch_scc1 {N}_ntt")
        srd(a, sOUT, 34, 2048 * 512 * 2)
        srd(a, sG, 30, 512 * 512 * 2)
        a(f"v_lshlrev_b32 v4, 21, v0\nv_add_u32 v4, 0x1fff80, v4\ns_mov_b64 exec, 63\nbuffer_load_dword v127, v4, {W}, 0 offen sc1\ns_mov_b64 exec, 1")
        a(f"buffer_load_dword v127, off, s[{sOUT}:{sOUT+3}], 0 sc1\nbuffer_load_dword v127, off, s[{sG}:{sG+3}], 0")
        if True: a(f"buffer_load_dword v127, off, s[{sDB}:{sDB+3}], 0 offset:128 sc1")
        a("s_mov_b64 exec, -1")
        a.label(f"{N}_ntt")
    def warm():
        WM = opt("warm", "q")
        if "q" in WM:
            a(f"""s_cmp_lg_u32 s60, 0
            s_cbranch_scc1 {N}_w1
            s_and_b32 s9, s4, 3
            s_lshl_b32 s9, s9, 1
            s_add_u32 s9, s9, s6
            s_mul_i32 s9, s9, 196608
            s_lshl_b32 s10, s5, 7
            s_add_u32 s9, s9, s10
            v_mul_u32_u24 v4, 3072, v0
            buffer_load_dword v127, v4, {SW}, s9 offen
            {N}_w1:""")
        if "x" in WM:
            a(f"""s_cmp_lg_u32 s60, 1
            s_cbranch_scc1 {N}_w2
            s_lshl_b32 s9, s64, 12
            s_lshl_b32 s10, s65, 7
            s_add_u32 s9, s9, s10
            v_lshrrev_b32 v4, 2, v0
            v_lshlrev_b32 v4, 17, v4
            v_and_b32 v5, 3, v0
            v_lshl_add_u32 v4, v5, 10, v4
            buffer_load_dword v127, v4, {SX}, s9 offen
            {N}_w2:""")
        if "o" in WM:
            srd(a, sG, 30, 512 * 512 * 2)
            a(f"""s_cmp_lt_u32 s60, 2
            s_cbranch_scc1 {N}_w3
            s_lshr_b32 s9, s2, 3
            s_lshl_b32 s9, s9, 1
            s_add_u32 s9, s9, s60
            s_sub_u32 s9, s9, 2
            s_lshl_b32 s9, s9, 13
            v_lshlrev_b32 v4, 7, v0
            buffer_load_dword v127, v4, s[{sG}:{sG+3}], s9 offen
            {N}_w3:""")
    def gw_loads():
        srd(a, sG, 32, 1024)
        a(f"""v_lshlrev_b32 v6, 5, v0
        v_and_b32 v6, 1023, v6
        buffer_load_dwordx4 v[56:59], v6, s[{sG}:{sG+3}], 0 offen
        buffer_load_dwordx4 v[60:63], v6, s[{sG}:{sG+3}], 0 offen offset:16""")
    def gate_loads():
        a(f"""s_lshl_b32 s76, s4, 7
        s_lshl_b32 s9, s7, 3
        s_add_u32 s76, s76, s9
        s_lshl_b32 s9, s60, 1
        s_add_u32 s76, s76, s9
        s_lshl_b32 s9, s76, 10
        v_lshlrev_b32 v6, 5, v0
        buffer_load_dwordx4 v[48:51], v6, {SX}, s9 offen
        buffer_load_dwordx4 v[52:55], v6, {SX}, s9 offen offset:16""")
    def gate_comp():
        a("v_mov_b32 v5, 0")
        for i in range(8): a(f"v_dot2c_f32_bf16 v5, v{48+i}, v{56+i}")
        a("v_lshrrev_b32 v6, 5, v0\nv_add_u32 v6, s76, v6\nv_and_b32 v7, 15, v6")
        a("v_add_f32_dpp v5, v5, v5 quad_perm:[1,0,3,2] row_mask:0xf bank_mask:0xf")
        a("v_lshrrev_b32 v6, 4, v6\nv_lshlrev_b32 v7, 9, v7")
        a("v_add_f32_dpp v5, v5, v5 quad_perm:[2,3,0,1] row_mask:0xf bank_mask:0xf")
        a("v_lshl_add_u32 v6, v6, 2, v7\ns_nop 0")
        a("v_add_f32_dpp v5, v5, v5 row_half_mirror row_mask:0xf bank_mask:0xf\ns_nop 1")
        a("v_add_f32_dpp v5, v5, v5 row_mirror row_mask:0xf bank_mask:0xf\ns_nop 1")
        a("v_add_f32_dpp v5, v5, v5 row_bcast:15 row_mask:0xa bank_mask:0xf")
        a(f"v_mul_f32 v5, {fhex(-math.log2(math.e))}, v5\nv_exp_f32 v5, v5\ns_nop 0\nv_add_f32 v5, 1.0, v5\nv_rcp_f32 v5, v5")
        a("s_mov_b32 exec_lo, 0x80000000\ns_mov_b32 exec_hi, 0x80000000")
        a(f"s_mov_b32 s76, {GF}\nbuffer_store_dword v5, v6, {W}, s76 offen sc1\ns_mov_b64 exec, -1")
    def flush(k):
        for _ in range(k):
            if pieces: a(pieces.pop(0))
    if opt("lfast"):
        a('s_barrier')
        warm()
        WORK = {0: [first, touch, gw_loads, late_setup, gen_pieces, lambda: flush(int(opt("pre", 0)))], 9: [lambda: flush(1000)]}
    else:
        first(); late_setup(); gen_pieces()
        a('s_barrier')
        warm()
        WORK = {0: [touch, gw_loads, lambda: flush(int(opt("pre", 0)))], 9: [lambda: flush(1000)]}
    WORK[int(opt("asat", 0))] = WORK.get(int(opt("asat", 0)), []) + [lambda: att_setup(a)]
    SCHED = eval(opt("sched", "[[2],[3,4],[],[5],[6],[7],[],[8],[9],[10]]"))
    cnt = {}; issued = []
    for n in range(10):
        if n == 9:
            waitcnt_lds(a, 0, 8)
            gate_loads()
        for u in SCHED[n]:
            assert u < 5 or u - 5 <= min(n, 7) - 3 or n == 9, (u, n)
            cnt[u] = issue(u); issued.append(u)
        for f in WORK.get(n, []): f()
        if n == 7: continue
        younger = sum(cnt[u] for u in issued if u > (7 if n == 6 else n)) if n < 9 else 8 * len([u for u in SCHED[9] if u > 9]) + (2 if 9 not in SCHED[9] else 0)
        if n >= NGU: a(f"s_waitcnt vmcnt({younger})")
        if n < NGU: pass
        elif n < 8: a("s_barrier")
        else: signal(a, (0, 5)[n - 8])
        if opt("p1st") and 1 <= n <= 7: stamp(a, n, True)
        if n == 6: stamp(a, 2)
        if n == 8: stamp(a, 3)
    def ard(s):
        F = XF + 4 * (s & 7)
        a(f"ds_read_b128 v[{F}:{F+3}], v{AA+(s&7)} offset:{256*((s>>3)&1)}")
        if 8 <= s < 16: a(f"v_subrev_u32 v{AA+(s&7)}, {R[4]-R[0]}, v{AA+(s&7)}")
    for half in range(2):
        if half == 0: waitcnt_lds(a, 5, 4)
        else:
            a("s_waitcnt vmcnt(0)")
            signal(a, 1)
            waitcnt_lds(a, 1, 4)
            stamp(a, 4)
        b = 16 * half
        for s in range(b, b + 6): ard(s)
        for s in range(b, b + 16):
            a(f"s_waitcnt lgkmcnt({min(5, b+15-s)})")
            c = vr(ACC + 16 * (s >> 4), 16)
            a(f"{MF} {c}, {vr(XF+4*(s&7),4)}, {vr(WG+4*(s&15),4)}, {'0' if (s & 15) == 0 else c}")
            if s + 6 < b + 16: ard(s + 6)
    a(f"""s_and_b32 s9, s60, 1
    s_lshl_b32 s9, s9, 12
    s_lshr_b32 s10, s60, 1
    s_lshl_b32 s11, s10, 11
    s_add_u32 s9, s9, s11
    s_add_u32 s9, s9, {L_ZX}
    v_add_u32 v2, s9, v14
    s_lshl_b32 s12, s60, 10
    s_add_u32 s12, s12, {L_QB}
    v_add_u32 v1, s12, v14""")
    a.nop(2)
    for i in range(16): a(f"v_fmac_f32 v{ACC+i}, v{ACC+16+i}, v15")
    for i in range(8): a(f"v_cvt_pk_bf16_f32 v{PK+i}, v{ACC+2*i}, v{ACC+2*i+1}")
    a(f"ds_write_b128 v2, v[{PK}:{PK+3}]\nds_write_b128 v2, v[{PK+4}:{PK+7}] offset:1024")
    signal(a, 2)
    gate_comp()
    a(f"v_mov_b32 v28, {L_CNT}")
    CA = 28
    for i in range(0, 16, 2): a(f"v_mov_b64 v[{CN+i}:{CN+i+1}], 0")
    waitcnt_lds(a, 3, 4)
    a(f"ds_read_b128 v[{QA}:{QA+3}], v1")
    a("s_branch att_body2")
    a.label(f"{N}_end")
    a("s_endpgm")

    XR, WR, ACC, PK = 128, 96, 64, 32
    XA, WA = 8, 12
    CA = 28
    l_lines = a.lines; a.lines = main_lines
    a.label(f"{N}_comp")
    a(f"""v_and_b32 v1, 31, v0
    v_lshrrev_b32 v2, 5, v0
    v_bfe_u32 v3, v0, 1, 3
    v_xor_b32 v3, v3, v2
    v_lshlrev_b32 v3, 4, v3
    v_lshl_add_u32 v3, v1, 7, v3
    s_lshl_b32 s9, s3, 12
    v_add_u32 v{XA}, s9, v3""")
    for ks in range(1, 4): a(f"v_xor_b32 v{XA+ks}, {32*ks}, v{XA}")
    a(f"""v_bfe_u32 v4, v0, 2, 2
    v_lshl_add_u32 v5, v2, 3, v4
    v_bfe_u32 v6, v0, 4, 1
    v_lshlrev_b32 v6, 5, v6
    v_and_b32 v7, 3, v0
    v_lshl_add_u32 v6, v7, 3, v6
    v_lshl_add_u32 v14, v5, 6, v6
    v_add_u32 v14, {R[3]}, v14
    v_lshl_add_u32 v5, v5, 7, v6
    v_lshrrev_b32 v4, 1, v4
    v_lshl_add_u32 v{WA}, v4, 6, v5
    v_xor_b32 v{WA+1}, 64, v{WA}""")
    a(f"v_mov_b32 v{CA}, {L_CNT}\nv_mov_b32 v{CA+1}, 1")
    a("s_waitcnt lgkmcnt(0)")
    srd(a, sWS, 38, WS_BYTES)
    srd(a, sDB, 36, 256)
    a(f"""s_lshl_b32 s8, s5, 7
    s_lshl_b32 s9, s4, 2
    s_add_u32 s8, s8, s9
    s_add_u32 s8, s8, s3
    s_lshl_b32 s8, s8, 12
    s_lshl_b32 s9, s6, 11
    s_add_u32 s8, s8, s9
    s_add_u32 s60, s8, 262144
    s_lshl_b32 s77, s4, 4
    s_add_u32 s77, s77, s7
    s_lshl_b32 s77, s77, 2
    s_add_u32 s77, s77, s3
    s_lshl_b32 s77, s77, 8
    s_add_u32 s77, s77, {FL1}
    v_lshlrev_b32 v15, 4, v0""")
    a(f"""s_mul_i32 s66, s3, 3
    s_lshl_b32 s67, s4, 2
    s_add_u32 s66, s66, s67
    s_sub_u32 s66, s66, 8
    v_lshrrev_b32 v4, 1, v0
    v_add_u32 v4, s66, v4
    v_ashrrev_i32 v5, 31, v4
    v_mov_b32 v6, s67
    v_bfi_b32 v4, v5, v6, v4
    v_lshrrev_b32 v5, 2, v4
    v_lshlrev_b32 v5, 6, v5
    v_and_b32 v6, 3, v4
    v_and_b32 v7, 1, v0
    v_lshl_add_u32 v6, v7, 2, v6
    s_lshl_b32 s11, s5, 3
    v_add3_u32 v5, v5, v6, s11
    v_lshlrev_b32 v18, 8, v5""")
    a(f"s_cmp_eq_u32 s6, 1\ns_cbranch_scc1 {N}_V")
    def p1(swap):
        naddr = [XA + i for i in range(4)] + [WA, WA + 1]
        def rds(s):
            ks = s & 3; F = WR + 8 * ks
            o = [f"ds_read_b128 v[{XR+4*s}:{XR+4*s+3}], v{XA+ks}"]
            for nt in range(2):
                for h in range(2): o.append(f"ds_read_b64_tr_b16 v[{F+4*nt+2*h}:{F+4*nt+2*h+1}], v{WA+nt} offset:{16384+2048*ks+512*h}")
            return o
        a(f"s_barrier\ns_waitcnt vmcnt({6*(NGU-1)})")
        signal(a, 6); waitcnt_lds(a, 6, 4)
        if opt("p1st"): stamp(a, 1, True)
        stamp(a, 1)
        for x in rds(0) + rds(1): a(x)
        for s in range(32):
            ks = s & 3; c = s >> 2
            a(f"s_waitcnt lgkmcnt({5 if s < 31 else 0})")
            r = rds(s + 2) if s < 30 else []
            for nt in range(2):
                x = vr(XR + 4 * s, 4); w = vr(WR + 8 * ks + 4 * nt, 4); cc = vr(ACC + 16 * nt, 16)
                ci = "0" if s == 0 else cc
                a(f"{MF} {cc}, {w}, {x}, {ci}" if swap else f"{MF} {cc}, {x}, {w}, {ci}")
                if nt == 0 and ks == 2 and c < 7:
                    d = R[(c + 1) % 5] - R[c % 5]
                    for x_ in naddr: a(f"v_add_u32 v{x_}, {d}, v{x_}" if d > 0 else f"v_subrev_u32 v{x_}, {-d}, v{x_}")
                    if c == 5: a(f"buffer_load_dword v{NONCE}, off, s[{sDB}:{sDB+3}], 0 sc1")
                    if c + 1 < NGU:
                        a(f"s_waitcnt vmcnt({6*(NGU-2-c)})")
                        signal(a, 6); waitcnt_lds(a, 6, 4 * (c + 2))
                    else:
                        if opt("p1st"): stamp(a, c + 1, True)
                        if c < 6: a("s_barrier")
                for x_ in (r[:3] if nt == 0 else r[3:]): a(x_)
    p1(True)
    a(f"s_branch {N}_p1d")
    if opt("lpos", "end") == "mid": a.lines += l_lines
    a.label(f"{N}_V")
    p1(False)
    a.label(f"{N}_p1d")
    stamp(a, 2)
    a("s_waitcnt vmcnt(0)")
    get_nonce(a, "gm")
    a.nop(6)
    for nt in range(2):
        for i in range(8): a(f"v_cvt_pk_bf16_f32 v{PK+8*nt+i}, v{ACC+16*nt+2*i}, v{ACC+16*nt+2*i+1}")
        for h in range(2): a(f"buffer_store_dwordx4 v[{PK+8*nt+4*h}:{PK+8*nt+4*h+3}], v15, {W}, s{(8,60)[nt]} offen offset:{1024*h} sc1")
    signal(a, 0)
    a("""s_lshr_b32 s9, s3, 1
    s_lshl_b32 s9, s9, 3
    v_bfe_u32 v120, v0, 1, 3
    v_add_u32 v120, s9, v120
    v_cvt_f32_u32 v120, v120
    v_and_b32 v121, 1, v0
    v_lshrrev_b32 v6, 5, v0
    v_sub_u32 v121, v121, v6
    v_cvt_f32_i32 v121, v121
    v_mul_f32 v121, 0x3e800000, v121
    v_bfe_u32 v6, v0, 4, 1
    v_lshlrev_b32 v6, 9, v6
    s_lshl_b32 s9, s64, 2
    v_add_u32 v6, s9, v6
    v_cvt_f32_u32 v6, v6
    v_mul_f32 v122, 0x3a000000, v120
    v_fmac_f32 v121, v6, v122
    v_mul_f32 v120, 0x3d800000, v120""")
    for u in range(4):
        for p in range(4):
            c0 = (2 * p & 3) + 8 * (p >> 1)
            pre = "v_add_f32 v121, v121, v122\n" if (u and p == 0) else ""
            a(pre + f"v_fmamk_f32 v4, v120, {fhex(float(c0))}, v121\nv_add_f32 v5, v4, v120\nv_cos_f32 v4, v4\nv_cos_f32 v5, v5\ns_nop 0\nv_cvt_pk_bf16_f32 v{FP+4*u+p}, v4, v5")
    FLAGAT = int(opt("flagat", 8))
    if FLAGAT < 0:
        a(f"s_waitcnt vmcnt(0)\ns_mov_b64 exec, 1\nbuffer_store_dword v{NONCE}, off, {W}, s77 sc1\ns_mov_b64 exec, -1")
        stamp(a, 3)
    waitcnt_lds(a, 0, 8)
    KP = f"v_mov_b32 v19, 0\nbuffer_atomic_add v19, v18, {W}, s76 offen sc0 sc1"
    POLLAT = int(opt("pollat", 31))
    def qrd(s):
        F = WR + 4 * (s & 7)
        for h in range(2): a(f"ds_read_b64_tr_b16 v[{F+2*h}:{F+2*h+1}], v14 offset:{1024*s+256*h}")
    for s in range(6): qrd(s)
    for s in range(32):
        a(f"s_waitcnt lgkmcnt({2*min(5, 31-s)})")
        a(f"{MF} {vr(ACC,16)}, {vr(WR+4*(s&7),4)}, {vr(XR+4*s,4)}, {'0' if s == 0 else vr(ACC,16)}")
        if s + 6 < 32: qrd(s + 6)
        if s == FLAGAT:
            a(f"s_waitcnt vmcnt(0)\ns_mov_b64 exec, 1\nbuffer_store_dword v{NONCE}, off, {W}, s77 sc1\ns_mov_b64 exec, -1")
            stamp(a, 3)
        if s == POLLAT: a(f"s_mov_b32 s76, {FL1}\ns_mov_b64 exec, 63\n{KP}\ns_mov_b64 exec, -1")
    a(f"""s_lshl_b32 s9, s3, 10
    s_add_u32 s9, s9, {L_QB}
    v_add_u32 v4, s9, v15""")
    a.nop(9)
    for i in range(16): a(f"v_mul_f32 v{ACC+i}, {fhex(QSCALE)}, v{ACC+i}")
    for i in range(8): a(f"v_cvt_pk_bf16_f32 v{QA+i}, v{ACC+2*i}, v{ACC+2*i+1}")
    a(f"ds_write_b128 v4, v[{QB}:{QB+3}]")
    a("s_mov_b32 s15, 0\ns_mov_b64 exec, 63")
    a(f"gm_poll:\ns_add_u32 s15, s15, 1\ns_waitcnt vmcnt(0)\nv_cmp_ne_u32 vcc, s63, v19")
    a(f"s_cmp_gt_u32 s15, 0x40000\ns_cbranch_scc1 gm_polled\ns_cbranch_vccz gm_polled\ns_sleep {PSLEEP}")
    a(f"{KP}\ns_branch gm_poll")
    a("gm_polled:\ns_mov_b64 exec, -1")
    stamp(a, 4)
    a(f"s_mul_i32 s12, s3, 12288\ns_lshl_b32 s13, s7, 6")
    for t in range(3):
        a(f"s_add_u32 s11, s66, {t}\ns_cmp_lt_i32 s11, 0\ns_cselect_b32 s11, s67, s11\ns_add_u32 s11, s11, s13\ns_lshl_b32 s11, s11, 12")
        a(f"s_add_u32 m0, s12, {L_KV + 4096*t}\ns_nop 0")
        for i in range(4): a(f"buffer_load_dwordx4 v15, {W}, s11 offen offset:{1024*i} sc1 lds")
    att_setup(a)
    a(f"""s_lshl_b32 s9, s74, 1
    s_lshr_b32 s10, s3, 1
    s_add_u32 s9, s9, s10
    s_sub_u32 s10, 15, s9
    s_min_u32 s10, s10, s9
    v_and_b32 v5, 1, v0
    v_add_u32 v5, s10, v5
    v_and_b32 v5, 7, v5
    v_lshrrev_b32 v6, 1, v0
    v_lshl_add_u32 v5, v6, 3, v5
    v_lshlrev_b32 v18, 8, v5
    s_and_b32 s79, s3, 1
    s_lshl_b32 s79, s79, 15
    s_add_u32 s79, s79, {FL3}""")
    for i in range(0, 16, 2): a(f"v_mov_b64 v[{CN+i}:{CN+i+1}], 0")
    a(f"s_lshl_b32 s77, s64, 3\ns_add_u32 s77, s77, s65\ns_lshl_b32 s77, s77, 8\ns_lshl_b32 s9, s3, 2\ns_add_u32 s77, s77, s9\ns_add_u32 s77, s77, {FL3}")
    a(f"""v_lshrrev_b32 v4, 5, v0
    v_lshlrev_b32 v3, 12, v4
    v_bfe_u32 v5, v0, 4, 1
    v_lshl_add_u32 v3, v5, 9, v3
    v_and_b32 v6, 15, v0
    v_lshl_add_u32 v3, v6, 4, v3
    s_lshr_b32 s10, s3, 1
    s_and_b32 s9, s3, 1
    s_lshl_b32 s9, s9, 8
    s_add_u32 s11, s9, {L_ZX}
    v_add_u32 v3, s11, v3
    v_lshrrev_b32 v4, 4, v0
    v_mul_u32_u24 v4, {2*32*TP}, v4
    v_lshl_add_u32 v5, v6, 4, v4
    s_lshl_b32 s11, s65, 9
    s_add_u32 s9, s9, s11
    v_add_u32 v5, s9, v5
    s_mul_i32 s10, s10, {8*32*TP}
    s_mul_i32 s11, s64, {TP}
    s_add_u32 s10, s10, s11
    s_add_u32 s10, s10, {TF}
    s_add_u32 s11, s10, {32*TP}""")
    for i in range(0, 16, 2): a(f"v_mov_b64 v[{ZB+i}:{ZB+i+1}], 0")
    waitcnt_lds(a, 2, 4)
    a("s_cmp_eq_u32 s9, 0\ns_cselect_b32 exec_hi, 0xfffefffe, -1")
    def step1():
        for u in range(4): a(f"{MF16} {vr(ACC+4*u,4)}, {vr(FP+4*u,4)}, {vr(ZB+4*u,4)}, 0")
        a.nop(5)
        for r2 in range(2):
            for u in range(4): a(f"v_cvt_pk_bf16_f32 v{PK+4*r2+u}, v{ACC+4*u+2*r2}, v{ACC+4*u+2*r2+1}")
    for u in range(4): a(f"ds_read_b128 v[{ZB+4*u}:{ZB+4*u+3}], v3 offset:{1024*u}")
    a("s_waitcnt lgkmcnt(0)\ns_mov_b64 exec, -1")
    step1()
    a(f"buffer_store_dwordx4 v[{PK}:{PK+3}], v5, {W}, s10 offen sc1\nbuffer_store_dwordx4 v[{PK+4}:{PK+7}], v5, {W}, s11 offen sc1")
    a("s_waitcnt vmcnt(2)")
    signal(a, 3)
    a(f"s_cmp_lg_u32 s9, 0\ns_cbranch_scc1 {N}_nsp")
    a("s_mov_b32 exec_hi, 0")
    for u in range(4): a(f"ds_read_b128 v[{ZB+4*u}:{ZB+4*u+3}], v3 offset:{4096+1024*u}")
    a("s_mov_b64 exec, -1\nv_add_u32 v6, 4096, v4\ns_waitcnt lgkmcnt(0)")
    step1()
    a("s_mov_b32 exec_lo, 0x00010001\ns_mov_b32 exec_hi, 0x00010001")
    a(f"buffer_store_dwordx4 v[{PK}:{PK+3}], v6, {W}, s10 offen sc1\nbuffer_store_dwordx4 v[{PK+4}:{PK+7}], v6, {W}, s11 offen sc1")
    a("s_mov_b64 exec, -1")
    a.label(f"{N}_nsp")
    waitcnt_lds(a, 3, 4)

    a.label("att_body2")
    stamp(a, 5)
    q = vr(QA, 4); cn = vr(CN, 16); o = vr(O, 16); m = 3
    kslot = {8: 0, 0: 1}; vslot = {8: 0, 0: 1}
    for n in range(7): kslot[7 - n] = (2 + n) & 3; vslot[7 - n] = (2 + n) & 3
    kf = lambda j: vr(KRG + 4 * kslot[j], 4)
    vf = lambda j, ks: vr(VB + 8 * vslot[j] + 4 * ks, 4)
    def krd(j): a(f"ds_read_b128 {kf(j)}, v{AK} offset:{4096*j}")
    def vrd(js):
        a("s_mov_b64 exec, s[12:13]")
        for j in js:
            for ks in range(2): a(f"ds_read_b128 {vf(j,ks)}, v{AV} offset:{4096*j+2048+1024*ks}")
        a("s_mov_b64 exec, -1")
    def wo_dma():
        a(f"s_add_u32 m0, s75, s8\ns_lshl_b32 s9, s75, 3\nbuffer_load_dwordx4 v13, s[{sOUT}:{sOUT+3}], s9 offen lds\ns_add_u32 s75, s75, 1024")
    TPL = f"s_mov_b32 exec_hi, 0\nbuffer_load_dwordx4 v[24:27], v18, {W}, s79 offen sc1\ns_mov_b64 exec, -1"
    TCHK = "s_mov_b32 exec_hi, 0\nv_xor_b32 v24, s63, v24\nv_xor_b32 v25, s63, v25\nv_xor_b32 v26, s63, v26\nv_xor_b32 v27, s63, v27\nv_or3_b32 v24, v24, v25, v26\nv_or_b32 v24, v24, v27\nv_cmp_ne_u32 vcc, 0, v24\ns_mov_b64 exec, -1"
    a(f"""s_mov_b32 s12, 0xffff
    s_mov_b32 s13, 0xffff
    s_mov_b32 s15, 0
    s_lshl_b32 s8, s3, 13
    s_add_u32 s8, s8, {R[3]}""")
    a.label("att_retry")
    for j in (8, 0, 7, 6): krd(j)
    vrd((8, 0, 7))
    PR = opt("prio", "a")
    if PR == "a": a("s_setprio 3")
    if PR == "b": a("s_cmp_lt_u32 s3, 4\ns_cbranch_scc1 att_np\ns_setprio 1\natt_np:")
    a("s_waitcnt lgkmcnt(7)\ns_nop 0")
    a(f"{MF} {vr(SB,16)}, {kf(8)}, {q}, {cn}")
    a(f"{MF} {vr(SC_,16)}, {kf(0)}, {q}, {cn}")
    a(f"{MF} {vr(SA,16)}, {kf(7)}, {q}, {cn}")
    wo_dma()
    a("s_cmp_lg_u32 s61, 9")
    a.nop(5)
    a("s_cbranch_scc1 att_no0a")
    for i in range(16): a(f"v_bfi_b32 v{SB+i}, v{TM+i}, v{SC_+i}, v{SB+i}")
    a.label("att_no0a")
    for i in range(16): a(f"v_exp_f32 v{SB+i}, v{SB+i}")
    for i in range(8): a(f"v_cvt_pk_bf16_f32 v{P+i}, v{SB+2*i}, v{SB+2*i+1}")
    for i in range(8): a(f"v_and_b32 v{P+8+i}, v{PM+i}, v{P+i}")
    for i in range(8): a(f"v_xor_b32 v{P+i}, v{P+8+i}, v{P+i}")
    a("s_waitcnt lgkmcnt(0)\ns_cmp_lg_u32 s61, 9")
    a(f"{MF} {o}, {vf(8,0)}, {vr(P,4)}, 0")
    a(f"{MF} {o}, {vf(8,1)}, {vr(P+4,4)}, {o}")
    a("s_cbranch_scc1 att_no0b")
    a(f"{MF} {o}, {vf(0,0)}, {vr(P+8,4)}, {o}")
    a(f"{MF} {o}, {vf(0,1)}, {vr(P+12,4)}, {o}")
    a.label("att_no0b")
    a("s_cmp_ge_u32 s3, 4\ns_cbranch_scc1 att_nof3")
    a(f"v_mov_b32 v4, s63\ns_waitcnt vmcnt(1)\ns_mov_b64 exec, 1\nbuffer_store_dword v4, off, {W}, s77 sc1\ns_mov_b64 exec, -1")
    a.label("att_nof3")
    a("s_cmp_eq_u32 s61, 1\ns_cbranch_scc1 att_done")
    S = [SA, SB]
    for n in range(7):
        j = 7 - n
        s = S[n & 1]; p = P + 8 * (n & 1)
        if PR == "a" and n in (1, 3, 5): a(f"s_setprio {2 - n // 2}")
        if PR == "c" : a(f"s_setprio {(3,2,2,1,1,0,0)[n]}")
        if n < 6:
            a(f"{MF} {vr(S[(n+1)&1],16)}, {kf(j-1)}, {q}, {cn}")
            if n < 5: krd(j - 2)
            vrd((j - 1,))
        if n < 3 and (not opt('wo1')): wo_dma()
        for i in range(8): a(f"v_exp_f32 v{s+i}, v{s+i}")
        for i in range(4): a(f"v_cvt_pk_bf16_f32 v{p+i}, v{s+2*i}, v{s+2*i+1}")
        for i in range(8, 10): a(f"v_exp_f32 v{s+i}, v{s+i}")
        a(f"{MF} {o}, {vf(j,0)}, {vr(p,4)}, {o}")
        if n < 4 or not (not opt('wo1')): wo_dma()
        for i in range(10, 16): a(f"v_exp_f32 v{s+i}, v{s+i}")
        for i in range(4, 8): a(f"v_cvt_pk_bf16_f32 v{p+i}, v{s+2*i}, v{s+2*i+1}")
        a(f"s_cmp_eq_u32 s61, {n+2}\ns_waitcnt lgkmcnt(0)")
        a(f"{MF} {o}, {vf(j,1)}, {vr(p+4,4)}, {o}")
        if n < 6 and not opt("nobr"): a("s_cbranch_scc1 att_done")
    a.label("att_done")
    a(f"s_nop 0\ns_mov_b32 s14, {fhex(0.0 if FORCEFB else 2.0**90)}\nv_mov_b32 v6, 0")
    a(f"""s_lshl_b32 s101, s3, 3
    s_bfe_u32 s9, s4, 0x10003
    s_lshl_b32 s9, s9, 2
    s_add_u32 s101, s101, s9
    s_and_b32 s9, s7, 3
    s_add_u32 s101, s101, s9
    s_lshl_b32 s101, s101, 8
    s_add_u32 s101, s101, {FL2}""")
    a.nop(1)
    a(f"v_rcp_f32 v4, v{O+8}\nv_mov_b32 v7, v{O+8}")
    for i in range(8): a(f"v_fmac_f32 v7, v{O+i}, v6")
    a("v_add_f32 v7, v7, v4\nv_cmp_nge_f32 vcc, s14, v7\ns_cbranch_vccnz att_fb")
    a.label("att_fin")
    for i in range(8): a(f"v_mul_f32 v{O+i}, v{O+i}, v4")
    for i in range(4): a(f"v_cvt_pk_bf16_f32 v{P+i}, v{O+2*i}, v{O+2*i+1}")
    a(f"ds_write_b128 v{AO}, v[{P}:{P+3}]")
    stamp(a, 6)
    a.label("att_wo")
    a("s_cmp_ge_u32 s75, 8192\ns_cbranch_scc1 att_wo2")
    wo_dma()
    a("s_branch att_wo")
    a.label("att_wo2")
    a(f"s_setprio 0\nv_mov_b32 v4, 1\ns_waitcnt vmcnt(0)\ns_cmp_lt_u32 s3, 4\ns_cbranch_scc0 att_nt\n{TPL}\natt_nt:")
    a(f"s_waitcnt lgkmcnt(0)\ns_barrier\nds_read_b128 v[{P}:{P+3}], v{AR}\ns_waitcnt lgkmcnt(0)")
    a(f"buffer_store_dwordx4 v[{P}:{P+3}], v12, {W}, s62 offen sc1")
    def flag2(n): a(f"s_waitcnt vmcnt({n})\ns_mov_b64 exec, 1\nbuffer_atomic_add v4, off, {W}, s101 sc1\ns_mov_b64 exec, -1")
    a("s_cmp_lt_u32 s3, 4\ns_cbranch_scc1 out_comp")
    a(f"""s_sub_u32 s60, s3, 4
    s_lshr_b32 s9, s72, 1
    s_lshl_b32 s9, s9, 3
    s_lshl_b32 s10, s73, 2
    s_add_u32 s9, s9, s10
    s_add_u32 s9, s9, s60
    s_lshl_b32 s9, s9, 8
    s_add_u32 s9, s9, {FL2}
    s_mul_i32 s8, s72, {OP}
    s_lshl_b32 s10, s73, 16
    s_add_u32 s8, s8, s10
    s_lshl_b32 s10, s60, 12
    s_add_u32 s8, s8, s10
    s_add_u32 s8, s8, {OF}
    s_mov_b32 s15, 0""")
    flag2(0)
    a("s_mov_b64 exec, 1")
    PA = lambda r: f"v_mov_b32 v{r}, 0\nbuffer_atomic_add v{r}, off, {W}, s9 sc0 sc1"
    if opt("pp"):
        g = int(opt("pp"))
        a(f"{PA(6)}\ns_sleep {g}\no_poll:")
        for x, y in ((7, 6), (6, 7)):
            a(f"{PA(x)}\ns_waitcnt vmcnt(1)\nv_cmp_gt_u32 vcc, 32, v{y}\ns_add_u32 s15, s15, 1\ns_cbranch_vccz o_polled")
        a("s_cmp_lt_u32 s15, 0x80000\ns_cbranch_scc1 o_poll")
    else:
        a(f"o_poll:\n{PA(6)}\ns_add_u32 s15, s15, 1\ns_waitcnt vmcnt(0)\nv_cmp_gt_u32 vcc, 32, v6")
        a(f"s_cmp_gt_u32 s15, 0x40000\ns_cbranch_scc1 o_polled\ns_cbranch_vccz o_polled\ns_sleep {int(opt('psleep2', 0))}\ns_branch o_poll")
    a("o_polled:\ns_mov_b64 exec, -1")
    stamp(a, 7)
    def oissue(c):
        a(f"s_add_u32 m0, s10, {R[1] + 16384*c}")
        a("s_add_u32 s8, s8, 16384" if c else "s_nop 0")
        for i in range(4): a(f"buffer_load_dwordx4 v14, {W}, s8 offen offset:{1024*i} sc1 lds")
    OS_ = eval(opt("osched", "[[0,1],[2],[3],[]]"))
    ni = 0
    for c in range(4):
        for u in OS_[c]: oissue(u); ni += 1
        a(f"s_waitcnt vmcnt({4*(ni-c-1)})\ns_barrier")
    stamp_out(a, 0)
    a("s_endpgm")
    AB, AY, FR = 64, 80, 192
    a.label("out_comp")
    a("s_lshr_b32 s66, s3, 1\ns_and_b32 s67, s3, 1")
    srd(a, sOUT, 34, 2048 * 512 * 2)
    a(f"""v_and_b32 v1, 31, v0
    v_lshrrev_b32 v2, 5, v0
    s_lshl_b32 s9, s67, 5
    s_lshl_b32 s10, s73, 6
    s_add_u32 s9, s9, s10
    v_add_u32 v3, s9, v1
    v_bfe_u32 v9, v0, 3, 2
    v_lshlrev_b32 v6, 9, v9
    v_and_b32 v9, 1, v9
    v_xor_b32 v9, v9, v2
    v_lshl_add_u32 v6, v9, 7, v6
    v_and_b32 v9, 7, v0
    v_lshl_add_u32 v6, v9, 4, v6
    s_lshl_b32 s9, s67, 11
    s_add_u32 s9, s9, {R[1]}
    v_add_u32 v6, s9, v6
    v_bfe_u32 v9, v0, 2, 2
    v_lshl_add_u32 v7, v2, 2, v9
    v_lshlrev_b32 v7, 7, v7
    v_lshrrev_b32 v9, 1, v9
    v_xor_b32 v9, s66, v9
    v_lshl_add_u32 v7, v9, 6, v7
    v_and_b32 v9, 1, v0
    v_lshl_add_u32 v7, v9, 5, v7
    v_bfe_u32 v9, v0, 4, 1
    v_lshl_add_u32 v7, v9, 4, v7
    v_bfe_u32 v9, v0, 1, 1
    v_lshl_add_u32 v7, v9, 3, v7
    v_add_u32 v7, {R[3]}, v7
    v_bfe_u32 v9, v0, 2, 1
    v_lshlrev_b32 v8, 4, v9
    v_and_b32 v9, 3, v0
    v_add_u32 v8, v8, v9
    v_bfe_u32 v9, v0, 3, 2
    v_lshl_add_u32 v8, v9, 2, v8
    s_lshl_b32 s9, s66, 5
    s_lshl_b32 s10, s74, 6
    s_add_u32 s9, s9, s10
    v_add_u32 v8, s9, v8
    v_sub_u32 v9, 512, v8
    s_sub_u32 s12, 16, s72
    s_and_b32 s12, s12, 15
    s_cmp_ge_u32 s74, 4
    s_cselect_b32 s12, s12, s72
    s_cselect_b32 s13, -1, 0
    v_bfi_b32 v8, s13, v9, v8
    v_lshlrev_b32 v8, 4, v8
    v_mul_u32_u24 v9, {TP}, v2
    v_add_u32 v8, v8, v9
    s_lshl_b32 s12, s12, 1
    s_add_u32 s12, s12, s67
    s_mul_i32 s12, s12, {16*TP}
    s_add_u32 s12, s12, {TF}
    s_lshl_b32 s9, s3, 12
    v_add_u32 v29, s9, v14
    v_xor_b32 v30, 4096, v29
    v_lshlrev_b32 v28, 14, v3
    v_lshl_add_u32 v28, v2, 5, v28
    s_lshl_b32 s14, s72, 10
    s_lshl_b32 s10, s74, 7
    s_add_u32 s14, s14, s10
    s_lshl_b32 s10, s66, 6
    s_add_u32 s14, s14, s10
    v_lshlrev_b32 v5, 2, v3
    s_lshl_b32 s11, s72, 9
    s_add_u32 s11, s11, {GF}
    s_mov_b32 s15, 0""")
    ab = vr(AB, 16); ay = vr(AY, 16)
    AZ = 224
    FG0 = len(a.lines)
    a("""s_cmp_eq_u32 s72, 0
    s_cselect_b32 s9, 1, 0
    s_add_u32 s9, s9, 127
    s_lshl_b32 s10, s67, 4
    v_add_u32 v15, s10, v2
    v_cvt_f32_u32 v15, v15
    v_mul_f32 v15, 4.0, v15""")
    a("""s_sub_u32 s77, 0, s67
    s_xor_b32 s77, s77, s13
    s_and_b32 s77, s77, 0x80008000
    v_sub_u32 v10, s9, v3
    v_and_b32 v10, 127, v10
    v_bfi_b32 v10, s13, v10, v3
    v_cvt_f32_u32 v10, v10
    v_mul_f32 v10, 0x3c000000, v10
    v_mul_f32 v11, v15, v10
    v_mul_f32 v12, 0x41000000, v10
    v_cos_f32 v12, v12
    s_nop 0
    v_add_f32 v12, v12, v12""")
    WF = [96 + 4 * k for k in range(24)] + [32 + 4 * k for k in range(8)]
    early = [h for h in range(32) if 128 <= WF[h] < 160 or 36 <= WF[h] < 48] if opt("ewo", "1") == "1" else []
    eq = list(early)
    def word(h):
        a(f"ds_read_b64_tr_b16 v[{WF[h]}:{WF[h]+1}], v7 offset:{2048*h}")
        a(f"ds_read_b64_tr_b16 v[{WF[h]+2}:{WF[h]+3}], v7 offset:{2048*h+1024}")
    for k in range(8):
        r = 112 + 8 * (k & 1); o_ = 112 + 8 * (1 - (k & 1))
        for u in range(4):
            x, y = r + 2 * u, r + 2 * u + 1
            if k < 2: a(f"v_fmamk_f32 v13, v10, {fhex(float(8*k+u))}, v11\nv_cos_f32 v{x}, v13\nv_sin_f32 v{y}, v13\ns_nop 0")
            else: a(f"v_fma_f32 v{x}, v12, v{o_+2*u}, -v{x}\nv_fma_f32 v{y}, v12, v{o_+2*u+1}, -v{y}")
            a(f"v_cvt_pk_bf16_f32 v{FREG[k]+u}, v{x}, v{y}")
            d = FREG[8 + k] + u
            if u == 0: a(f"v_mov_b32 v{d}, v{FREG[k]}")
            if u == 2: a(f"v_xor_b32 v{d}, 0x80008000, v{FREG[k]+2}")
            if u == 1: a(f"v_cvt_pk_bf16_f32 v{d}, -v{y}, v{x}\nv_xor_b32 v{d}, s77, v{d}")
            if u == 3: a(f"v_cvt_pk_bf16_f32 v{d}, v{y}, -v{x}\nv_xor_b32 v{d}, s77, v{d}")
            if (u & 1) and eq: word(eq.pop(0))
    fgl = a.lines[FG0:]; del a.lines[FG0:]
    FCUT = int(opt("fcut", 70))
    a.lines += fgl[:FCUT]
    flag2(0)
    stamp(a, 7)
    a(f"t_poll:\n{TCHK}")
    a(f"s_add_u32 s15, s15, 1\ns_cmp_gt_u32 s15, 0x40000\ns_cbranch_scc1 t_polled\ns_cbranch_vccz t_polled\ns_sleep {int(opt('psleep3', 8))}\n{TPL}\ns_waitcnt vmcnt(0)\ns_branch t_poll\nt_polled:")
    for k in range(8):
        a(f"buffer_load_dwordx4 v[{FR+4*k}:{FR+4*k+3}], v8, {W}, s12 offen sc1")
        if k < 7: a(f"s_add_u32 s12, s12, {2*TP}")
    a.lines += fgl[FCUT:]
    az = vr(AZ, 16)
    for k in range(8):
        a(f"s_waitcnt vmcnt({7-k})")
        a(f"{MF} {az}, {vr(FR+4*k,4)}, {vr(FREG[8+k],4)}, {'0' if k == 0 else az}")
        a(f"{MF} {ay}, {vr(FR+4*k,4)}, {vr(FREG[k],4)}, {'0' if k == 0 else ay}")
    for h in range(32):
        if h not in early: word(h)
    for i in range(4): a(f"ds_write_b128 v29, v[{AZ+4*i}:{AZ+4*i+3}] offset:{R[0]+1024*i}")
    a("s_waitcnt lgkmcnt(0)")
    def ords(c):
        for h in range(8): a(f"ds_read_b128 v[{FR+32*(c&1)+4*h}:{FR+32*(c&1)+4*h+3}], v6 offset:{16384*c+4096*(h>>1)+256*(h&1)}")
    SPL = int(opt("spl", 3))
    a("s_barrier")
    ords(0)
    a(f"buffer_load_dword v24, v5, {W}, s11 offen sc1")
    for c in range(4):
        for h in range(8):
            if h <= SPL: a(f"s_waitcnt lgkmcnt({7-h if h < SPL else 0})")
            a(f"{MF} {ab}, {vr(WF[8*c+h],4)}, {vr(FR+32*(c&1)+4*h,4)}, {'0' if c + h == 0 else ab}")
            if h == SPL and c < 3:
                a("s_barrier")
                if c == 1:
                    for i in range(4): a(f"ds_read_b128 v[{96+4*i}:{96+4*i+3}], v30 offset:{R[0]+1024*i}")
                ords(c + 1)
            if c == 3 and h < 4:
                for i in range(4 * h, 4 * h + 4): a(f"v_add_f32 v{AY+i}, v{AY+i}, v{96+i}")
            if c == 3 and h == 4: a("s_waitcnt vmcnt(0)\nv_sub_f32 v25, 1.0, v24")
            if c == 3 and 4 <= h:
                for i in range(4 * (h - 4), 4 * (h - 3)): a(f"v_mul_f32 v{AY+i}, v{AY+i}, v24")
    a.nop(8)
    for i in range(16): a(f"v_fmac_f32 v{AY+i}, v{AB+i}, v25")
    for i in range(8): a(f"v_cvt_pk_bf16_f32 v{FR+i}, v{AY+2*i}, v{AY+2*i+1}")
    a(f"buffer_store_dwordx4 v[{FR}:{FR+3}], v28, s[{sOUT}:{sOUT+3}], s14 offen")
    a(f"buffer_store_dwordx4 v[{FR+4}:{FR+7}], v28, s[{sOUT}:{sOUT+3}], s14 offen offset:16")
    stamp_out(a, 0)
    a("s_endpgm")
    a.label("att_fb")
    a("s_cmp_lg_u32 s15, 0\ns_cbranch_scc1 att_fin\ns_mov_b32 s15, 1\ns_mov_b32 s75, 0\ns_mov_b32 s14, 0xff800000\nv_mov_b32 v3, s14")
    def fbtile(j, mask):
        a(f"ds_read_b128 {vr(KRG,4)}, v{AK} offset:{4096*j}\ns_waitcnt lgkmcnt(0)")
        a(f"{MF} {vr(SA,16)}, {vr(KRG,4)}, {q}, 0")
        a.nop(12)
        if mask == 8:
            for i in range(16): a(f"v_bfi_b32 v{SA+i}, v{TM+i}, s14, v{SA+i}")
        if mask == 0:
            for i in range(16): a(f"v_bfi_b32 v{SA+i}, v{TM+i}, v{SA+i}, s14")
        for i in range(8): a(f"v_max3_f32 v{m}, v{m}, v{SA+2*i}, v{SA+2*i+1}")
    fbtile(8, 8)
    for n in range(8):
        a(f"s_cmp_eq_u32 s61, {n+1}\ns_cbranch_scc1 att_fb2")
        fbtile(7 - n, 0 if n == 7 else None)
    a.label("att_fb2")
    a(f"v_mov_b32 v4, v{m}\ns_nop 1\nv_permlane32_swap_b32 v4, v{m}\ns_nop 0\nv_max_f32 v{m}, v4, v{m}")
    a(f"v_sub_f32 v{CN}, 0, v{m}\nv_sub_f32 v{CN+1}, 0, v{m}")
    for i in range(2, 16, 2): a(f"v_mov_b64 v[{CN+i}:{CN+i+1}], v[{CN}:{CN+1}]")
    a("s_branch att_retry")
    if opt("lpos", "end") == "end": a.lines += l_lines

def desc(name, nv):
    return f""".p2align 6
.amdhsa_kernel {name}
  .amdhsa_next_free_vgpr {nv}
  .amdhsa_next_free_sgpr 102
  .amdhsa_accum_offset {(nv+3)//4*4}
  .amdhsa_group_segment_fixed_size 0
  .amdhsa_kernarg_size 96
  .amdhsa_user_sgpr_count 2
  .amdhsa_user_sgpr_kernarg_segment_ptr 1
  .amdhsa_system_sgpr_workgroup_id_x 1
.end_amdhsa_kernel
"""

a = Asm()
ka(a)
for m in check_hazards(a.lines): print("HAZARD", m, file=sys.stderr)
hdr = """; out = g*Re(DFT_seq(DFT_hid(x))) + (1-g)*(sliding-window attention(x) @ wo), one persistent launch, 256 workgroups of 8 waves.
"""
hdr += "; @launch grid=(256,1,1) block=(512,1,1) lds=163840\n"
hdr += f'.amdgcn_target "amdgcn-amd-amdhsa--gfx950"\n.text\n.globl {NAME}\n.type {NAME},@function\n'
out = hdr + a.text() + '.section .rodata,"a"\n' + desc(NAME, 256)
fn = [x for x in sys.argv[1:] if not x.startswith("--")][0]
open(fn, "w").write(out)
```

```python
import sys, math
from asmlib import *

def opt(name, default=None):
    for x in sys.argv:
        if x == "--" + name: return True
        if x.startswith("--" + name + "="): return x.split("=", 1)[1]
    return default
STAMP = opt("stamp", False)
STAG = int(opt("stag", 7))
PSLEEP = int(opt("psleep", 0))
FORCEFB = opt("forcefb", False)
KVB, TF, OF, GF, FL1, FL2, FL3 = 0x000000, 0x400000, 0x700000, 0xA00000, 0xA80000, 0xB00000, 0xB80000
STF = 0xC00000
WS_BYTES = 0x1000000
TP = 4224
OP = 131072 + 1024
MF = "v_mfma_f32_32x32x16_bf16"
MF16 = "v_mfma_f32_16x16x32_bf16"
QSCALE = 0.25 * math.log2(math.e)
sX, sW, sWS, sG, sDB, sOUT = 40, 44, 48, 52, 56, 68
NAME = 'gated_mix__spectral_fnet__sliding_block__prompt_kernel'
W = f"s[{sWS}:{sWS+3}]"
R = [32768 * i for i in range(5)]
L_KV, L_QB, L_ZX, L_OS = R[1], R[2] + 16384, R[2] + 20480, R[0] + 16384

def srd(a, d, ptr, nbytes):
    a(f"s_mov_b32 s{d}, s{ptr}\ns_mov_b32 s{d+1}, s{ptr+1}\ns_mov_b32 s{d+2}, {nbytes}\ns_mov_b32 s{d+3}, 0x00020000")

def entry(a, name):
    a(f".p2align 12\n{name}:")
    stamp(a, 0)
    a("s_load_dwordx16 s[16:31], s[0:1], 0")
    a("s_load_dwordx8 s[32:39], s[0:1], 64")
    a(f"s_cmp_ge_u32 s2, 256\ns_cbranch_scc1 {name}_end")
    a("v_lshrrev_b32 v1, 6, v0\nv_and_b32 v0, 63, v0\nv_readfirstlane_b32 s3, v1")

def stamp(a, i, p1=False):
    if opt("p1st") and i and not p1: return
    if STAMP: a(f"s_memrealtime s[{80+2*i}:{81+2*i}]")

def stamp_out(a, kidx):
    if not STAMP: return
    a("s_memrealtime s[96:97]\ns_waitcnt vmcnt(0) lgkmcnt(0)\ns_memrealtime s[98:99]\ns_waitcnt lgkmcnt(0)")
    a(f"s_lshl_b32 s78, s2, 3\ns_add_u32 s78, s78, s3\ns_lshl_b32 s78, s78, 7\ns_add_u32 s78, s78, {STF + kidx * 262144}")
    a("s_mov_b64 exec, 1")
    for i in range(20): a(f"v_mov_b32 v{4+i}, s{80+i}")
    a("v_mov_b32 v2, s78")
    for i in range(5): a(f"buffer_store_dwordx4 v[{4+4*i}:{7+4*i}], v2, {W}, 0 offen offset:{16*i}")

QA, QB = 20, 24
TM, PM, VB, KRG, SA, SB, SC_, CN, P, O = 192, 208, 216, 144, 64, 80, 128, 112, 32, 128
GX = 248
FREG = [160 + 4 * k for k in range(8)] + [96 + 4 * k for k in range(4)] + [48 + 4 * k for k in range(4)]
AK, AV, AO, AR = 8, 9, 10, 11
NONCE = 16

def att_setup(a):
    a("""v_and_b32 v2, 31, v0
    v_lshrrev_b32 v3, 5, v0
    v_lshlrev_b32 v4, v2, -2
    v_lshlrev_b32 v5, 2, v3
    v_lshrrev_b32 v4, v5, v4
    s_mov_b32 s13, 0xffff""")
    for r in range(16): a(f"v_bfe_i32 v{TM+r}, v4, {(r & 3) + 8 * (r >> 2)}, 1")
    for p in range(8): a(f"v_bfi_b32 v{PM+p}, s13, v{TM+2*p}, v{TM+2*p+1}")
    a(f"v_mov_b32 v{VB}, 0x3f803f80\nv_mov_b32 v{VB+1}, v{VB}")
    for i in range(2, 32, 2): a(f"v_mov_b64 v[{VB+i}:{VB+i+1}], v[{VB}:{VB+1}]")
    a(f"""s_and_b32 s9, s3, 3
    s_lshr_b32 s10, s3, 2
    s_lshl_b32 s11, s9, 12
    s_add_u32 s11, s11, {L_KV}
    s_lshl_b32 s12, s10, 10
    s_add_u32 s12, s12, s11
    v_lshlrev_b32 v4, 4, v0
    v_add_u32 v{AK}, s12, v4
    s_lshl_b32 s12, s10, 8
    s_add_u32 s12, s12, s11
    v_add_u32 v{AV}, s12, v4
    v_and_b32 v5, 15, v0
    v_mul_u32_u24 v5, 528, v5
    s_and_b32 s12, s4, 1
    v_xor_b32 v6, s12, v3
    v_lshl_add_u32 v5, v6, 7, v5
    v_bfe_u32 v6, v0, 4, 1
    v_lshl_add_u32 v5, v6, 4, v5
    s_lshl_b32 s12, s10, 8
    s_lshl_b32 s11, s9, 5
    s_add_u32 s12, s12, s11
    s_add_u32 s12, s12, {L_OS}
    v_add_u32 v{AO}, s12, v5
    s_mul_i32 s12, s3, 1056
    s_add_u32 s12, s12, {L_OS}
    v_mul_u32_u24 v5, 528, v3
    v_lshl_add_u32 v5, v2, 4, v5
    v_add_u32 v{AR}, s12, v5
    v_mul_u32_u24 v5, {OP}, v3
    v_lshl_add_u32 v12, v2, 4, v5""")
    a(f"""s_lshl_b32 s61, s4, 2
    s_add_u32 s61, s61, s9
    s_add_u32 s61, s61, 1
    s_min_u32 s61, s61, 9
    s_mul_i32 s62, s3, {2*OP}
    s_lshr_b32 s11, s4, 3
    s_lshl_b32 s11, s11, 16
    s_add_u32 s62, s62, s11
    s_lshl_b32 s11, s7, 12
    s_add_u32 s62, s62, s11
    s_and_b32 s11, s4, 7
    s_lshl_b32 s11, s11, 9
    s_add_u32 s62, s62, s11
    s_add_u32 s62, s62, {OF}""")
    a("""s_and_b32 s72, s2, 7
    s_lshl_b32 s72, s72, 1
    s_bfe_u32 s11, s2, 0x10003
    s_add_u32 s72, s72, s11
    s_bfe_u32 s73, s2, 0x10004
    s_lshr_b32 s74, s2, 5
    s_mov_b32 s75, 0
    v_lshlrev_b32 v14, 4, v0
    v_lshrrev_b32 v4, 3, v0
    v_lshlrev_b32 v4, 10, v4
    v_bfe_u32 v5, v0, 2, 1
    v_bfe_u32 v6, v0, 4, 1
    v_xor_b32 v5, v5, v6
    v_lshl_add_u32 v4, v5, 6, v4
    v_and_b32 v5, 3, v0
    v_lshl_add_u32 v4, v5, 4, v4
    s_lshl_b32 s11, s3, 16
    s_lshl_b32 s12, s74, 7
    s_add_u32 s11, s11, s12
    v_add_u32 v13, s11, v4""")
    srd(a, sOUT, 30, 512 * 512 * 2)

L_CNT = R[2] + 32512
def signal(a, k):
    a(f"s_mov_b64 exec, 1\nds_add_u32 v{CA}, v{CA+1} offset:{4*k}\ns_mov_b64 exec, -1")
_wn = [0]
def waitcnt_lds(a, k, n):
    _wn[0] += 1; t = f"lw{_wn[0]}"
    if opt("lsleep"):
        a(f"s_branch {t}e\n{t}:\ns_sleep {int(opt('lsleep'))}\n{t}e:\nds_read_b32 v{CA+2}, v{CA} offset:{4*k}\ns_waitcnt lgkmcnt(0)\nv_readfirstlane_b32 s78, v{CA+2}\ns_cmp_lt_u32 s78, {n}\ns_cbranch_scc1 {t}")
    else:
        a(f"{t}:\nds_read_b32 v{CA+2}, v{CA} offset:{4*k}\ns_waitcnt lgkmcnt(0)\nv_readfirstlane_b32 s78, v{CA+2}\ns_cmp_lt_u32 s78, {n}\ns_cbranch_scc1 {t}")
CA = 28

def get_nonce(a, tag, NONCE=None):
    NONCE = NONCE or (127 if tag == "ln" else 16)
    a("s_mov_b32 s15, 0")
    a(f"{tag}_n0:\nv_readfirstlane_b32 s63, v{NONCE}\ns_add_u32 s15, s15, 1\ns_cmp_lg_u32 s63, 0\ns_cbranch_scc1 {tag}_n1")
    a(f"s_cmp_gt_u32 s15, 0x40000\ns_cbranch_scc1 {tag}_n1\ns_sleep 2\nbuffer_load_dword v{NONCE}, off, s[{sDB}:{sDB+3}], 0 sc1\ns_waitcnt vmcnt(0)\ns_branch {tag}_n0")
    a(f"{tag}_n1:")

def ka(a):
    N = NAME
    entry(a, N)
    a(f"""s_getpc_b64 s[10:11]
    {N}_pc:
    s_nop 2
    s_sub_u32 s9, s3, 4
    s_cmp_ge_u32 s9, 3
    s_cbranch_scc1 {N}_npf
    s_lshl_b32 s9, s9, 13
    s_sub_u32 s9, s9, {N}_pc-{N}
    v_lshl_add_u32 v4, v0, 7, s9
    v_ashrrev_i32 v5, 31, v4
    v_add_co_u32 v4, vcc, s10, v4
    v_mov_b32 v6, s11
    s_nop 0
    v_addc_co_u32 v5, vcc, v6, v5, vcc
    global_load_dword v127, v[4:5], off
    {N}_npf:""")
    a("""s_and_b32 s8, s2, 7
    s_lshr_b32 s9, s2, 3
    s_lshr_b32 s10, s8, 1
    s_and_b32 s11, s8, 1
    s_lshl_b32 s4, s10, 2
    s_and_b32 s12, s9, 3
    s_add_u32 s4, s4, s12
    s_lshl_b32 s5, s11, 2
    s_bfe_u32 s13, s9, 0x20002
    s_add_u32 s5, s5, s13
    s_lshr_b32 s6, s9, 4
    s_lshl_b32 s7, s5, 1
    s_add_u32 s7, s7, s6""")
    a(f"v_mov_b32 v8, {L_CNT}\nv_mov_b64 v[4:5], 0\nv_mov_b64 v[6:7], 0\nds_write_b128 v8, v[4:7]\nds_write_b128 v8, v[4:7] offset:16")
    a("s_and_b32 s60, s3, 3")
    if STAG == 1: a("s_lshr_b32 s66, s9, 2\ns_lshl_b32 s13, s12, 1\ns_add_u32 s66, s66, s13")
    elif STAG == 0: a("s_mov_b32 s66, 0")
    else:
        XM = {2: (1, 1), 3: (1, 2), 4: (3, 1), 5: (1, 0), 6: (3, 0), 7: (3, 1), 8: (3, 1)}[STAG]
        a(f"s_lshr_b32 s66, s9, 2\ns_add_u32 s66, s66, s12\ns_and_b32 s66, s66, {XM[0]}\ns_lshl_b32 s66, s66, {XM[1]}")
    if STAG == 8:
        T = eval(opt("perm", "[[0,1,2,3,4,5,6,7],[0,3,4,5,6,7,1,2],[4,5,6,7,0,1,2,3],[4,7,2,1,0,3,5,6]]"))
        enc = [sum(c << (4 * k) for k, c in enumerate(t)) for t in T]
        a(f"s_mov_b32 s15, {enc[0]}")
        for k in range(1, 4): a(f"s_cmp_eq_u32 s66, {2*k}\ns_cselect_b32 s15, {enc[k]}, s15")
    a("s_lshl_b32 s64, s8, 2\ns_add_u32 s64, s64, s12\ns_lshr_b32 s65, s9, 2")
    XV, WV, QV, AXV, AA, WG, FP, ACC, XF, PK, ZB = 96, 100, 102, 104, 112, 128, 48, 64, 16, 32, 96
    global CA
    CA = 124
    a(f"""v_lshrrev_b32 v1, 3, v0
    v_and_b32 v2, 7, v0
    v_lshrrev_b32 v3, 4, v0
    v_xor_b32 v2, v2, v3
    v_lshlrev_b32 v2, 4, v2
    s_lshl_b32 s8, s4, 17
    s_lshl_b32 s10, s60, 15
    s_add_u32 s8, s8, s10
    v_lshl_add_u32 v5, v1, 10, v2
    v_add_u32 v{XV}, s8, v5
    v_add_u32 v{XV+1}, 7168, v{XV}
    v_xor_b32 v{XV+1}, 64, v{XV+1}
    v_add_u32 v{XV+2}, 14336, v{XV}
    v_add_u32 v{XV+3}, 14336, v{XV+1}
    v_mul_u32_u24 v5, 3072, v1
    v_bfe_u32 v6, v0, 2, 1
    v_and_b32 v7, 1, v3
    v_xor_b32 v6, v6, v7
    v_lshl_add_u32 v5, v6, 6, v5
    v_and_b32 v7, 3, v0
    v_lshl_add_u32 v5, v7, 4, v5
    s_mul_i32 s8, s60, 49152
    s_lshl_b32 s10, s6, 10
    s_add_u32 s10, s10, s8
    s_lshl_b32 s11, s5, 7
    s_add_u32 s10, s10, s11
    s_add_u32 s10, s10, 1024
    v_add_u32 v{WV}, s10, v5
    v_add_u32 v{WV+1}, 23552, v{WV}
    s_lshl_b32 s14, s60, 12
    s_lshl_b32 s67, s60, 11
    s_waitcnt lgkmcnt(0)""")
    srd(a, sX, 16, 2048 * 512 * 2)
    srd(a, sW, 28, 512 * 1536 * 2)
    SX = f"s[{sX}:{sX+3}]"; SW = f"s[{sW}:{sW+3}]"
    def chunk_idx(n):
        if STAG == 1: a(f"s_add_u32 s9, s66, {n}\ns_and_b32 s9, s9, 7")
        elif STAG == 7:
            if n == 0: a("s_mov_b32 s9, 0")
            else: a(f"s_add_u32 s9, s66, {n}\ns_cmp_gt_u32 s9, 7\ns_cselect_b32 s10, 7, 0\ns_sub_u32 s9, s9, s10")
        elif STAG == 8:
            a(f"s_lshr_b32 s9, s15, {4*n}\ns_and_b32 s9, s9, 7")
        else: a(f"s_xor_b32 s9, s66, {n}")
    pieces = []
    PER = int(opt("per", 1))
    def dma(x):
        a(x)
        for _ in range(PER):
            if pieces: a(pieces.pop(0))
    def issue(u):
        reg = R[u % 5]
        if u < 8:
            chunk_idx(u)
            a(f"s_add_u32 m0, s14, {reg}\ns_lshl_b32 s10, s9, 7\ns_mul_i32 s11, s9, 196608")
            for i in range(4): dma(f"buffer_load_dwordx4 v{XV+i}, {SX}, s10 offen offset:{1024*i} lds")
            a(f"s_add_u32 m0, s67, {reg+16384}\ns_nop 0")
            for i in range(2): dma(f"buffer_load_dwordx4 v{WV+i}, {SW}, s11 offen offset:{1024*i} lds")
            return 6
        if u == 8:
            a(f"s_lshr_b32 s12, s67, 1")
            for n in range(8):
                chunk_idx(n)
                a(f"s_add_u32 m0, s12, {reg+4096*n}\ns_mul_i32 s11, s9, 196608")
                dma(f"buffer_load_dwordx4 v{QV}, {SW}, s11 offen lds")
            return 8
        a(f"s_lshl_b32 s12, s14, 1\ns_movk_i32 s10, {512*(u-9)}")
        for i in range(8):
            if i % 4 == 0: a(f"s_add_u32 m0, s12, {reg+1024*i}\ns_nop 0")
            dma(f"buffer_load_dwordx4 v{AXV+i}, {SX}, s10 offen offset:{1024*(i%4)} lds")
        return 8
    NGU = int(opt("ng", 2))
    a(f"s_cmp_ge_u32 s3, 4\ns_cbranch_scc1 {N}_L")
    for u in range(NGU): issue(u)
    main_lines = a.lines; a.lines = []
    a(".p2align 6")
    a.label(f"{N}_L")
    def late_setup():
        a(f"""v_lshrrev_b32 v5, 2, v0
        v_mul_u32_u24 v5, 3072, v5
        v_lshl_add_u32 v5, v7, 4, v5
        s_lshl_b32 s10, s7, 6
        s_add_u32 s10, s10, s8
        v_add_u32 v{QV}, s10, v5""")
        a(f"""v_and_b32 v1, 31, v0
        v_lshrrev_b32 v2, 5, v0
        v_xor_b32 v5, v1, v2
        v_lshlrev_b32 v5, 4, v5
        v_lshl_add_u32 v5, v2, 17, v5
        s_lshl_b32 s10, s64, 2
        s_add_u32 s10, s10, s60
        s_lshl_b32 s10, s10, 10
        v_add_u32 v5, s10, v5""")
        for n in range(8):
            a(f"v_xor_b32 v{AXV+n}, {32*n}, v5")
            if n: a(f"v_add_u32 v{AXV+n}, {n*2*131072-1024*(n%4)}, v{AXV+n}")
        a(f"""v_and_b32 v5, 15, v0
        v_xor_b32 v5, v5, v2
        v_lshlrev_b32 v5, 4, v5
        v_lshl_add_u32 v5, v1, 9, v5
        s_lshr_b32 s10, s60, 1
        s_lshl_b32 s10, s10, 14
        s_add_u32 s10, s10, {R[4]}
        v_add_u32 v{AA}, s10, v5""")
        for ks in range(1, 8): a(f"v_xor_b32 v{AA+ks}, {32*ks}, v{AA}")
        a(f"v_mov_b32 v{CA}, {L_CNT}\nv_mov_b32 v{CA+1}, 1")
        a("""s_lshl_b32 s10, s65, 5
        v_add_u32 v5, s10, v1
        s_and_b32 s11, s60, 1
        v_lshlrev_b32 v15, 31, v5
        v_or_b32 v15, 1.0, v15
        v_sub_u32 v6, v5, s11
        v_ashrrev_i32 v6, 31, v6
        v_and_b32 v7, 256, v6
        v_or_b32 v5, v5, v7
        v_cvt_f32_u32 v120, v5
        v_mul_f32 v120, 0x3b000000, v120
        s_mul_i32 s11, s11, 0x3e800000
        v_not_b32 v6, v6
        v_and_b32 v121, s11, v6
        v_cvt_f32_u32 v5, v2
        v_mul_f32 v5, 0x41000000, v5
        v_fmac_f32 v121, v5, v120""")
    def gen_pieces():
        a("v_mul_f32 v123, 0x41800000, v120\nv_cos_f32 v123, v123\ns_nop 0\nv_add_f32 v123, v123, v123")
        for ks in range(16):
            r = 16 + 8 * (ks & 1); o_ = 16 + 8 * (1 - (ks & 1))
            for p in range(4):
                x, y = r + 2 * p, r + 2 * p + 1
                if ks < 2:
                    pieces.append(f"v_fmamk_f32 v{x}, v120, {fhex(float(16*ks+2*p))}, v121\nv_add_f32 v{y}, v{x}, v120\nv_cos_f32 v{x}, v{x}\nv_cos_f32 v{y}, v{y}\ns_nop 0\nv_cvt_pk_bf16_f32 v{WG+4*ks+p}, v{x}, v{y}")
                else:
                    pieces.append(f"v_fma_f32 v{x}, v123, v{o_+2*p}, -v{x}\nv_fma_f32 v{y}, v123, v{o_+2*p+1}, -v{y}\nv_cvt_pk_bf16_f32 v{WG+4*ks+p}, v{x}, v{y}")
    def first():
        srd(a, sWS, 38, WS_BYTES)
        srd(a, sDB, 36, 256)
        a(f"s_xor_b32 s9, s60, 3\ns_or_b32 s9, s9, s2\ns_cmp_lg_u32 s9, 0\ns_cbranch_scc1 {N}_nn")
        a(f"v_lshlrev_b32 v4, 8, v0\nv_mov_b32 v5, 0\ns_mov_b32 s9, {FL2}\nbuffer_store_dword v5, v4, {W}, s9 offen sc1")
        a("s_memrealtime s[10:11]\ns_waitcnt vmcnt(0) lgkmcnt(0)\ns_or_b32 s10, s10, 1\nv_mov_b32 v4, s10\ns_mov_b64 exec, 1")
        a(f"buffer_store_dword v4, off, s[{sDB}:{sDB+3}], 0 sc1\ns_mov_b64 exec, -1")
        a.label(f"{N}_nn")
    def touch():
        if opt("notouch"): return
        a(f"s_cmp_lg_u32 s60, 3\ns_cbranch_scc1 {N}_ntt")
        srd(a, sOUT, 34, 2048 * 512 * 2)
        srd(a, sG, 30, 512 * 512 * 2)
        a(f"v_lshlrev_b32 v4, 21, v0\nv_add_u32 v4, 0x1fff80, v4\ns_mov_b64 exec, 63\nbuffer_load_dword v127, v4, {W}, 0 offen sc1\ns_mov_b64 exec, 1")
        a(f"buffer_load_dword v127, off, s[{sOUT}:{sOUT+3}], 0 sc1\nbuffer_load_dword v127, off, s[{sG}:{sG+3}], 0")
        if True: a(f"buffer_load_dword v127, off, s[{sDB}:{sDB+3}], 0 offset:128 sc1")
        a("s_mov_b64 exec, -1")
        a.label(f"{N}_ntt")
    def warm():
        WM = opt("warm", "q")
        if "q" in WM:
            a(f"""s_cmp_lg_u32 s60, 0
            s_cbranch_scc1 {N}_w1
            s_and_b32 s9, s4, 3
            s_lshl_b32 s9, s9, 1
            s_add_u32 s9, s9, s6
            s_mul_i32 s9, s9, 196608
            s_lshl_b32 s10, s5, 7
            s_add_u32 s9, s9, s10
            v_mul_u32_u24 v4, 3072, v0
            buffer_load_dword v127, v4, {SW}, s9 offen
            {N}_w1:""")
        if "x" in WM:
            a(f"""s_cmp_lg_u32 s60, 1
            s_cbranch_scc1 {N}_w2
            s_lshl_b32 s9, s64, 12
            s_lshl_b32 s10, s65, 7
            s_add_u32 s9, s9, s10
            v_lshrrev_b32 v4, 2, v0
            v_lshlrev_b32 v4, 17, v4
            v_and_b32 v5, 3, v0
            v_lshl_add_u32 v4, v5, 10, v4
            buffer_load_dword v127, v4, {SX}, s9 offen
            {N}_w2:""")
        if "o" in WM:
            srd(a, sG, 30, 512 * 512 * 2)
            a(f"""s_cmp_lt_u32 s60, 2
            s_cbranch_scc1 {N}_w3
            s_lshr_b32 s9, s2, 3
            s_lshl_b32 s9, s9, 1
            s_add_u32 s9, s9, s60
            s_sub_u32 s9, s9, 2
            s_lshl_b32 s9, s9, 13
            v_lshlrev_b32 v4, 7, v0
            buffer_load_dword v127, v4, s[{sG}:{sG+3}], s9 offen
            {N}_w3:""")
    def gw_loads():
        srd(a, sG, 32, 1024)
        a(f"""v_lshlrev_b32 v6, 5, v0
        v_and_b32 v6, 1023, v6
        buffer_load_dwordx4 v[56:59], v6, s[{sG}:{sG+3}], 0 offen
        buffer_load_dwordx4 v[60:63], v6, s[{sG}:{sG+3}], 0 offen offset:16""")
    def gate_loads():
        a(f"""s_lshl_b32 s76, s4, 7
        s_lshl_b32 s9, s7, 3
        s_add_u32 s76, s76, s9
        s_lshl_b32 s9, s60, 1
        s_add_u32 s76, s76, s9
        s_lshl_b32 s9, s76, 10
        v_lshlrev_b32 v6, 5, v0
        buffer_load_dwordx4 v[48:51], v6, {SX}, s9 offen
        buffer_load_dwordx4 v[52:55], v6, {SX}, s9 offen offset:16""")
    def gate_comp():
        a("v_mov_b32 v5, 0")
        for i in range(8): a(f"v_dot2c_f32_bf16 v5, v{48+i}, v{56+i}")
        a("v_lshrrev_b32 v6, 5, v0\nv_add_u32 v6, s76, v6\nv_and_b32 v7, 15, v6")
        a("v_add_f32_dpp v5, v5, v5 quad_perm:[1,0,3,2] row_mask:0xf bank_mask:0xf")
        a("v_lshrrev_b32 v6, 4, v6\nv_lshlrev_b32 v7, 9, v7")
        a("v_add_f32_dpp v5, v5, v5 quad_perm:[2,3,0,1] row_mask:0xf bank_mask:0xf")
        a("v_lshl_add_u32 v6, v6, 2, v7\ns_nop 0")
        a("v_add_f32_dpp v5, v5, v5 row_half_mirror row_mask:0xf bank_mask:0xf\ns_nop 1")
        a("v_add_f32_dpp v5, v5, v5 row_mirror row_mask:0xf bank_mask:0xf\ns_nop 1")
        a("v_add_f32_dpp v5, v5, v5 row_bcast:15 row_mask:0xa bank_mask:0xf")
        a(f"v_mul_f32 v5, {fhex(-math.log2(math.e))}, v5\nv_exp_f32 v5, v5\ns_nop 0\nv_add_f32 v5, 1.0, v5\nv_rcp_f32 v5, v5")
        a("s_mov_b32 exec_lo, 0x80000000\ns_mov_b32 exec_hi, 0x80000000")
        a(f"s_mov_b32 s76, {GF}\nbuffer_store_dword v5, v6, {W}, s76 offen sc1\ns_mov_b64 exec, -1")
    def flush(k):
        for _ in range(k):
            if pieces: a(pieces.pop(0))
    if opt("lfast"):
        a('s_barrier')
        warm()
        WORK = {0: [first, touch, gw_loads, late_setup, gen_pieces, lambda: flush(int(opt("pre", 0)))], 9: [lambda: flush(1000)]}
    else:
        first(); late_setup(); gen_pieces()
        a('s_barrier')
        warm()
        WORK = {0: [touch, gw_loads, lambda: flush(int(opt("pre", 0)))], 9: [lambda: flush(1000)]}
    WORK[int(opt("asat", 0))] = WORK.get(int(opt("asat", 0)), []) + [lambda: att_setup(a)]
    SCHED = eval(opt("sched", "[[2],[3,4],[],[5],[6],[7],[],[8],[9],[10]]"))
    cnt = {}; issued = []
    for n in range(10):
        if n == 9:
            waitcnt_lds(a, 0, 8)
            gate_loads()
        for u in SCHED[n]:
            assert u < 5 or u - 5 <= min(n, 7) - 3 or n == 9, (u, n)
            cnt[u] = issue(u); issued.append(u)
        for f in WORK.get(n, []): f()
        if n == 7: continue
        younger = sum(cnt[u] for u in issued if u > (7 if n == 6 else n)) if n < 9 else 8 * len([u for u in SCHED[9] if u > 9]) + (2 if 9 not in SCHED[9] else 0)
        if n >= NGU: a(f"s_waitcnt vmcnt({younger})")
        if n < NGU: pass
        elif n < 8: a("s_barrier")
        else: signal(a, (0, 5)[n - 8])
        if opt("p1st") and 1 <= n <= 7: stamp(a, n, True)
        if n == 6: stamp(a, 2)
        if n == 8: stamp(a, 3)
    def ard(s):
        F = XF + 4 * (s & 7)
        a(f"ds_read_b128 v[{F}:{F+3}], v{AA+(s&7)} offset:{256*((s>>3)&1)}")
        if 8 <= s < 16: a(f"v_subrev_u32 v{AA+(s&7)}, {R[4]-R[0]}, v{AA+(s&7)}")
    for half in range(2):
        if half == 0: waitcnt_lds(a, 5, 4)
        else:
            a("s_waitcnt vmcnt(0)")
            signal(a, 1)
            waitcnt_lds(a, 1, 4)
            stamp(a, 4)
        b = 16 * half
        for s in range(b, b + 6): ard(s)
        for s in range(b, b + 16):
            a(f"s_waitcnt lgkmcnt({min(5, b+15-s)})")
            c = vr(ACC + 16 * (s >> 4), 16)
            a(f"{MF} {c}, {vr(XF+4*(s&7),4)}, {vr(WG+4*(s&15),4)}, {'0' if (s & 15) == 0 else c}")
            if s + 6 < b + 16: ard(s + 6)
    a(f"""s_and_b32 s9, s60, 1
    s_lshl_b32 s9, s9, 12
    s_lshr_b32 s10, s60, 1
    s_lshl_b32 s11, s10, 11
    s_add_u32 s9, s9, s11
    s_add_u32 s9, s9, {L_ZX}
    v_add_u32 v2, s9, v14
    s_lshl_b32 s12, s60, 10
    s_add_u32 s12, s12, {L_QB}
    v_add_u32 v1, s12, v14""")
    a.nop(2)
    for i in range(16): a(f"v_fmac_f32 v{ACC+i}, v{ACC+16+i}, v15")
    for i in range(8): a(f"v_cvt_pk_bf16_f32 v{PK+i}, v{ACC+2*i}, v{ACC+2*i+1}")
    a(f"ds_write_b128 v2, v[{PK}:{PK+3}]\nds_write_b128 v2, v[{PK+4}:{PK+7}] offset:1024")
    signal(a, 2)
    gate_comp()
    a(f"v_mov_b32 v28, {L_CNT}")
    CA = 28
    for i in range(0, 16, 2): a(f"v_mov_b64 v[{CN+i}:{CN+i+1}], 0")
    waitcnt_lds(a, 3, 4)
    a(f"ds_read_b128 v[{QA}:{QA+3}], v1")
    a("s_branch att_body2")
    a.label(f"{N}_end")
    a("s_endpgm")

    XR, WR, ACC, PK = 128, 96, 64, 32
    XA, WA = 8, 12
    CA = 28
    l_lines = a.lines; a.lines = main_lines
    a.label(f"{N}_comp")
    a(f"""v_and_b32 v1, 31, v0
    v_lshrrev_b32 v2, 5, v0
    v_bfe_u32 v3, v0, 1, 3
    v_xor_b32 v3, v3, v2
    v_lshlrev_b32 v3, 4, v3
    v_lshl_add_u32 v3, v1, 7, v3
    s_lshl_b32 s9, s3, 12
    v_add_u32 v{XA}, s9, v3""")
    for ks in range(1, 4): a(f"v_xor_b32 v{XA+ks}, {32*ks}, v{XA}")
    a(f"""v_bfe_u32 v4, v0, 2, 2
    v_lshl_add_u32 v5, v2, 3, v4
    v_bfe_u32 v6, v0, 4, 1
    v_lshlrev_b32 v6, 5, v6
    v_and_b32 v7, 3, v0
    v_lshl_add_u32 v6, v7, 3, v6
    v_lshl_add_u32 v14, v5, 6, v6
    v_add_u32 v14, {R[3]}, v14
    v_lshl_add_u32 v5, v5, 7, v6
    v_lshrrev_b32 v4, 1, v4
    v_lshl_add_u32 v{WA}, v4, 6, v5
    v_xor_b32 v{WA+1}, 64, v{WA}""")
    a(f"v_mov_b32 v{CA}, {L_CNT}\nv_mov_b32 v{CA+1}, 1")
    a("s_waitcnt lgkmcnt(0)")
    srd(a, sWS, 38, WS_BYTES)
    srd(a, sDB, 36, 256)
    a(f"""s_lshl_b32 s8, s5, 7
    s_lshl_b32 s9, s4, 2
    s_add_u32 s8, s8, s9
    s_add_u32 s8, s8, s3
    s_lshl_b32 s8, s8, 12
    s_lshl_b32 s9, s6, 11
    s_add_u32 s8, s8, s9
    s_add_u32 s60, s8, 262144
    s_lshl_b32 s77, s4, 4
    s_add_u32 s77, s77, s7
    s_lshl_b32 s77, s77, 2
    s_add_u32 s77, s77, s3
    s_lshl_b32 s77, s77, 8
    s_add_u32 s77, s77, {FL1}
    v_lshlrev_b32 v15, 4, v0""")
    a(f"""s_mul_i32 s66, s3, 3
    s_lshl_b32 s67, s4, 2
    s_add_u32 s66, s66, s67
    s_sub_u32 s66, s66, 8
    v_lshrrev_b32 v4, 1, v0
    v_add_u32 v4, s66, v4
    v_ashrrev_i32 v5, 31, v4
    v_mov_b32 v6, s67
    v_bfi_b32 v4, v5, v6, v4
    v_lshrrev_b32 v5, 2, v4
    v_lshlrev_b32 v5, 6, v5
    v_and_b32 v6, 3, v4
    v_and_b32 v7, 1, v0
    v_lshl_add_u32 v6, v7, 2, v6
    s_lshl_b32 s11, s5, 3
    v_add3_u32 v5, v5, v6, s11
    v_lshlrev_b32 v18, 8, v5""")
    a(f"s_cmp_eq_u32 s6, 1\ns_cbranch_scc1 {N}_V")
    def p1(swap):
        naddr = [XA + i for i in range(4)] + [WA, WA + 1]
        def rds(s):
            ks = s & 3; F = WR + 8 * ks
            o = [f"ds_read_b128 v[{XR+4*s}:{XR+4*s+3}], v{XA+ks}"]
            for nt in range(2):
                for h in range(2): o.append(f"ds_read_b64_tr_b16 v[{F+4*nt+2*h}:{F+4*nt+2*h+1}], v{WA+nt} offset:{16384+2048*ks+512*h}")
            return o
        a(f"s_barrier\ns_waitcnt vmcnt({6*(NGU-1)})")
        signal(a, 6); waitcnt_lds(a, 6, 4)
        if opt("p1st"): stamp(a, 1, True)
        stamp(a, 1)
        for x in rds(0) + rds(1): a(x)
        for s in range(32):
            ks = s & 3; c = s >> 2
            a(f"s_waitcnt lgkmcnt({5 if s < 31 else 0})")
            r = rds(s + 2) if s < 30 else []
            for nt in range(2):
                x = vr(XR + 4 * s, 4); w = vr(WR + 8 * ks + 4 * nt, 4); cc = vr(ACC + 16 * nt, 16)
                ci = "0" if s == 0 else cc
                a(f"{MF} {cc}, {w}, {x}, {ci}" if swap else f"{MF} {cc}, {x}, {w}, {ci}")
                if nt == 0 and ks == 2 and c < 7:
                    d = R[(c + 1) % 5] - R[c % 5]
                    for x_ in naddr: a(f"v_add_u32 v{x_}, {d}, v{x_}" if d > 0 else f"v_subrev_u32 v{x_}, {-d}, v{x_}")
                    if c == 5: a(f"buffer_load_dword v{NONCE}, off, s[{sDB}:{sDB+3}], 0 sc1")
                    if c + 1 < NGU:
                        a(f"s_waitcnt vmcnt({6*(NGU-2-c)})")
                        signal(a, 6); waitcnt_lds(a, 6, 4 * (c + 2))
                    else:
                        if opt("p1st"): stamp(a, c + 1, True)
                        if c < 6: a("s_barrier")
                for x_ in (r[:3] if nt == 0 else r[3:]): a(x_)
    p1(True)
    a(f"s_branch {N}_p1d")
    if opt("lpos", "end") == "mid": a.lines += l_lines
    a.label(f"{N}_V")
    p1(False)
    a.label(f"{N}_p1d")
    stamp(a, 2)
    a("s_waitcnt vmcnt(0)")
    get_nonce(a, "gm")
    a.nop(6)
    for nt in range(2):
        for i in range(8): a(f"v_cvt_pk_bf16_f32 v{PK+8*nt+i}, v{ACC+16*nt+2*i}, v{ACC+16*nt+2*i+1}")
        for h in range(2): a(f"buffer_store_dwordx4 v[{PK+8*nt+4*h}:{PK+8*nt+4*h+3}], v15, {W}, s{(8,60)[nt]} offen offset:{1024*h} sc1")
    signal(a, 0)
    a("""s_lshr_b32 s9, s3, 1
    s_lshl_b32 s9, s9, 3
    v_bfe_u32 v120, v0, 1, 3
    v_add_u32 v120, s9, v120
    v_cvt_f32_u32 v120, v120
    v_and_b32 v121, 1, v0
    v_lshrrev_b32 v6, 5, v0
    v_sub_u32 v121, v121, v6
    v_cvt_f32_i32 v121, v121
    v_mul_f32 v121, 0x3e800000, v121
    v_bfe_u32 v6, v0, 4, 1
    v_lshlrev_b32 v6, 9, v6
    s_lshl_b32 s9, s64, 2
    v_add_u32 v6, s9, v6
    v_cvt_f32_u32 v6, v6
    v_mul_f32 v122, 0x3a000000, v120
    v_fmac_f32 v121, v6, v122
    v_mul_f32 v120, 0x3d800000, v120""")
    for u in range(4):
        for p in range(4):
            c0 = (2 * p & 3) + 8 * (p >> 1)
            pre = "v_add_f32 v121, v121, v122\n" if (u and p == 0) else ""
            a(pre + f"v_fmamk_f32 v4, v120, {fhex(float(c0))}, v121\nv_add_f32 v5, v4, v120\nv_cos_f32 v4, v4\nv_cos_f32 v5, v5\ns_nop 0\nv_cvt_pk_bf16_f32 v{FP+4*u+p}, v4, v5")
    FLAGAT = int(opt("flagat", 8))
    if FLAGAT < 0:
        a(f"s_waitcnt vmcnt(0)\ns_mov_b64 exec, 1\nbuffer_store_dword v{NONCE}, off, {W}, s77 sc1\ns_mov_b64 exec, -1")
        stamp(a, 3)
    waitcnt_lds(a, 0, 8)
    KP = f"v_mov_b32 v19, 0\nbuffer_atomic_add v19, v18, {W}, s76 offen sc0 sc1"
    POLLAT = int(opt("pollat", 31))
    def qrd(s):
        F = WR + 4 * (s & 7)
        for h in range(2): a(f"ds_read_b64_tr_b16 v[{F+2*h}:{F+2*h+1}], v14 offset:{1024*s+256*h}")
    for s in range(6): qrd(s)
    for s in range(32):
        a(f"s_waitcnt lgkmcnt({2*min(5, 31-s)})")
        a(f"{MF} {vr(ACC,16)}, {vr(WR+4*(s&7),4)}, {vr(XR+4*s,4)}, {'0' if s == 0 else vr(ACC,16)}")
        if s + 6 < 32: qrd(s + 6)
        if s == FLAGAT:
            a(f"s_waitcnt vmcnt(0)\ns_mov_b64 exec, 1\nbuffer_store_dword v{NONCE}, off, {W}, s77 sc1\ns_mov_b64 exec, -1")
            stamp(a, 3)
        if s == POLLAT: a(f"s_mov_b32 s76, {FL1}\ns_mov_b64 exec, 63\n{KP}\ns_mov_b64 exec, -1")
    a(f"""s_lshl_b32 s9, s3, 10
    s_add_u32 s9, s9, {L_QB}
    v_add_u32 v4, s9, v15""")
    a.nop(9)
    for i in range(16): a(f"v_mul_f32 v{ACC+i}, {fhex(QSCALE)}, v{ACC+i}")
    for i in range(8): a(f"v_cvt_pk_bf16_f32 v{QA+i}, v{ACC+2*i}, v{ACC+2*i+1}")
    a(f"ds_write_b128 v4, v[{QB}:{QB+3}]")
    a("s_mov_b32 s15, 0\ns_mov_b64 exec, 63")
    a(f"gm_poll:\ns_add_u32 s15, s15, 1\ns_waitcnt vmcnt(0)\nv_cmp_ne_u32 vcc, s63, v19")
    a(f"s_cmp_gt_u32 s15, 0x40000\ns_cbranch_scc1 gm_polled\ns_cbranch_vccz gm_polled\ns_sleep {PSLEEP}")
    a(f"{KP}\ns_branch gm_poll")
    a("gm_polled:\ns_mov_b64 exec, -1")
    stamp(a, 4)
    a(f"s_mul_i32 s12, s3, 12288\ns_lshl_b32 s13, s7, 6")
    for t in range(3):
        a(f"s_add_u32 s11, s66, {t}\ns_cmp_lt_i32 s11, 0\ns_cselect_b32 s11, s67, s11\ns_add_u32 s11, s11, s13\ns_lshl_b32 s11, s11, 12")
        a(f"s_add_u32 m0, s12, {L_KV + 4096*t}\ns_nop 0")
        for i in range(4): a(f"buffer_load_dwordx4 v15, {W}, s11 offen offset:{1024*i} sc1 lds")
    att_setup(a)
    a(f"""s_lshl_b32 s9, s74, 1
    s_lshr_b32 s10, s3, 1
    s_add_u32 s9, s9, s10
    s_sub_u32 s10, 15, s9
    s_min_u32 s10, s10, s9
    v_and_b32 v5, 1, v0
    v_add_u32 v5, s10, v5
    v_and_b32 v5, 7, v5
    v_lshrrev_b32 v6, 1, v0
    v_lshl_add_u32 v5, v6, 3, v5
    v_lshlrev_b32 v18, 8, v5
    s_and_b32 s79, s3, 1
    s_lshl_b32 s79, s79, 15
    s_add_u32 s79, s79, {FL3}""")
    for i in range(0, 16, 2): a(f"v_mov_b64 v[{CN+i}:{CN+i+1}], 0")
    a(f"s_lshl_b32 s77, s64, 3\ns_add_u32 s77, s77, s65\ns_lshl_b32 s77, s77, 8\ns_lshl_b32 s9, s3, 2\ns_add_u32 s77, s77, s9\ns_add_u32 s77, s77, {FL3}")
    a(f"""v_lshrrev_b32 v4, 5, v0
    v_lshlrev_b32 v3, 12, v4
    v_bfe_u32 v5, v0, 4, 1
    v_lshl_add_u32 v3, v5, 9, v3
    v_and_b32 v6, 15, v0
    v_lshl_add_u32 v3, v6, 4, v3
    s_lshr_b32 s10, s3, 1
    s_and_b32 s9, s3, 1
    s_lshl_b32 s9, s9, 8
    s_add_u32 s11, s9, {L_ZX}
    v_add_u32 v3, s11, v3
    v_lshrrev_b32 v4, 4, v0
    v_mul_u32_u24 v4, {2*32*TP}, v4
    v_lshl_add_u32 v5, v6, 4, v4
    s_lshl_b32 s11, s65, 9
    s_add_u32 s9, s9, s11
    v_add_u32 v5, s9, v5
    s_mul_i32 s10, s10, {8*32*TP}
    s_mul_i32 s11, s64, {TP}
    s_add_u32 s10, s10, s11
    s_add_u32 s10, s10, {TF}
    s_add_u32 s11, s10, {32*TP}""")
    for i in range(0, 16, 2): a(f"v_mov_b64 v[{ZB+i}:{ZB+i+1}], 0")
    waitcnt_lds(a, 2, 4)
    a("s_cmp_eq_u32 s9, 0\ns_cselect_b32 exec_hi, 0xfffefffe, -1")
    def step1():
        for u in range(4): a(f"{MF16} {vr(ACC+4*u,4)}, {vr(FP+4*u,4)}, {vr(ZB+4*u,4)}, 0")
        a.nop(5)
        for r2 in range(2):
            for u in range(4): a(f"v_cvt_pk_bf16_f32 v{PK+4*r2+u}, v{ACC+4*u+2*r2}, v{ACC+4*u+2*r2+1}")
    for u in range(4): a(f"ds_read_b128 v[{ZB+4*u}:{ZB+4*u+3}], v3 offset:{1024*u}")
    a("s_waitcnt lgkmcnt(0)\ns_mov_b64 exec, -1")
    step1()
    a(f"buffer_store_dwordx4 v[{PK}:{PK+3}], v5, {W}, s10 offen sc1\nbuffer_store_dwordx4 v[{PK+4}:{PK+7}], v5, {W}, s11 offen sc1")
    a("s_waitcnt vmcnt(2)")
    signal(a, 3)
    a(f"s_cmp_lg_u32 s9, 0\ns_cbranch_scc1 {N}_nsp")
    a("s_mov_b32 exec_hi, 0")
    for u in range(4): a(f"ds_read_b128 v[{ZB+4*u}:{ZB+4*u+3}], v3 offset:{4096+1024*u}")
    a("s_mov_b64 exec, -1\nv_add_u32 v6, 4096, v4\ns_waitcnt lgkmcnt(0)")
    step1()
    a("s_mov_b32 exec_lo, 0x00010001\ns_mov_b32 exec_hi, 0x00010001")
    a(f"buffer_store_dwordx4 v[{PK}:{PK+3}], v6, {W}, s10 offen sc1\nbuffer_store_dwordx4 v[{PK+4}:{PK+7}], v6, {W}, s11 offen sc1")
    a("s_mov_b64 exec, -1")
    a.label(f"{N}_nsp")
    waitcnt_lds(a, 3, 4)

    a.label("att_body2")
    stamp(a, 5)
    q = vr(QA, 4); cn = vr(CN, 16); o = vr(O, 16); m = 3
    kslot = {8: 0, 0: 1}; vslot = {8: 0, 0: 1}
    for n in range(7): kslot[7 - n] = (2 + n) & 3; vslot[7 - n] = (2 + n) & 3
    kf = lambda j: vr(KRG + 4 * kslot[j], 4)
    vf = lambda j, ks: vr(VB + 8 * vslot[j] + 4 * ks, 4)
    def krd(j): a(f"ds_read_b128 {kf(j)}, v{AK} offset:{4096*j}")
    def vrd(js):
        a("s_mov_b64 exec, s[12:13]")
        for j in js:
            for ks in range(2): a(f"ds_read_b128 {vf(j,ks)}, v{AV} offset:{4096*j+2048+1024*ks}")
        a("s_mov_b64 exec, -1")
    def wo_dma():
        a(f"s_add_u32 m0, s75, s8\ns_lshl_b32 s9, s75, 3\nbuffer_load_dwordx4 v13, s[{sOUT}:{sOUT+3}], s9 offen lds\ns_add_u32 s75, s75, 1024")
    TPL = f"s_mov_b32 exec_hi, 0\nbuffer_load_dwordx4 v[24:27], v18, {W}, s79 offen sc1\ns_mov_b64 exec, -1"
    TCHK = "s_mov_b32 exec_hi, 0\nv_xor_b32 v24, s63, v24\nv_xor_b32 v25, s63, v25\nv_xor_b32 v26, s63, v26\nv_xor_b32 v27, s63, v27\nv_or3_b32 v24, v24, v25, v26\nv_or_b32 v24, v24, v27\nv_cmp_ne_u32 vcc, 0, v24\ns_mov_b64 exec, -1"
    a(f"""s_mov_b32 s12, 0xffff
    s_mov_b32 s13, 0xffff
    s_mov_b32 s15, 0
    s_lshl_b32 s8, s3, 13
    s_add_u32 s8, s8, {R[3]}""")
    a.label("att_retry")
    for j in (8, 0, 7, 6): krd(j)
    vrd((8, 0, 7))
    PR = opt("prio", "a")
    if PR == "a": a("s_setprio 3")
    if PR == "b": a("s_cmp_lt_u32 s3, 4\ns_cbranch_scc1 att_np\ns_setprio 1\natt_np:")
    a("s_waitcnt lgkmcnt(7)\ns_nop 0")
    a(f"{MF} {vr(SB,16)}, {kf(8)}, {q}, {cn}")
    a(f"{MF} {vr(SC_,16)}, {kf(0)}, {q}, {cn}")
    a(f"{MF} {vr(SA,16)}, {kf(7)}, {q}, {cn}")
    wo_dma()
    a("s_cmp_lg_u32 s61, 9")
    a.nop(5)
    a("s_cbranch_scc1 att_no0a")
    for i in range(16): a(f"v_bfi_b32 v{SB+i}, v{TM+i}, v{SC_+i}, v{SB+i}")
    a.label("att_no0a")
    for i in range(16): a(f"v_exp_f32 v{SB+i}, v{SB+i}")
    for i in range(8): a(f"v_cvt_pk_bf16_f32 v{P+i}, v{SB+2*i}, v{SB+2*i+1}")
    for i in range(8): a(f"v_and_b32 v{P+8+i}, v{PM+i}, v{P+i}")
    for i in range(8): a(f"v_xor_b32 v{P+i}, v{P+8+i}, v{P+i}")
    a("s_waitcnt lgkmcnt(0)\ns_cmp_lg_u32 s61, 9")
    a(f"{MF} {o}, {vf(8,0)}, {vr(P,4)}, 0")
    a(f"{MF} {o}, {vf(8,1)}, {vr(P+4,4)}, {o}")
    a("s_cbranch_scc1 att_no0b")
    a(f"{MF} {o}, {vf(0,0)}, {vr(P+8,4)}, {o}")
    a(f"{MF} {o}, {vf(0,1)}, {vr(P+12,4)}, {o}")
    a.label("att_no0b")
    a("s_cmp_ge_u32 s3, 4\ns_cbranch_scc1 att_nof3")
    a(f"v_mov_b32 v4, s63\ns_waitcnt vmcnt(1)\ns_mov_b64 exec, 1\nbuffer_store_dword v4, off, {W}, s77 sc1\ns_mov_b64 exec, -1")
    a.label("att_nof3")
    a("s_cmp_eq_u32 s61, 1\ns_cbranch_scc1 att_done")
    S = [SA, SB]
    for n in range(7):
        j = 7 - n
        s = S[n & 1]; p = P + 8 * (n & 1)
        if PR == "a" and n in (1, 3, 5): a(f"s_setprio {2 - n // 2}")
        if PR == "c" : a(f"s_setprio {(3,2,2,1,1,0,0)[n]}")
        if n < 6:
            a(f"{MF} {vr(S[(n+1)&1],16)}, {kf(j-1)}, {q}, {cn}")
            if n < 5: krd(j - 2)
            vrd((j - 1,))
        if n < 3 and (not opt('wo1')): wo_dma()
        for i in range(8): a(f"v_exp_f32 v{s+i}, v{s+i}")
        for i in range(4): a(f"v_cvt_pk_bf16_f32 v{p+i}, v{s+2*i}, v{s+2*i+1}")
        for i in range(8, 10): a(f"v_exp_f32 v{s+i}, v{s+i}")
        a(f"{MF} {o}, {vf(j,0)}, {vr(p,4)}, {o}")
        if n < 4 or not (not opt('wo1')): wo_dma()
        for i in range(10, 16): a(f"v_exp_f32 v{s+i}, v{s+i}")
        for i in range(4, 8): a(f"v_cvt_pk_bf16_f32 v{p+i}, v{s+2*i}, v{s+2*i+1}")
        a(f"s_cmp_eq_u32 s61, {n+2}\ns_waitcnt lgkmcnt(0)")
        a(f"{MF} {o}, {vf(j,1)}, {vr(p+4,4)}, {o}")
        if n < 6 and not opt("nobr"): a("s_cbranch_scc1 att_done")
    a.label("att_done")
    a(f"s_nop 0\ns_mov_b32 s14, {fhex(0.0 if FORCEFB else 2.0**90)}\nv_mov_b32 v6, 0")
    a(f"""s_lshl_b32 s101, s3, 3
    s_bfe_u32 s9, s4, 0x10003
    s_lshl_b32 s9, s9, 2
    s_add_u32 s101, s101, s9
    s_and_b32 s9, s7, 3
    s_add_u32 s101, s101, s9
    s_lshl_b32 s101, s101, 8
    s_add_u32 s101, s101, {FL2}""")
    a.nop(1)
    a(f"v_rcp_f32 v4, v{O+8}\nv_mov_b32 v7, v{O+8}")
    for i in range(8): a(f"v_fmac_f32 v7, v{O+i}, v6")
    a(f"v_fmamk_f32 v7, v4, {fhex(2.0**50)}, v7\nv_cmp_nge_f32 vcc, s14, v7\ns_cbranch_vccnz att_fb")
    a.label("att_fin")
    for i in range(8): a(f"v_mul_f32 v{O+i}, v{O+i}, v4")
    for i in range(4): a(f"v_cvt_pk_bf16_f32 v{P+i}, v{O+2*i}, v{O+2*i+1}")
    a(f"ds_write_b128 v{AO}, v[{P}:{P+3}]")
    stamp(a, 6)
    a.label("att_wo")
    a("s_cmp_ge_u32 s75, 8192\ns_cbranch_scc1 att_wo2")
    wo_dma()
    a("s_branch att_wo")
    a.label("att_wo2")
    a(f"s_setprio 0\nv_mov_b32 v4, 1\ns_waitcnt vmcnt(0)\ns_cmp_lt_u32 s3, 4\ns_cbranch_scc0 att_nt\n{TPL}\natt_nt:")
    a(f"s_waitcnt lgkmcnt(0)\ns_barrier\nds_read_b128 v[{P}:{P+3}], v{AR}\ns_waitcnt lgkmcnt(0)")
    a(f"buffer_store_dwordx4 v[{P}:{P+3}], v12, {W}, s62 offen sc1")
    def flag2(n): a(f"s_waitcnt vmcnt({n})\ns_mov_b64 exec, 1\nbuffer_atomic_add v4, off, {W}, s101 sc1\ns_mov_b64 exec, -1")
    a("s_cmp_lt_u32 s3, 4\ns_cbranch_scc1 out_comp")
    a(f"""s_sub_u32 s60, s3, 4
    s_lshr_b32 s9, s72, 1
    s_lshl_b32 s9, s9, 3
    s_lshl_b32 s10, s73, 2
    s_add_u32 s9, s9, s10
    s_add_u32 s9, s9, s60
    s_lshl_b32 s9, s9, 8
    s_add_u32 s9, s9, {FL2}
    s_mul_i32 s8, s72, {OP}
    s_lshl_b32 s10, s73, 16
    s_add_u32 s8, s8, s10
    s_lshl_b32 s10, s60, 12
    s_add_u32 s8, s8, s10
    s_add_u32 s8, s8, {OF}
    s_mov_b32 s15, 0""")
    flag2(0)
    a("s_mov_b64 exec, 1")
    PA = lambda r: f"v_mov_b32 v{r}, 0\nbuffer_atomic_add v{r}, off, {W}, s9 sc0 sc1"
    if opt("pp"):
        g = int(opt("pp"))
        a(f"{PA(6)}\ns_sleep {g}\no_poll:")
        for x, y in ((7, 6), (6, 7)):
            a(f"{PA(x)}\ns_waitcnt vmcnt(1)\nv_cmp_gt_u32 vcc, 32, v{y}\ns_add_u32 s15, s15, 1\ns_cbranch_vccz o_polled")
        a("s_cmp_lt_u32 s15, 0x80000\ns_cbranch_scc1 o_poll")
    else:
        a(f"o_poll:\n{PA(6)}\ns_add_u32 s15, s15, 1\ns_waitcnt vmcnt(0)\nv_cmp_gt_u32 vcc, 32, v6")
        a(f"s_cmp_gt_u32 s15, 0x40000\ns_cbranch_scc1 o_polled\ns_cbranch_vccz o_polled\ns_sleep {int(opt('psleep2', 0))}\ns_branch o_poll")
    a("o_polled:\ns_mov_b64 exec, -1")
    stamp(a, 7)
    def oissue(c):
        a(f"s_add_u32 m0, s10, {R[1] + 16384*c}")
        a("s_add_u32 s8, s8, 16384" if c else "s_nop 0")
        for i in range(4): a(f"buffer_load_dwordx4 v14, {W}, s8 offen offset:{1024*i} sc1 lds")
    OS_ = eval(opt("osched", "[[0,1],[2],[3],[]]"))
    ni = 0
    for c in range(4):
        for u in OS_[c]: oissue(u); ni += 1
        a(f"s_waitcnt vmcnt({4*(ni-c-1)})\ns_barrier")
    stamp_out(a, 0)
    a("s_endpgm")
    AB, AY, FR = 64, 80, 192
    a.label("out_comp")
    a("s_lshr_b32 s66, s3, 1\ns_and_b32 s67, s3, 1")
    srd(a, sOUT, 34, 2048 * 512 * 2)
    a(f"""v_and_b32 v1, 31, v0
    v_lshrrev_b32 v2, 5, v0
    s_lshl_b32 s9, s67, 5
    s_lshl_b32 s10, s73, 6
    s_add_u32 s9, s9, s10
    v_add_u32 v3, s9, v1
    v_bfe_u32 v9, v0, 3, 2
    v_lshlrev_b32 v6, 9, v9
    v_and_b32 v9, 1, v9
    v_xor_b32 v9, v9, v2
    v_lshl_add_u32 v6, v9, 7, v6
    v_and_b32 v9, 7, v0
    v_lshl_add_u32 v6, v9, 4, v6
    s_lshl_b32 s9, s67, 11
    s_add_u32 s9, s9, {R[1]}
    v_add_u32 v6, s9, v6
    v_bfe_u32 v9, v0, 2, 2
    v_lshl_add_u32 v7, v2, 2, v9
    v_lshlrev_b32 v7, 7, v7
    v_lshrrev_b32 v9, 1, v9
    v_xor_b32 v9, s66, v9
    v_lshl_add_u32 v7, v9, 6, v7
    v_and_b32 v9, 1, v0
    v_lshl_add_u32 v7, v9, 5, v7
    v_bfe_u32 v9, v0, 4, 1
    v_lshl_add_u32 v7, v9, 4, v7
    v_bfe_u32 v9, v0, 1, 1
    v_lshl_add_u32 v7, v9, 3, v7
    v_add_u32 v7, {R[3]}, v7
    v_bfe_u32 v9, v0, 2, 1
    v_lshlrev_b32 v8, 4, v9
    v_and_b32 v9, 3, v0
    v_add_u32 v8, v8, v9
    v_bfe_u32 v9, v0, 3, 2
    v_lshl_add_u32 v8, v9, 2, v8
    s_lshl_b32 s9, s66, 5
    s_lshl_b32 s10, s74, 6
    s_add_u32 s9, s9, s10
    v_add_u32 v8, s9, v8
    v_sub_u32 v9, 512, v8
    s_sub_u32 s12, 16, s72
    s_and_b32 s12, s12, 15
    s_cmp_ge_u32 s74, 4
    s_cselect_b32 s12, s12, s72
    s_cselect_b32 s13, -1, 0
    v_bfi_b32 v8, s13, v9, v8
    v_lshlrev_b32 v8, 4, v8
    v_mul_u32_u24 v9, {TP}, v2
    v_add_u32 v8, v8, v9
    s_lshl_b32 s12, s12, 1
    s_add_u32 s12, s12, s67
    s_mul_i32 s12, s12, {16*TP}
    s_add_u32 s12, s12, {TF}
    s_lshl_b32 s9, s3, 12
    v_add_u32 v29, s9, v14
    v_xor_b32 v30, 4096, v29
    v_lshlrev_b32 v28, 14, v3
    v_lshl_add_u32 v28, v2, 5, v28
    s_lshl_b32 s14, s72, 10
    s_lshl_b32 s10, s74, 7
    s_add_u32 s14, s14, s10
    s_lshl_b32 s10, s66, 6
    s_add_u32 s14, s14, s10
    v_lshlrev_b32 v5, 2, v3
    s_lshl_b32 s11, s72, 9
    s_add_u32 s11, s11, {GF}
    s_mov_b32 s15, 0""")
    ab = vr(AB, 16); ay = vr(AY, 16)
    AZ = 224
    FG0 = len(a.lines)
    a("""s_cmp_eq_u32 s72, 0
    s_cselect_b32 s9, 1, 0
    s_add_u32 s9, s9, 127
    s_lshl_b32 s10, s67, 4
    v_add_u32 v15, s10, v2
    v_cvt_f32_u32 v15, v15
    v_mul_f32 v15, 4.0, v15""")
    a("""s_sub_u32 s77, 0, s67
    s_xor_b32 s77, s77, s13
    s_and_b32 s77, s77, 0x80008000
    v_sub_u32 v10, s9, v3
    v_and_b32 v10, 127, v10
    v_bfi_b32 v10, s13, v10, v3
    v_cvt_f32_u32 v10, v10
    v_mul_f32 v10, 0x3c000000, v10
    v_mul_f32 v11, v15, v10
    v_mul_f32 v12, 0x41000000, v10
    v_cos_f32 v12, v12
    s_nop 0
    v_add_f32 v12, v12, v12""")
    WF = [96 + 4 * k for k in range(24)] + [32 + 4 * k for k in range(8)]
    early = [h for h in range(32) if 128 <= WF[h] < 160 or 36 <= WF[h] < 48] if opt("ewo", "1") == "1" else []
    eq = list(early)
    def word(h):
        a(f"ds_read_b64_tr_b16 v[{WF[h]}:{WF[h]+1}], v7 offset:{2048*h}")
        a(f"ds_read_b64_tr_b16 v[{WF[h]+2}:{WF[h]+3}], v7 offset:{2048*h+1024}")
    for k in range(8):
        r = 112 + 8 * (k & 1); o_ = 112 + 8 * (1 - (k & 1))
        for u in range(4):
            x, y = r + 2 * u, r + 2 * u + 1
            if k < 2: a(f"v_fmamk_f32 v13, v10, {fhex(float(8*k+u))}, v11\nv_cos_f32 v{x}, v13\nv_sin_f32 v{y}, v13\ns_nop 0")
            else: a(f"v_fma_f32 v{x}, v12, v{o_+2*u}, -v{x}\nv_fma_f32 v{y}, v12, v{o_+2*u+1}, -v{y}")
            a(f"v_cvt_pk_bf16_f32 v{FREG[k]+u}, v{x}, v{y}")
            d = FREG[8 + k] + u
            if u == 0: a(f"v_mov_b32 v{d}, v{FREG[k]}")
            if u == 2: a(f"v_xor_b32 v{d}, 0x80008000, v{FREG[k]+2}")
            if u == 1: a(f"v_cvt_pk_bf16_f32 v{d}, -v{y}, v{x}\nv_xor_b32 v{d}, s77, v{d}")
            if u == 3: a(f"v_cvt_pk_bf16_f32 v{d}, v{y}, -v{x}\nv_xor_b32 v{d}, s77, v{d}")
            if (u & 1) and eq: word(eq.pop(0))
    fgl = a.lines[FG0:]; del a.lines[FG0:]
    FCUT = int(opt("fcut", 70))
    a.lines += fgl[:FCUT]
    flag2(0)
    stamp(a, 7)
    a(f"t_poll:\n{TCHK}")
    a(f"s_add_u32 s15, s15, 1\ns_cmp_gt_u32 s15, 0x40000\ns_cbranch_scc1 t_polled\ns_cbranch_vccz t_polled\ns_sleep {int(opt('psleep3', 8))}\n{TPL}\ns_waitcnt vmcnt(0)\ns_branch t_poll\nt_polled:")
    for k in range(8):
        a(f"buffer_load_dwordx4 v[{FR+4*k}:{FR+4*k+3}], v8, {W}, s12 offen sc1")
        if k < 7: a(f"s_add_u32 s12, s12, {2*TP}")
    a.lines += fgl[FCUT:]
    az = vr(AZ, 16)
    for k in range(8):
        a(f"s_waitcnt vmcnt({7-k})")
        a(f"{MF} {az}, {vr(FR+4*k,4)}, {vr(FREG[8+k],4)}, {'0' if k == 0 else az}")
        a(f"{MF} {ay}, {vr(FR+4*k,4)}, {vr(FREG[k],4)}, {'0' if k == 0 else ay}")
    for h in range(32):
        if h not in early: word(h)
    for i in range(4): a(f"ds_write_b128 v29, v[{AZ+4*i}:{AZ+4*i+3}] offset:{R[0]+1024*i}")
    a("s_waitcnt lgkmcnt(0)")
    def ords(c):
        for h in range(8): a(f"ds_read_b128 v[{FR+32*(c&1)+4*h}:{FR+32*(c&1)+4*h+3}], v6 offset:{16384*c+4096*(h>>1)+256*(h&1)}")
    SPL = int(opt("spl", 3))
    a("s_barrier")
    ords(0)
    a(f"buffer_load_dword v24, v5, {W}, s11 offen sc1")
    for c in range(4):
        for h in range(8):
            if h <= SPL: a(f"s_waitcnt lgkmcnt({7-h if h < SPL else 0})")
            a(f"{MF} {ab}, {vr(WF[8*c+h],4)}, {vr(FR+32*(c&1)+4*h,4)}, {'0' if c + h == 0 else ab}")
            if h == SPL and c < 3:
                a("s_barrier")
                if c == 1:
                    for i in range(4): a(f"ds_read_b128 v[{96+4*i}:{96+4*i+3}], v30 offset:{R[0]+1024*i}")
                ords(c + 1)
            if c == 3 and h < 4:
                for i in range(4 * h, 4 * h + 4): a(f"v_add_f32 v{AY+i}, v{AY+i}, v{96+i}")
            if c == 3 and h == 4: a("s_waitcnt vmcnt(0)\nv_sub_f32 v25, 1.0, v24")
            if c == 3 and 4 <= h:
                for i in range(4 * (h - 4), 4 * (h - 3)): a(f"v_mul_f32 v{AY+i}, v{AY+i}, v24")
    a.nop(8)
    for i in range(16): a(f"v_fmac_f32 v{AY+i}, v{AB+i}, v25")
    for i in range(8): a(f"v_cvt_pk_bf16_f32 v{FR+i}, v{AY+2*i}, v{AY+2*i+1}")
    a(f"buffer_store_dwordx4 v[{FR}:{FR+3}], v28, s[{sOUT}:{sOUT+3}], s14 offen")
    a(f"buffer_store_dwordx4 v[{FR+4}:{FR+7}], v28, s[{sOUT}:{sOUT+3}], s14 offen offset:16")
    stamp_out(a, 0)
    a("s_endpgm")
    a.label("att_fb")
    a("s_cmp_lg_u32 s15, 0\ns_cbranch_scc1 att_fin\ns_mov_b32 s15, 1\ns_mov_b32 s75, 0\ns_mov_b32 s14, 0xff800000\nv_mov_b32 v3, s14")
    def fbtile(j, mask):
        a(f"ds_read_b128 {vr(KRG,4)}, v{AK} offset:{4096*j}\ns_waitcnt lgkmcnt(0)")
        a(f"{MF} {vr(SA,16)}, {vr(KRG,4)}, {q}, 0")
        a.nop(12)
        if mask == 8:
            for i in range(16): a(f"v_bfi_b32 v{SA+i}, v{TM+i}, s14, v{SA+i}")
        if mask == 0:
            for i in range(16): a(f"v_bfi_b32 v{SA+i}, v{TM+i}, v{SA+i}, s14")
        for i in range(8): a(f"v_max3_f32 v{m}, v{m}, v{SA+2*i}, v{SA+2*i+1}")
    fbtile(8, 8)
    for n in range(8):
        a(f"s_cmp_eq_u32 s61, {n+1}\ns_cbranch_scc1 att_fb2")
        fbtile(7 - n, 0 if n == 7 else None)
    a.label("att_fb2")
    a(f"v_mov_b32 v4, v{m}\ns_nop 1\nv_permlane32_swap_b32 v4, v{m}\ns_nop 0\nv_max_f32 v{m}, v4, v{m}")
    a(f"v_sub_f32 v{CN}, 0, v{m}\nv_sub_f32 v{CN+1}, 0, v{m}")
    for i in range(2, 16, 2): a(f"v_mov_b64 v[{CN+i}:{CN+i+1}], v[{CN}:{CN+1}]")
    a("s_branch att_retry")
    if opt("lpos", "end") == "end": a.lines += l_lines

def desc(name, nv):
    return f""".p2align 6
.amdhsa_kernel {name}
  .amdhsa_next_free_vgpr {nv}
  .amdhsa_next_free_sgpr 102
  .amdhsa_accum_offset {(nv+3)//4*4}
  .amdhsa_group_segment_fixed_size 0
  .amdhsa_kernarg_size 96
  .amdhsa_user_sgpr_count 2
  .amdhsa_user_sgpr_kernarg_segment_ptr 1
  .amdhsa_system_sgpr_workgroup_id_x 1
.end_amdhsa_kernel
"""

a = Asm()
ka(a)
for m in check_hazards(a.lines): print("HAZARD", m, file=sys.stderr)
hdr = """; out = g*Re(DFT_seq(DFT_hid(x))) + (1-g)*(sliding-window attention(x) @ wo), one persistent launch, 256 workgroups of 8 waves.
"""
hdr += "; @launch grid=(256,1,1) block=(512,1,1) lds=163840\n"
hdr += f'.amdgcn_target "amdgcn-amd-amdhsa--gfx950"\n.text\n.globl {NAME}\n.type {NAME},@function\n'
out = hdr + a.text() + '.section .rodata,"a"\n' + desc(NAME, 256)
fn = [x for x in sys.argv[1:] if not x.startswith("--")][0]
open(fn, "w").write(out)
```

```python
import sys, math
from asmlib import *

def opt(name, default=None):
    for x in sys.argv:
        if x == "--" + name: return True
        if x.startswith("--" + name + "="): return x.split("=", 1)[1]
    return default
STAMP = opt("stamp", False)
STAG = int(opt("stag", 4))
PSLEEP = int(opt("psleep", 0))
FORCEFB = opt("forcefb", False)
KVB, TF, OF, GF, FL1, FL2, FL3 = 0x000000, 0x400000, 0x700000, 0xA00000, 0xA80000, 0xB00000, 0xB80000
STF = 0xC00000
WS_BYTES = 0x1000000
TP = 4224
OP = 131072 + 1024
MF = "v_mfma_f32_32x32x16_bf16"
MF16 = "v_mfma_f32_16x16x32_bf16"
QSCALE = 0.25 * math.log2(math.e)
sX, sW, sWS, sG, sDB, sOUT = 40, 44, 48, 52, 56, 68
NAME = 'gated_mix__spectral_fnet__sliding_block__prompt_kernel'
W = f"s[{sWS}:{sWS+3}]"
R = [32768 * i for i in range(5)]
L_KV, L_QB, L_ZX, L_OS = R[1], R[2] + 16384, R[2] + 20480, R[0] + 16384

def srd(a, d, ptr, nbytes):
    a(f"s_mov_b32 s{d}, s{ptr}\ns_mov_b32 s{d+1}, s{ptr+1}\ns_mov_b32 s{d+2}, {nbytes}\ns_mov_b32 s{d+3}, 0x00020000")

def entry(a, name):
    a(f".p2align 12\n{name}:")
    stamp(a, 0)
    a("s_load_dwordx16 s[16:31], s[0:1], 0")
    a("s_load_dwordx8 s[32:39], s[0:1], 64")
    a(f"s_cmp_ge_u32 s2, 256\ns_cbranch_scc1 {name}_end")
    a("v_lshrrev_b32 v1, 6, v0\nv_and_b32 v0, 63, v0\nv_readfirstlane_b32 s3, v1")

def stamp(a, i, p1=False):
    if opt("p1st") and i and not p1: return
    if STAMP: a(f"s_memrealtime s[{80+2*i}:{81+2*i}]")

def stamp_out(a, kidx):
    if not STAMP: return
    a("s_memrealtime s[96:97]\ns_waitcnt vmcnt(0) lgkmcnt(0)\ns_memrealtime s[98:99]\ns_waitcnt lgkmcnt(0)")
    a(f"s_lshl_b32 s78, s2, 3\ns_add_u32 s78, s78, s3\ns_lshl_b32 s78, s78, 7\ns_add_u32 s78, s78, {STF + kidx * 262144}")
    a("s_mov_b64 exec, 1")
    for i in range(20): a(f"v_mov_b32 v{4+i}, s{80+i}")
    a("v_mov_b32 v2, s78")
    for i in range(5): a(f"buffer_store_dwordx4 v[{4+4*i}:{7+4*i}], v2, {W}, 0 offen offset:{16*i}")

QA, QB = 20, 24
TM, PM, VB, KRG, SA, SB, SC_, CN, P, O = 192, 208, 216, 144, 64, 80, 128, 112, 32, 128
GX = 248
FREG = [160 + 4 * k for k in range(8)] + [96 + 4 * k for k in range(4)] + [48 + 4 * k for k in range(4)]
AK, AV, AO, AR = 8, 9, 10, 11
NONCE = 16

def att_setup(a):
    a("""v_and_b32 v2, 31, v0
    v_lshrrev_b32 v3, 5, v0
    v_lshlrev_b32 v4, v2, -2
    v_lshlrev_b32 v5, 2, v3
    v_lshrrev_b32 v4, v5, v4
    s_mov_b32 s13, 0xffff""")
    for r in range(16): a(f"v_bfe_i32 v{TM+r}, v4, {(r & 3) + 8 * (r >> 2)}, 1")
    for p in range(8): a(f"v_bfi_b32 v{PM+p}, s13, v{TM+2*p}, v{TM+2*p+1}")
    a(f"v_mov_b32 v{VB}, 0x3f803f80\nv_mov_b32 v{VB+1}, v{VB}")
    for i in range(2, 32, 2): a(f"v_mov_b64 v[{VB+i}:{VB+i+1}], v[{VB}:{VB+1}]")
    a(f"""s_and_b32 s9, s3, 3
    s_lshr_b32 s10, s3, 2
    s_lshl_b32 s11, s9, 12
    s_add_u32 s11, s11, {L_KV}
    s_lshl_b32 s12, s10, 10
    s_add_u32 s12, s12, s11
    v_lshlrev_b32 v4, 4, v0
    v_add_u32 v{AK}, s12, v4
    s_lshl_b32 s12, s10, 8
    s_add_u32 s12, s12, s11
    v_add_u32 v{AV}, s12, v4
    v_and_b32 v5, 15, v0
    v_mul_u32_u24 v5, 528, v5
    s_and_b32 s12, s4, 1
    v_xor_b32 v6, s12, v3
    v_lshl_add_u32 v5, v6, 7, v5
    v_bfe_u32 v6, v0, 4, 1
    v_lshl_add_u32 v5, v6, 4, v5
    s_lshl_b32 s12, s10, 8
    s_lshl_b32 s11, s9, 5
    s_add_u32 s12, s12, s11
    s_add_u32 s12, s12, {L_OS}
    v_add_u32 v{AO}, s12, v5
    s_mul_i32 s12, s3, 1056
    s_add_u32 s12, s12, {L_OS}
    v_mul_u32_u24 v5, 528, v3
    v_lshl_add_u32 v5, v2, 4, v5
    v_add_u32 v{AR}, s12, v5
    v_mul_u32_u24 v5, {OP}, v3
    v_lshl_add_u32 v12, v2, 4, v5""")
    a(f"""s_lshl_b32 s61, s4, 2
    s_add_u32 s61, s61, s9
    s_add_u32 s61, s61, 1
    s_min_u32 s61, s61, 9
    s_mul_i32 s62, s3, {2*OP}
    s_lshr_b32 s11, s4, 3
    s_lshl_b32 s11, s11, 16
    s_add_u32 s62, s62, s11
    s_lshl_b32 s11, s7, 12
    s_add_u32 s62, s62, s11
    s_and_b32 s11, s4, 7
    s_lshl_b32 s11, s11, 9
    s_add_u32 s62, s62, s11
    s_add_u32 s62, s62, {OF}""")
    a("""s_and_b32 s72, s2, 7
    s_lshl_b32 s72, s72, 1
    s_bfe_u32 s11, s2, 0x10003
    s_add_u32 s72, s72, s11
    s_bfe_u32 s73, s2, 0x10004
    s_lshr_b32 s74, s2, 5
    s_mov_b32 s75, 0
    v_lshlrev_b32 v14, 4, v0
    v_lshrrev_b32 v4, 3, v0
    v_lshlrev_b32 v4, 10, v4
    v_bfe_u32 v5, v0, 2, 1
    v_bfe_u32 v6, v0, 4, 1
    v_xor_b32 v5, v5, v6
    v_lshl_add_u32 v4, v5, 6, v4
    v_and_b32 v5, 3, v0
    v_lshl_add_u32 v4, v5, 4, v4
    s_lshl_b32 s11, s3, 16
    s_lshl_b32 s12, s74, 7
    s_add_u32 s11, s11, s12
    v_add_u32 v13, s11, v4""")
    srd(a, sOUT, 30, 512 * 512 * 2)

L_CNT = R[2] + 32512
def signal(a, k):
    a(f"s_mov_b64 exec, 1\nds_add_u32 v{CA}, v{CA+1} offset:{4*k}\ns_mov_b64 exec, -1")
_wn = [0]
def waitcnt_lds(a, k, n):
    _wn[0] += 1; t = f"lw{_wn[0]}"
    if opt("lsleep"):
        a(f"s_branch {t}e\n{t}:\ns_sleep {int(opt('lsleep'))}\n{t}e:\nds_read_b32 v{CA+2}, v{CA} offset:{4*k}\ns_waitcnt lgkmcnt(0)\nv_readfirstlane_b32 s78, v{CA+2}\ns_cmp_lt_u32 s78, {n}\ns_cbranch_scc1 {t}")
    else:
        a(f"{t}:\nds_read_b32 v{CA+2}, v{CA} offset:{4*k}\ns_waitcnt lgkmcnt(0)\nv_readfirstlane_b32 s78, v{CA+2}\ns_cmp_lt_u32 s78, {n}\ns_cbranch_scc1 {t}")
CA = 28

def get_nonce(a, tag, NONCE=None):
    NONCE = NONCE or (127 if tag == "ln" else 16)
    a("s_mov_b32 s15, 0")
    a(f"{tag}_n0:\nv_readfirstlane_b32 s63, v{NONCE}\ns_add_u32 s15, s15, 1\ns_cmp_lg_u32 s63, 0\ns_cbranch_scc1 {tag}_n1")
    a(f"s_cmp_gt_u32 s15, 0x40000\ns_cbranch_scc1 {tag}_n1\ns_sleep 2\nbuffer_load_dword v{NONCE}, off, s[{sDB}:{sDB+3}], 0 sc1\ns_waitcnt vmcnt(0)\ns_branch {tag}_n0")
    a(f"{tag}_n1:")

def ka(a):
    N = NAME
    entry(a, N)
    a(f"""s_getpc_b64 s[10:11]
    {N}_pc:
    s_nop 2
    s_sub_u32 s9, s3, 4
    s_cmp_ge_u32 s9, 3
    s_cbranch_scc1 {N}_npf
    s_lshl_b32 s9, s9, 13
    s_sub_u32 s9, s9, {N}_pc-{N}
    v_lshl_add_u32 v4, v0, 7, s9
    v_ashrrev_i32 v5, 31, v4
    v_add_co_u32 v4, vcc, s10, v4
    v_mov_b32 v6, s11
    s_nop 0
    v_addc_co_u32 v5, vcc, v6, v5, vcc
    global_load_dword v127, v[4:5], off
    {N}_npf:""")
    a("""s_and_b32 s8, s2, 7
    s_lshr_b32 s9, s2, 3
    s_lshr_b32 s10, s8, 1
    s_and_b32 s11, s8, 1
    s_lshl_b32 s4, s10, 2
    s_and_b32 s12, s9, 3
    s_add_u32 s4, s4, s12
    s_lshl_b32 s5, s11, 2
    s_bfe_u32 s13, s9, 0x20002
    s_add_u32 s5, s5, s13
    s_lshr_b32 s6, s9, 4
    s_lshl_b32 s7, s5, 1
    s_add_u32 s7, s7, s6""")
    a(f"v_mov_b32 v8, {L_CNT}\nv_mov_b64 v[4:5], 0\nv_mov_b64 v[6:7], 0\nds_write_b128 v8, v[4:7]\nds_write_b128 v8, v[4:7] offset:16")
    a("s_and_b32 s60, s3, 3")
    if STAG == 1: a("s_lshr_b32 s66, s9, 2\ns_lshl_b32 s13, s12, 1\ns_add_u32 s66, s66, s13")
    elif STAG == 0: a("s_mov_b32 s66, 0")
    else:
        XM = {2: (1, 1), 3: (1, 2), 4: (3, 1), 5: (1, 0), 6: (3, 0)}[STAG]
        a(f"s_lshr_b32 s66, s9, 2\ns_add_u32 s66, s66, s12\ns_and_b32 s66, s66, {XM[0]}\ns_lshl_b32 s66, s66, {XM[1]}")
    a("s_lshl_b32 s64, s8, 2\ns_add_u32 s64, s64, s12\ns_lshr_b32 s65, s9, 2")
    XV, WV, QV, AXV, AA, WG, FP, ACC, XF, PK, ZB = 96, 100, 102, 104, 112, 128, 48, 64, 16, 32, 96
    global CA
    CA = 124
    a(f"""v_lshrrev_b32 v1, 3, v0
    v_and_b32 v2, 7, v0
    v_lshrrev_b32 v3, 4, v0
    v_xor_b32 v2, v2, v3
    v_lshlrev_b32 v2, 4, v2
    s_lshl_b32 s8, s4, 17
    s_lshl_b32 s10, s60, 15
    s_add_u32 s8, s8, s10
    v_lshl_add_u32 v5, v1, 10, v2
    v_add_u32 v{XV}, s8, v5
    v_add_u32 v{XV+1}, 7168, v{XV}
    v_xor_b32 v{XV+1}, 64, v{XV+1}
    v_add_u32 v{XV+2}, 14336, v{XV}
    v_add_u32 v{XV+3}, 14336, v{XV+1}
    v_mul_u32_u24 v5, 3072, v1
    v_bfe_u32 v6, v0, 2, 1
    v_and_b32 v7, 1, v3
    v_xor_b32 v6, v6, v7
    v_lshl_add_u32 v5, v6, 6, v5
    v_and_b32 v7, 3, v0
    v_lshl_add_u32 v5, v7, 4, v5
    s_mul_i32 s8, s60, 49152
    s_lshl_b32 s10, s6, 10
    s_add_u32 s10, s10, s8
    s_lshl_b32 s11, s5, 7
    s_add_u32 s10, s10, s11
    s_add_u32 s10, s10, 1024
    v_add_u32 v{WV}, s10, v5
    v_add_u32 v{WV+1}, 23552, v{WV}
    s_lshl_b32 s14, s60, 12
    s_lshl_b32 s67, s60, 11
    s_waitcnt lgkmcnt(0)""")
    srd(a, sX, 16, 2048 * 512 * 2)
    srd(a, sW, 28, 512 * 1536 * 2)
    SX = f"s[{sX}:{sX+3}]"; SW = f"s[{sW}:{sW+3}]"
    def chunk_idx(n):
        if STAG == 1: a(f"s_add_u32 s9, s66, {n}\ns_and_b32 s9, s9, 7")
        else: a(f"s_xor_b32 s9, s66, {n}")
    pieces = []
    PER = int(opt("per", 1))
    def dma(x):
        a(x)
        for _ in range(PER):
            if pieces: a(pieces.pop(0))
    def issue(u):
        reg = R[u % 5]
        if u < 8:
            chunk_idx(u)
            a(f"s_add_u32 m0, s14, {reg}\ns_lshl_b32 s10, s9, 7\ns_mul_i32 s11, s9, 196608")
            for i in range(4): dma(f"buffer_load_dwordx4 v{XV+i}, {SX}, s10 offen offset:{1024*i} lds")
            a(f"s_add_u32 m0, s67, {reg+16384}\ns_nop 0")
            for i in range(2): dma(f"buffer_load_dwordx4 v{WV+i}, {SW}, s11 offen offset:{1024*i} lds")
            return 6
        if u == 8:
            a(f"s_lshr_b32 s12, s67, 1")
            for n in range(8):
                chunk_idx(n)
                a(f"s_add_u32 m0, s12, {reg+4096*n}\ns_mul_i32 s11, s9, 196608")
                dma(f"buffer_load_dwordx4 v{QV}, {SW}, s11 offen lds")
            return 8
        a(f"s_lshl_b32 s12, s14, 1\ns_movk_i32 s10, {512*(u-9)}")
        for i in range(8):
            if i % 4 == 0: a(f"s_add_u32 m0, s12, {reg+1024*i}\ns_nop 0")
            dma(f"buffer_load_dwordx4 v{AXV+i}, {SX}, s10 offen offset:{1024*(i%4)} lds")
        return 8
    NGU = int(opt("ng", 2))
    a(f"s_cmp_ge_u32 s3, 4\ns_cbranch_scc1 {N}_L")
    for u in range(NGU): issue(u)
    main_lines = a.lines; a.lines = []
    a(".p2align 6")
    a.label(f"{N}_L")
    def late_setup():
        a(f"""v_lshrrev_b32 v5, 2, v0
        v_mul_u32_u24 v5, 3072, v5
        v_lshl_add_u32 v5, v7, 4, v5
        s_lshl_b32 s10, s7, 6
        s_add_u32 s10, s10, s8
        v_add_u32 v{QV}, s10, v5""")
        a(f"""v_and_b32 v1, 31, v0
        v_lshrrev_b32 v2, 5, v0
        v_xor_b32 v5, v1, v2
        v_lshlrev_b32 v5, 4, v5
        v_lshl_add_u32 v5, v2, 17, v5
        s_lshl_b32 s10, s64, 2
        s_add_u32 s10, s10, s60
        s_lshl_b32 s10, s10, 10
        v_add_u32 v5, s10, v5""")
        for n in range(8):
            a(f"v_xor_b32 v{AXV+n}, {32*n}, v5")
            if n: a(f"v_add_u32 v{AXV+n}, {n*2*131072-1024*(n%4)}, v{AXV+n}")
        a(f"""v_and_b32 v5, 15, v0
        v_xor_b32 v5, v5, v2
        v_lshlrev_b32 v5, 4, v5
        v_lshl_add_u32 v5, v1, 9, v5
        s_lshr_b32 s10, s60, 1
        s_lshl_b32 s10, s10, 14
        s_add_u32 s10, s10, {R[4]}
        v_add_u32 v{AA}, s10, v5""")
        for ks in range(1, 8): a(f"v_xor_b32 v{AA+ks}, {32*ks}, v{AA}")
        a(f"v_mov_b32 v{CA}, {L_CNT}\nv_mov_b32 v{CA+1}, 1")
        a("""s_lshl_b32 s10, s65, 5
        v_add_u32 v5, s10, v1
        s_and_b32 s11, s60, 1
        v_lshlrev_b32 v15, 31, v5
        v_or_b32 v15, 1.0, v15
        v_sub_u32 v6, v5, s11
        v_ashrrev_i32 v6, 31, v6
        v_and_b32 v7, 256, v6
        v_or_b32 v5, v5, v7
        v_cvt_f32_u32 v120, v5
        v_mul_f32 v120, 0x3b000000, v120
        s_mul_i32 s11, s11, 0x3e800000
        v_not_b32 v6, v6
        v_and_b32 v121, s11, v6
        v_cvt_f32_u32 v5, v2
        v_mul_f32 v5, 0x41000000, v5
        v_fmac_f32 v121, v5, v120""")
    def gen_pieces():
        a("v_mul_f32 v123, 0x41800000, v120\nv_cos_f32 v123, v123\ns_nop 0\nv_add_f32 v123, v123, v123")
        for ks in range(16):
            r = 16 + 8 * (ks & 1); o_ = 16 + 8 * (1 - (ks & 1))
            for p in range(4):
                x, y = r + 2 * p, r + 2 * p + 1
                if ks < 2:
                    pieces.append(f"v_fmamk_f32 v{x}, v120, {fhex(float(16*ks+2*p))}, v121\nv_add_f32 v{y}, v{x}, v120\nv_cos_f32 v{x}, v{x}\nv_cos_f32 v{y}, v{y}\ns_nop 0\nv_cvt_pk_bf16_f32 v{WG+4*ks+p}, v{x}, v{y}")
                else:
                    pieces.append(f"v_fma_f32 v{x}, v123, v{o_+2*p}, -v{x}\nv_fma_f32 v{y}, v123, v{o_+2*p+1}, -v{y}\nv_cvt_pk_bf16_f32 v{WG+4*ks+p}, v{x}, v{y}")
    def first():
        srd(a, sWS, 38, WS_BYTES)
        srd(a, sDB, 36, 256)
        a(f"s_xor_b32 s9, s60, 3\ns_or_b32 s9, s9, s2\ns_cmp_lg_u32 s9, 0\ns_cbranch_scc1 {N}_nn")
        a(f"v_lshlrev_b32 v4, 8, v0\nv_mov_b32 v5, 0\ns_mov_b32 s9, {FL2}\nbuffer_store_dword v5, v4, {W}, s9 offen sc1")
        a("s_memrealtime s[10:11]\ns_waitcnt vmcnt(0) lgkmcnt(0)\ns_or_b32 s10, s10, 1\nv_mov_b32 v4, s10\ns_mov_b64 exec, 1")
        a(f"buffer_store_dword v4, off, s[{sDB}:{sDB+3}], 0 sc1\ns_mov_b64 exec, -1")
        a.label(f"{N}_nn")
    def touch():
        if opt("notouch"): return
        a(f"s_cmp_lg_u32 s60, 3\ns_cbranch_scc1 {N}_ntt")
        srd(a, sOUT, 34, 2048 * 512 * 2)
        srd(a, sG, 30, 512 * 512 * 2)
        a(f"v_lshlrev_b32 v4, 21, v0\nv_add_u32 v4, 0x1fff80, v4\ns_mov_b64 exec, 63\nbuffer_load_dword v127, v4, {W}, 0 offen sc1\ns_mov_b64 exec, 1")
        a(f"buffer_load_dword v127, off, s[{sOUT}:{sOUT+3}], 0 sc1\nbuffer_load_dword v127, off, s[{sG}:{sG+3}], 0")
        if True: a(f"buffer_load_dword v127, off, s[{sDB}:{sDB+3}], 0 offset:128 sc1")
        a("s_mov_b64 exec, -1")
        a.label(f"{N}_ntt")
    def warm():
        WM = opt("warm", "q")
        if "q" in WM:
            a(f"""s_cmp_lg_u32 s60, 0
            s_cbranch_scc1 {N}_w1
            s_and_b32 s9, s4, 3
            s_lshl_b32 s9, s9, 1
            s_add_u32 s9, s9, s6
            s_mul_i32 s9, s9, 196608
            s_lshl_b32 s10, s5, 7
            s_add_u32 s9, s9, s10
            v_mul_u32_u24 v4, 3072, v0
            buffer_load_dword v127, v4, {SW}, s9 offen
            {N}_w1:""")
        if "x" in WM:
            a(f"""s_cmp_lg_u32 s60, 1
            s_cbranch_scc1 {N}_w2
            s_lshl_b32 s9, s64, 12
            s_lshl_b32 s10, s65, 7
            s_add_u32 s9, s9, s10
            v_lshrrev_b32 v4, 2, v0
            v_lshlrev_b32 v4, 17, v4
            v_and_b32 v5, 3, v0
            v_lshl_add_u32 v4, v5, 10, v4
            buffer_load_dword v127, v4, {SX}, s9 offen
            {N}_w2:""")
        if "o" in WM:
            srd(a, sG, 30, 512 * 512 * 2)
            a(f"""s_cmp_lt_u32 s60, 2
            s_cbranch_scc1 {N}_w3
            s_lshr_b32 s9, s2, 3
            s_lshl_b32 s9, s9, 1
            s_add_u32 s9, s9, s60
            s_sub_u32 s9, s9, 2
            s_lshl_b32 s9, s9, 13
            v_lshlrev_b32 v4, 7, v0
            buffer_load_dword v127, v4, s[{sG}:{sG+3}], s9 offen
            {N}_w3:""")
    def gw_loads():
        srd(a, sG, 32, 1024)
        a(f"""v_lshlrev_b32 v6, 5, v0
        v_and_b32 v6, 1023, v6
        buffer_load_dwordx4 v[56:59], v6, s[{sG}:{sG+3}], 0 offen
        buffer_load_dwordx4 v[60:63], v6, s[{sG}:{sG+3}], 0 offen offset:16""")
    def gate_loads():
        a(f"""s_lshl_b32 s76, s4, 7
        s_lshl_b32 s9, s7, 3
        s_add_u32 s76, s76, s9
        s_lshl_b32 s9, s60, 1
        s_add_u32 s76, s76, s9
        s_lshl_b32 s9, s76, 10
        v_lshlrev_b32 v6, 5, v0
        buffer_load_dwordx4 v[48:51], v6, {SX}, s9 offen
        buffer_load_dwordx4 v[52:55], v6, {SX}, s9 offen offset:16""")
    def gate_comp():
        a("v_mov_b32 v5, 0")
        for i in range(8): a(f"v_dot2c_f32_bf16 v5, v{48+i}, v{56+i}")
        a("v_lshrrev_b32 v6, 5, v0\nv_add_u32 v6, s76, v6\nv_and_b32 v7, 15, v6")
        a("v_add_f32_dpp v5, v5, v5 quad_perm:[1,0,3,2] row_mask:0xf bank_mask:0xf")
        a("v_lshrrev_b32 v6, 4, v6\nv_lshlrev_b32 v7, 9, v7")
        a("v_add_f32_dpp v5, v5, v5 quad_perm:[2,3,0,1] row_mask:0xf bank_mask:0xf")
        a("v_lshl_add_u32 v6, v6, 2, v7\ns_nop 0")
        a("v_add_f32_dpp v5, v5, v5 row_half_mirror row_mask:0xf bank_mask:0xf\ns_nop 1")
        a("v_add_f32_dpp v5, v5, v5 row_mirror row_mask:0xf bank_mask:0xf\ns_nop 1")
        a("v_add_f32_dpp v5, v5, v5 row_bcast:15 row_mask:0xa bank_mask:0xf")
        a(f"v_mul_f32 v5, {fhex(-math.log2(math.e))}, v5\nv_exp_f32 v5, v5\ns_nop 0\nv_add_f32 v5, 1.0, v5\nv_rcp_f32 v5, v5")
        a("s_mov_b32 exec_lo, 0x80000000\ns_mov_b32 exec_hi, 0x80000000")
        a(f"s_mov_b32 s76, {GF}\nbuffer_store_dword v5, v6, {W}, s76 offen sc1\ns_mov_b64 exec, -1")
    def flush(k):
        for _ in range(k):
            if pieces: a(pieces.pop(0))
    if opt("lfast"):
        a('s_barrier')
        warm()
        WORK = {0: [first, touch, gw_loads, late_setup, gen_pieces, lambda: flush(int(opt("pre", 0)))], 9: [lambda: flush(1000)]}
    else:
        first(); late_setup(); gen_pieces()
        a('s_barrier')
        warm()
        WORK = {0: [touch, gw_loads, lambda: flush(int(opt("pre", 0)))], 9: [lambda: flush(1000)]}
    WORK[int(opt("asat", 0))] = WORK.get(int(opt("asat", 0)), []) + [lambda: att_setup(a)]
    SCHED = eval(opt("sched", "[[2],[3,4],[],[5],[6],[7],[],[8],[9],[10]]"))
    cnt = {}; issued = []
    for n in range(10):
        if n == 9:
            waitcnt_lds(a, 0, 8)
            gate_loads()
        for u in SCHED[n]:
            assert u < 5 or u - 5 <= min(n, 7) - 3 or n == 9, (u, n)
            cnt[u] = issue(u); issued.append(u)
        for f in WORK.get(n, []): f()
        if n == 7: continue
        younger = sum(cnt[u] for u in issued if u > (7 if n == 6 else n)) if n < 9 else 8 * len([u for u in SCHED[9] if u > 9]) + (2 if 9 not in SCHED[9] else 0)
        if n >= NGU: a(f"s_waitcnt vmcnt({younger})")
        if n < NGU: pass
        elif n < 8: a("s_barrier")
        else: signal(a, (0, 5)[n - 8])
        if opt("p1st") and 1 <= n <= 7: stamp(a, n, True)
        if n == 6: stamp(a, 2)
        if n == 8: stamp(a, 3)
    def ard(s):
        F = XF + 4 * (s & 7)
        a(f"ds_read_b128 v[{F}:{F+3}], v{AA+(s&7)} offset:{256*((s>>3)&1)}")
        if 8 <= s < 16: a(f"v_subrev_u32 v{AA+(s&7)}, {R[4]-R[0]}, v{AA+(s&7)}")
    for half in range(2):
        if half == 0: waitcnt_lds(a, 5, 4)
        else:
            a("s_waitcnt vmcnt(0)")
            signal(a, 1)
            waitcnt_lds(a, 1, 4)
            stamp(a, 4)
        b = 16 * half
        for s in range(b, b + 6): ard(s)
        for s in range(b, b + 16):
            a(f"s_waitcnt lgkmcnt({min(5, b+15-s)})")
            c = vr(ACC + 16 * (s >> 4), 16)
            a(f"{MF} {c}, {vr(XF+4*(s&7),4)}, {vr(WG+4*(s&15),4)}, {'0' if (s & 15) == 0 else c}")
            if s + 6 < b + 16: ard(s + 6)
    a(f"""s_and_b32 s9, s60, 1
    s_lshl_b32 s9, s9, 12
    s_lshr_b32 s10, s60, 1
    s_lshl_b32 s11, s10, 11
    s_add_u32 s9, s9, s11
    s_add_u32 s9, s9, {L_ZX}
    v_add_u32 v2, s9, v14
    s_lshl_b32 s12, s60, 10
    s_add_u32 s12, s12, {L_QB}
    v_add_u32 v1, s12, v14""")
    a.nop(2)
    for i in range(16): a(f"v_fmac_f32 v{ACC+i}, v{ACC+16+i}, v15")
    for i in range(8): a(f"v_cvt_pk_bf16_f32 v{PK+i}, v{ACC+2*i}, v{ACC+2*i+1}")
    a(f"ds_write_b128 v2, v[{PK}:{PK+3}]\nds_write_b128 v2, v[{PK+4}:{PK+7}] offset:1024")
    signal(a, 2)
    gate_comp()
    a(f"v_mov_b32 v28, {L_CNT}")
    CA = 28
    for i in range(0, 16, 2): a(f"v_mov_b64 v[{CN+i}:{CN+i+1}], 0")
    waitcnt_lds(a, 3, 4)
    a(f"ds_read_b128 v[{QA}:{QA+3}], v1")
    a("s_branch att_body2")
    a.label(f"{N}_end")
    a("s_endpgm")

    XR, WR, ACC, PK = 128, 96, 64, 32
    XA, WA = 8, 12
    CA = 28
    l_lines = a.lines; a.lines = main_lines
    a.label(f"{N}_comp")
    a(f"""v_and_b32 v1, 31, v0
    v_lshrrev_b32 v2, 5, v0
    v_bfe_u32 v3, v0, 1, 3
    v_xor_b32 v3, v3, v2
    v_lshlrev_b32 v3, 4, v3
    v_lshl_add_u32 v3, v1, 7, v3
    s_lshl_b32 s9, s3, 12
    v_add_u32 v{XA}, s9, v3""")
    for ks in range(1, 4): a(f"v_xor_b32 v{XA+ks}, {32*ks}, v{XA}")
    a(f"""v_bfe_u32 v4, v0, 2, 2
    v_lshl_add_u32 v5, v2, 3, v4
    v_bfe_u32 v6, v0, 4, 1
    v_lshlrev_b32 v6, 5, v6
    v_and_b32 v7, 3, v0
    v_lshl_add_u32 v6, v7, 3, v6
    v_lshl_add_u32 v14, v5, 6, v6
    v_add_u32 v14, {R[3]}, v14
    v_lshl_add_u32 v5, v5, 7, v6
    v_lshrrev_b32 v4, 1, v4
    v_lshl_add_u32 v{WA}, v4, 6, v5
    v_xor_b32 v{WA+1}, 64, v{WA}""")
    a(f"v_mov_b32 v{CA}, {L_CNT}\nv_mov_b32 v{CA+1}, 1")
    a("s_waitcnt lgkmcnt(0)")
    srd(a, sWS, 38, WS_BYTES)
    srd(a, sDB, 36, 256)
    a(f"""s_lshl_b32 s8, s5, 7
    s_lshl_b32 s9, s4, 2
    s_add_u32 s8, s8, s9
    s_add_u32 s8, s8, s3
    s_lshl_b32 s8, s8, 12
    s_lshl_b32 s9, s6, 11
    s_add_u32 s8, s8, s9
    s_add_u32 s60, s8, 262144
    s_lshl_b32 s77, s4, 4
    s_add_u32 s77, s77, s7
    s_lshl_b32 s77, s77, 2
    s_add_u32 s77, s77, s3
    s_lshl_b32 s77, s77, 8
    s_add_u32 s77, s77, {FL1}
    v_lshlrev_b32 v15, 4, v0""")
    a(f"""s_mul_i32 s66, s3, 3
    s_lshl_b32 s67, s4, 2
    s_add_u32 s66, s66, s67
    s_sub_u32 s66, s66, 8
    v_lshrrev_b32 v4, 1, v0
    v_add_u32 v4, s66, v4
    v_ashrrev_i32 v5, 31, v4
    v_mov_b32 v6, s67
    v_bfi_b32 v4, v5, v6, v4
    v_lshrrev_b32 v5, 2, v4
    v_lshlrev_b32 v5, 6, v5
    v_and_b32 v6, 3, v4
    v_and_b32 v7, 1, v0
    v_lshl_add_u32 v6, v7, 2, v6
    s_lshl_b32 s11, s5, 3
    v_add3_u32 v5, v5, v6, s11
    v_lshlrev_b32 v18, 8, v5""")
    a(f"s_cmp_eq_u32 s6, 1\ns_cbranch_scc1 {N}_V")
    def p1(swap):
        naddr = [XA + i for i in range(4)] + [WA, WA + 1]
        def rds(s):
            ks = s & 3; F = WR + 8 * ks
            o = [f"ds_read_b128 v[{XR+4*s}:{XR+4*s+3}], v{XA+ks}"]
            for nt in range(2):
                for h in range(2): o.append(f"ds_read_b64_tr_b16 v[{F+4*nt+2*h}:{F+4*nt+2*h+1}], v{WA+nt} offset:{16384+2048*ks+512*h}")
            return o
        a(f"s_barrier\ns_waitcnt vmcnt({6*(NGU-1)})")
        signal(a, 6); waitcnt_lds(a, 6, 4)
        if opt("p1st"): stamp(a, 1, True)
        stamp(a, 1)
        for x in rds(0) + rds(1): a(x)
        for s in range(32):
            ks = s & 3; c = s >> 2
            a(f"s_waitcnt lgkmcnt({5 if s < 31 else 0})")
            r = rds(s + 2) if s < 30 else []
            for nt in range(2):
                x = vr(XR + 4 * s, 4); w = vr(WR + 8 * ks + 4 * nt, 4); cc = vr(ACC + 16 * nt, 16)
                ci = "0" if s == 0 else cc
                a(f"{MF} {cc}, {w}, {x}, {ci}" if swap else f"{MF} {cc}, {x}, {w}, {ci}")
                if nt == 0 and ks == 2 and c < 7:
                    d = R[(c + 1) % 5] - R[c % 5]
                    for x_ in naddr: a(f"v_add_u32 v{x_}, {d}, v{x_}" if d > 0 else f"v_subrev_u32 v{x_}, {-d}, v{x_}")
                    if c == 5: a(f"buffer_load_dword v{NONCE}, off, s[{sDB}:{sDB+3}], 0 sc1")
                    if c + 1 < NGU:
                        a(f"s_waitcnt vmcnt({6*(NGU-2-c)})")
                        signal(a, 6); waitcnt_lds(a, 6, 4 * (c + 2))
                    else:
                        if opt("p1st"): stamp(a, c + 1, True)
                        if c < 6: a("s_barrier")
                for x_ in (r[:3] if nt == 0 else r[3:]): a(x_)
    p1(True)
    a(f"s_branch {N}_p1d")
    if opt("lpos", "end") == "mid": a.lines += l_lines
    a.label(f"{N}_V")
    p1(False)
    a.label(f"{N}_p1d")
    stamp(a, 2)
    a("s_waitcnt vmcnt(0)")
    get_nonce(a, "gm")
    a.nop(6)
    for nt in range(2):
        for i in range(8): a(f"v_cvt_pk_bf16_f32 v{PK+8*nt+i}, v{ACC+16*nt+2*i}, v{ACC+16*nt+2*i+1}")
        for h in range(2): a(f"buffer_store_dwordx4 v[{PK+8*nt+4*h}:{PK+8*nt+4*h+3}], v15, {W}, s{(8,60)[nt]} offen offset:{1024*h} sc1")
    signal(a, 0)
    a("""s_lshr_b32 s9, s3, 1
    s_lshl_b32 s9, s9, 3
    v_bfe_u32 v120, v0, 1, 3
    v_add_u32 v120, s9, v120
    v_cvt_f32_u32 v120, v120
    v_and_b32 v121, 1, v0
    v_lshrrev_b32 v6, 5, v0
    v_sub_u32 v121, v121, v6
    v_cvt_f32_i32 v121, v121
    v_mul_f32 v121, 0x3e800000, v121
    v_bfe_u32 v6, v0, 4, 1
    v_lshlrev_b32 v6, 9, v6
    s_lshl_b32 s9, s64, 2
    v_add_u32 v6, s9, v6
    v_cvt_f32_u32 v6, v6
    v_mul_f32 v122, 0x3a000000, v120
    v_fmac_f32 v121, v6, v122
    v_mul_f32 v120, 0x3d800000, v120""")
    for u in range(4):
        for p in range(4):
            c0 = (2 * p & 3) + 8 * (p >> 1)
            pre = "v_add_f32 v121, v121, v122\n" if (u and p == 0) else ""
            a(pre + f"v_fmamk_f32 v4, v120, {fhex(float(c0))}, v121\nv_add_f32 v5, v4, v120\nv_cos_f32 v4, v4\nv_cos_f32 v5, v5\ns_nop 0\nv_cvt_pk_bf16_f32 v{FP+4*u+p}, v4, v5")
    FLAGAT = int(opt("flagat", 8))
    if FLAGAT < 0:
        a(f"s_waitcnt vmcnt(0)\ns_mov_b64 exec, 1\nbuffer_store_dword v{NONCE}, off, {W}, s77 sc1\ns_mov_b64 exec, -1")
        stamp(a, 3)
    waitcnt_lds(a, 0, 8)
    KP = f"v_mov_b32 v19, 0\nbuffer_atomic_add v19, v18, {W}, s76 offen sc0 sc1"
    POLLAT = int(opt("pollat", 31))
    def qrd(s):
        F = WR + 4 * (s & 7)
        for h in range(2): a(f"ds_read_b64_tr_b16 v[{F+2*h}:{F+2*h+1}], v14 offset:{1024*s+256*h}")
    for s in range(6): qrd(s)
    for s in range(32):
        a(f"s_waitcnt lgkmcnt({2*min(5, 31-s)})")
        a(f"{MF} {vr(ACC,16)}, {vr(WR+4*(s&7),4)}, {vr(XR+4*s,4)}, {'0' if s == 0 else vr(ACC,16)}")
        if s + 6 < 32: qrd(s + 6)
        if s == FLAGAT:
            a(f"s_waitcnt vmcnt(0)\ns_mov_b64 exec, 1\nbuffer_store_dword v{NONCE}, off, {W}, s77 sc1\ns_mov_b64 exec, -1")
            stamp(a, 3)
        if s == POLLAT: a(f"s_mov_b32 s76, {FL1}\ns_mov_b64 exec, 63\n{KP}\ns_mov_b64 exec, -1")
    a(f"""s_lshl_b32 s9, s3, 10
    s_add_u32 s9, s9, {L_QB}
    v_add_u32 v4, s9, v15""")
    a.nop(9)
    for i in range(16): a(f"v_mul_f32 v{ACC+i}, {fhex(QSCALE)}, v{ACC+i}")
    for i in range(8): a(f"v_cvt_pk_bf16_f32 v{QA+i}, v{ACC+2*i}, v{ACC+2*i+1}")
    a(f"ds_write_b128 v4, v[{QB}:{QB+3}]")
    a("s_mov_b32 s15, 0\ns_mov_b64 exec, 63")
    a(f"gm_poll:\ns_add_u32 s15, s15, 1\ns_waitcnt vmcnt(0)\nv_cmp_ne_u32 vcc, s63, v19")
    a(f"s_cmp_gt_u32 s15, 0x40000\ns_cbranch_scc1 gm_polled\ns_cbranch_vccz gm_polled\ns_sleep {PSLEEP}")
    a(f"{KP}\ns_branch gm_poll")
    a("gm_polled:\ns_mov_b64 exec, -1")
    stamp(a, 4)
    a(f"s_mul_i32 s12, s3, 12288\ns_lshl_b32 s13, s7, 6")
    for t in range(3):
        a(f"s_add_u32 s11, s66, {t}\ns_cmp_lt_i32 s11, 0\ns_cselect_b32 s11, s67, s11\ns_add_u32 s11, s11, s13\ns_lshl_b32 s11, s11, 12")
        a(f"s_add_u32 m0, s12, {L_KV + 4096*t}\ns_nop 0")
        for i in range(4): a(f"buffer_load_dwordx4 v15, {W}, s11 offen offset:{1024*i} sc1 lds")
    att_setup(a)
    a(f"""s_lshl_b32 s9, s74, 1
    s_lshr_b32 s10, s3, 1
    s_add_u32 s9, s9, s10
    s_sub_u32 s10, 15, s9
    s_min_u32 s10, s10, s9
    v_and_b32 v5, 1, v0
    v_add_u32 v5, s10, v5
    v_and_b32 v5, 7, v5
    v_lshrrev_b32 v6, 1, v0
    v_lshl_add_u32 v5, v6, 3, v5
    v_lshlrev_b32 v18, 8, v5
    s_and_b32 s79, s3, 1
    s_lshl_b32 s79, s79, 15
    s_add_u32 s79, s79, {FL3}""")
    for i in range(0, 16, 2): a(f"v_mov_b64 v[{CN+i}:{CN+i+1}], 0")
    a(f"s_lshl_b32 s77, s64, 3\ns_add_u32 s77, s77, s65\ns_lshl_b32 s77, s77, 8\ns_lshl_b32 s9, s3, 2\ns_add_u32 s77, s77, s9\ns_add_u32 s77, s77, {FL3}")
    a(f"""v_lshrrev_b32 v4, 5, v0
    v_lshlrev_b32 v3, 12, v4
    v_bfe_u32 v5, v0, 4, 1
    v_lshl_add_u32 v3, v5, 9, v3
    v_and_b32 v6, 15, v0
    v_lshl_add_u32 v3, v6, 4, v3
    s_lshr_b32 s10, s3, 1
    s_and_b32 s9, s3, 1
    s_lshl_b32 s9, s9, 8
    s_add_u32 s11, s9, {L_ZX}
    v_add_u32 v3, s11, v3
    v_lshrrev_b32 v4, 4, v0
    v_mul_u32_u24 v4, {2*32*TP}, v4
    v_lshl_add_u32 v5, v6, 4, v4
    s_lshl_b32 s11, s65, 9
    s_add_u32 s9, s9, s11
    v_add_u32 v5, s9, v5
    s_mul_i32 s10, s10, {8*32*TP}
    s_mul_i32 s11, s64, {TP}
    s_add_u32 s10, s10, s11
    s_add_u32 s10, s10, {TF}
    s_add_u32 s11, s10, {32*TP}""")
    for i in range(0, 16, 2): a(f"v_mov_b64 v[{ZB+i}:{ZB+i+1}], 0")
    waitcnt_lds(a, 2, 4)
    a("s_cmp_eq_u32 s9, 0\ns_cselect_b32 exec_hi, 0xfffefffe, -1")
    def step1():
        for u in range(4): a(f"{MF16} {vr(ACC+4*u,4)}, {vr(FP+4*u,4)}, {vr(ZB+4*u,4)}, 0")
        a.nop(5)
        for r2 in range(2):
            for u in range(4): a(f"v_cvt_pk_bf16_f32 v{PK+4*r2+u}, v{ACC+4*u+2*r2}, v{ACC+4*u+2*r2+1}")
    for u in range(4): a(f"ds_read_b128 v[{ZB+4*u}:{ZB+4*u+3}], v3 offset:{1024*u}")
    a("s_waitcnt lgkmcnt(0)\ns_mov_b64 exec, -1")
    step1()
    a(f"buffer_store_dwordx4 v[{PK}:{PK+3}], v5, {W}, s10 offen sc1\nbuffer_store_dwordx4 v[{PK+4}:{PK+7}], v5, {W}, s11 offen sc1")
    a("s_waitcnt vmcnt(2)")
    signal(a, 3)
    a(f"s_cmp_lg_u32 s9, 0\ns_cbranch_scc1 {N}_nsp")
    a("s_mov_b32 exec_hi, 0")
    for u in range(4): a(f"ds_read_b128 v[{ZB+4*u}:{ZB+4*u+3}], v3 offset:{4096+1024*u}")
    a("s_mov_b64 exec, -1\nv_add_u32 v6, 4096, v4\ns_waitcnt lgkmcnt(0)")
    step1()
    a("s_mov_b32 exec_lo, 0x00010001\ns_mov_b32 exec_hi, 0x00010001")
    a(f"buffer_store_dwordx4 v[{PK}:{PK+3}], v6, {W}, s10 offen sc1\nbuffer_store_dwordx4 v[{PK+4}:{PK+7}], v6, {W}, s11 offen sc1")
    a("s_mov_b64 exec, -1")
    a.label(f"{N}_nsp")
    waitcnt_lds(a, 3, 4)

    a.label("att_body2")
    stamp(a, 5)
    q = vr(QA, 4); cn = vr(CN, 16); o = vr(O, 16); m = 3
    kslot = {8: 0, 0: 1}; vslot = {8: 0, 0: 1}
    for n in range(7): kslot[7 - n] = (2 + n) & 3; vslot[7 - n] = (2 + n) & 3
    kf = lambda j: vr(KRG + 4 * kslot[j], 4)
    vf = lambda j, ks: vr(VB + 8 * vslot[j] + 4 * ks, 4)
    def krd(j): a(f"ds_read_b128 {kf(j)}, v{AK} offset:{4096*j}")
    def vrd(js):
        a("s_mov_b64 exec, s[12:13]")
        for j in js:
            for ks in range(2): a(f"ds_read_b128 {vf(j,ks)}, v{AV} offset:{4096*j+2048+1024*ks}")
        a("s_mov_b64 exec, -1")
    def wo_dma():
        a(f"s_add_u32 m0, s75, s8\ns_lshl_b32 s9, s75, 3\nbuffer_load_dwordx4 v13, s[{sOUT}:{sOUT+3}], s9 offen lds\ns_add_u32 s75, s75, 1024")
    TPL = f"s_mov_b32 exec_hi, 0\nbuffer_load_dwordx4 v[24:27], v18, {W}, s79 offen sc1\ns_mov_b64 exec, -1"
    TCHK = "s_mov_b32 exec_hi, 0\nv_xor_b32 v24, s63, v24\nv_xor_b32 v25, s63, v25\nv_xor_b32 v26, s63, v26\nv_xor_b32 v27, s63, v27\nv_or3_b32 v24, v24, v25, v26\nv_or_b32 v24, v24, v27\nv_cmp_ne_u32 vcc, 0, v24\ns_mov_b64 exec, -1"
    a(f"""s_mov_b32 s12, 0xffff
    s_mov_b32 s13, 0xffff
    s_mov_b32 s15, 0
    s_lshl_b32 s8, s3, 13
    s_add_u32 s8, s8, {R[3]}""")
    a.label("att_retry")
    for j in (8, 0, 7, 6): krd(j)
    vrd((8, 0, 7))
    PR = opt("prio", "a")
    if PR == "a": a("s_setprio 3")
    if PR == "b": a("s_cmp_lt_u32 s3, 4\ns_cbranch_scc1 att_np\ns_setprio 1\natt_np:")
    a("s_waitcnt lgkmcnt(7)\ns_nop 0")
    a(f"{MF} {vr(SB,16)}, {kf(8)}, {q}, {cn}")
    a(f"{MF} {vr(SC_,16)}, {kf(0)}, {q}, {cn}")
    a(f"{MF} {vr(SA,16)}, {kf(7)}, {q}, {cn}")
    wo_dma()
    a("s_cmp_lg_u32 s61, 9")
    a.nop(5)
    a("s_cbranch_scc1 att_no0a")
    for i in range(16): a(f"v_bfi_b32 v{SB+i}, v{TM+i}, v{SC_+i}, v{SB+i}")
    a.label("att_no0a")
    for i in range(16): a(f"v_exp_f32 v{SB+i}, v{SB+i}")
    for i in range(8): a(f"v_cvt_pk_bf16_f32 v{P+i}, v{SB+2*i}, v{SB+2*i+1}")
    for i in range(8): a(f"v_and_b32 v{P+8+i}, v{PM+i}, v{P+i}")
    for i in range(8): a(f"v_xor_b32 v{P+i}, v{P+8+i}, v{P+i}")
    a("s_waitcnt lgkmcnt(0)\ns_cmp_lg_u32 s61, 9")
    a(f"{MF} {o}, {vf(8,0)}, {vr(P,4)}, 0")
    a(f"{MF} {o}, {vf(8,1)}, {vr(P+4,4)}, {o}")
    a("s_cbranch_scc1 att_no0b")
    a(f"{MF} {o}, {vf(0,0)}, {vr(P+8,4)}, {o}")
    a(f"{MF} {o}, {vf(0,1)}, {vr(P+12,4)}, {o}")
    a.label("att_no0b")
    a("s_cmp_ge_u32 s3, 4\ns_cbranch_scc1 att_nof3")
    a(f"v_mov_b32 v4, s63\ns_waitcnt vmcnt(1)\ns_mov_b64 exec, 1\nbuffer_store_dword v4, off, {W}, s77 sc1\ns_mov_b64 exec, -1")
    a.label("att_nof3")
    a("s_cmp_eq_u32 s61, 1\ns_cbranch_scc1 att_done")
    S = [SA, SB]
    for n in range(7):
        j = 7 - n
        s = S[n & 1]; p = P + 8 * (n & 1)
        if PR == "a" and n in (1, 3, 5): a(f"s_setprio {2 - n // 2}")
        if PR == "c" : a(f"s_setprio {(3,2,2,1,1,0,0)[n]}")
        if n < 6:
            a(f"{MF} {vr(S[(n+1)&1],16)}, {kf(j-1)}, {q}, {cn}")
            if n < 5: krd(j - 2)
            vrd((j - 1,))
        if n < 3 and (not opt('wo1')): wo_dma()
        for i in range(8): a(f"v_exp_f32 v{s+i}, v{s+i}")
        for i in range(4): a(f"v_cvt_pk_bf16_f32 v{p+i}, v{s+2*i}, v{s+2*i+1}")
        for i in range(8, 10): a(f"v_exp_f32 v{s+i}, v{s+i}")
        a(f"{MF} {o}, {vf(j,0)}, {vr(p,4)}, {o}")
        if n < 4 or not (not opt('wo1')): wo_dma()
        for i in range(10, 16): a(f"v_exp_f32 v{s+i}, v{s+i}")
        for i in range(4, 8): a(f"v_cvt_pk_bf16_f32 v{p+i}, v{s+2*i}, v{s+2*i+1}")
        a(f"s_cmp_eq_u32 s61, {n+2}\ns_waitcnt lgkmcnt(0)")
        a(f"{MF} {o}, {vf(j,1)}, {vr(p+4,4)}, {o}")
        if n < 6 and not opt("nobr"): a("s_cbranch_scc1 att_done")
    a.label("att_done")
    a(f"s_nop 0\ns_mov_b32 s14, {fhex(0.0 if FORCEFB else 2.0**90)}\nv_mov_b32 v6, 0")
    a(f"""s_lshl_b32 s101, s3, 3
    s_bfe_u32 s9, s4, 0x10003
    s_lshl_b32 s9, s9, 2
    s_add_u32 s101, s101, s9
    s_and_b32 s9, s7, 3
    s_add_u32 s101, s101, s9
    s_lshl_b32 s101, s101, 8
    s_add_u32 s101, s101, {FL2}""")
    a.nop(1)
    a(f"v_rcp_f32 v4, v{O+8}\nv_mov_b32 v7, v{O+8}")
    for i in range(8): a(f"v_fmac_f32 v7, v{O+i}, v6")
    a(f"v_fmamk_f32 v7, v4, {fhex(2.0**50)}, v7\nv_cmp_nge_f32 vcc, s14, v7\ns_cbranch_vccnz att_fb")
    a.label("att_fin")
    for i in range(8): a(f"v_mul_f32 v{O+i}, v{O+i}, v4")
    for i in range(4): a(f"v_cvt_pk_bf16_f32 v{P+i}, v{O+2*i}, v{O+2*i+1}")
    a(f"ds_write_b128 v{AO}, v[{P}:{P+3}]")
    stamp(a, 6)
    a.label("att_wo")
    a("s_cmp_ge_u32 s75, 8192\ns_cbranch_scc1 att_wo2")
    wo_dma()
    a("s_branch att_wo")
    a.label("att_wo2")
    a(f"s_setprio 0\nv_mov_b32 v4, 1\ns_waitcnt vmcnt(0)\ns_cmp_lt_u32 s3, 4\ns_cbranch_scc0 att_nt\n{TPL}\natt_nt:")
    a(f"s_waitcnt lgkmcnt(0)\ns_barrier\nds_read_b128 v[{P}:{P+3}], v{AR}\ns_waitcnt lgkmcnt(0)")
    a(f"buffer_store_dwordx4 v[{P}:{P+3}], v12, {W}, s62 offen sc1")
    def flag2(n): a(f"s_waitcnt vmcnt({n})\ns_mov_b64 exec, 1\nbuffer_atomic_add v4, off, {W}, s101 sc1\ns_mov_b64 exec, -1")
    a("s_cmp_lt_u32 s3, 4\ns_cbranch_scc1 out_comp")
    a(f"""s_sub_u32 s60, s3, 4
    s_lshr_b32 s9, s72, 1
    s_lshl_b32 s9, s9, 3
    s_lshl_b32 s10, s73, 2
    s_add_u32 s9, s9, s10
    s_add_u32 s9, s9, s60
    s_lshl_b32 s9, s9, 8
    s_add_u32 s9, s9, {FL2}
    s_mul_i32 s8, s72, {OP}
    s_lshl_b32 s10, s73, 16
    s_add_u32 s8, s8, s10
    s_lshl_b32 s10, s60, 12
    s_add_u32 s8, s8, s10
    s_add_u32 s8, s8, {OF}
    s_mov_b32 s15, 0""")
    flag2(0)
    a("s_mov_b64 exec, 1")
    PA = lambda r: f"v_mov_b32 v{r}, 0\nbuffer_atomic_add v{r}, off, {W}, s9 sc0 sc1"
    if opt("pp"):
        g = int(opt("pp"))
        a(f"{PA(6)}\ns_sleep {g}\no_poll:")
        for x, y in ((7, 6), (6, 7)):
            a(f"{PA(x)}\ns_waitcnt vmcnt(1)\nv_cmp_gt_u32 vcc, 32, v{y}\ns_add_u32 s15, s15, 1\ns_cbranch_vccz o_polled")
        a("s_cmp_lt_u32 s15, 0x80000\ns_cbranch_scc1 o_poll")
    else:
        a(f"o_poll:\n{PA(6)}\ns_add_u32 s15, s15, 1\ns_waitcnt vmcnt(0)\nv_cmp_gt_u32 vcc, 32, v6")
        a(f"s_cmp_gt_u32 s15, 0x40000\ns_cbranch_scc1 o_polled\ns_cbranch_vccz o_polled\ns_sleep {int(opt('psleep2', 0))}\ns_branch o_poll")
    a("o_polled:\ns_mov_b64 exec, -1")
    stamp(a, 7)
    def oissue(c):
        a(f"s_add_u32 m0, s10, {R[1] + 16384*c}")
        a("s_add_u32 s8, s8, 16384" if c else "s_nop 0")
        for i in range(4): a(f"buffer_load_dwordx4 v14, {W}, s8 offen offset:{1024*i} sc1 lds")
    OS_ = eval(opt("osched", "[[0,1],[2],[3],[]]"))
    ni = 0
    for c in range(4):
        for u in OS_[c]: oissue(u); ni += 1
        a(f"s_waitcnt vmcnt({4*(ni-c-1)})\ns_barrier")
    stamp_out(a, 0)
    a("s_endpgm")
    AB, AY, FR = 64, 80, 192
    a.label("out_comp")
    a("s_lshr_b32 s66, s3, 1\ns_and_b32 s67, s3, 1")
    srd(a, sOUT, 34, 2048 * 512 * 2)
    a(f"""v_and_b32 v1, 31, v0
    v_lshrrev_b32 v2, 5, v0
    s_lshl_b32 s9, s67, 5
    s_lshl_b32 s10, s73, 6
    s_add_u32 s9, s9, s10
    v_add_u32 v3, s9, v1
    v_bfe_u32 v9, v0, 3, 2
    v_lshlrev_b32 v6, 9, v9
    v_and_b32 v9, 1, v9
    v_xor_b32 v9, v9, v2
    v_lshl_add_u32 v6, v9, 7, v6
    v_and_b32 v9, 7, v0
    v_lshl_add_u32 v6, v9, 4, v6
    s_lshl_b32 s9, s67, 11
    s_add_u32 s9, s9, {R[1]}
    v_add_u32 v6, s9, v6
    v_bfe_u32 v9, v0, 2, 2
    v_lshl_add_u32 v7, v2, 2, v9
    v_lshlrev_b32 v7, 7, v7
    v_lshrrev_b32 v9, 1, v9
    v_xor_b32 v9, s66, v9
    v_lshl_add_u32 v7, v9, 6, v7
    v_and_b32 v9, 1, v0
    v_lshl_add_u32 v7, v9, 5, v7
    v_bfe_u32 v9, v0, 4, 1
    v_lshl_add_u32 v7, v9, 4, v7
    v_bfe_u32 v9, v0, 1, 1
    v_lshl_add_u32 v7, v9, 3, v7
    v_add_u32 v7, {R[3]}, v7
    v_bfe_u32 v9, v0, 2, 1
    v_lshlrev_b32 v8, 4, v9
    v_and_b32 v9, 3, v0
    v_add_u32 v8, v8, v9
    v_bfe_u32 v9, v0, 3, 2
    v_lshl_add_u32 v8, v9, 2, v8
    s_lshl_b32 s9, s66, 5
    s_lshl_b32 s10, s74, 6
    s_add_u32 s9, s9, s10
    v_add_u32 v8, s9, v8
    v_sub_u32 v9, 512, v8
    s_sub_u32 s12, 16, s72
    s_and_b32 s12, s12, 15
    s_cmp_ge_u32 s74, 4
    s_cselect_b32 s12, s12, s72
    s_cselect_b32 s13, -1, 0
    v_bfi_b32 v8, s13, v9, v8
    v_lshlrev_b32 v8, 4, v8
    v_mul_u32_u24 v9, {TP}, v2
    v_add_u32 v8, v8, v9
    s_lshl_b32 s12, s12, 1
    s_add_u32 s12, s12, s67
    s_mul_i32 s12, s12, {16*TP}
    s_add_u32 s12, s12, {TF}
    s_lshl_b32 s9, s3, 12
    v_add_u32 v29, s9, v14
    v_xor_b32 v30, 4096, v29
    v_lshlrev_b32 v28, 14, v3
    v_lshl_add_u32 v28, v2, 5, v28
    s_lshl_b32 s14, s72, 10
    s_lshl_b32 s10, s74, 7
    s_add_u32 s14, s14, s10
    s_lshl_b32 s10, s66, 6
    s_add_u32 s14, s14, s10
    v_lshlrev_b32 v5, 2, v3
    s_lshl_b32 s11, s72, 9
    s_add_u32 s11, s11, {GF}
    s_mov_b32 s15, 0""")
    ab = vr(AB, 16); ay = vr(AY, 16)
    AZ = 224
    FG0 = len(a.lines)
    a("""s_cmp_eq_u32 s72, 0
    s_cselect_b32 s9, 1, 0
    s_add_u32 s9, s9, 127
    s_lshl_b32 s10, s67, 4
    v_add_u32 v15, s10, v2
    v_cvt_f32_u32 v15, v15
    v_mul_f32 v15, 4.0, v15""")
    a("""s_sub_u32 s77, 0, s67
    s_xor_b32 s77, s77, s13
    s_and_b32 s77, s77, 0x80008000
    v_sub_u32 v10, s9, v3
    v_and_b32 v10, 127, v10
    v_bfi_b32 v10, s13, v10, v3
    v_cvt_f32_u32 v10, v10
    v_mul_f32 v10, 0x3c000000, v10
    v_mul_f32 v11, v15, v10
    v_mul_f32 v12, 0x41000000, v10
    v_cos_f32 v12, v12
    s_nop 0
    v_add_f32 v12, v12, v12""")
    WF = [96 + 4 * k for k in range(24)] + [32 + 4 * k for k in range(8)]
    early = [h for h in range(32) if 128 <= WF[h] < 160 or 36 <= WF[h] < 48] if opt("ewo", "1") == "1" else []
    eq = list(early)
    def word(h):
        a(f"ds_read_b64_tr_b16 v[{WF[h]}:{WF[h]+1}], v7 offset:{2048*h}")
        a(f"ds_read_b64_tr_b16 v[{WF[h]+2}:{WF[h]+3}], v7 offset:{2048*h+1024}")
    for k in range(8):
        r = 112 + 8 * (k & 1); o_ = 112 + 8 * (1 - (k & 1))
        for u in range(4):
            x, y = r + 2 * u, r + 2 * u + 1
            if k < 2: a(f"v_fmamk_f32 v13, v10, {fhex(float(8*k+u))}, v11\nv_cos_f32 v{x}, v13\nv_sin_f32 v{y}, v13\ns_nop 0")
            else: a(f"v_fma_f32 v{x}, v12, v{o_+2*u}, -v{x}\nv_fma_f32 v{y}, v12, v{o_+2*u+1}, -v{y}")
            a(f"v_cvt_pk_bf16_f32 v{FREG[k]+u}, v{x}, v{y}")
            d = FREG[8 + k] + u
            if u == 0: a(f"v_mov_b32 v{d}, v{FREG[k]}")
            if u == 2: a(f"v_xor_b32 v{d}, 0x80008000, v{FREG[k]+2}")
            if u == 1: a(f"v_cvt_pk_bf16_f32 v{d}, -v{y}, v{x}\nv_xor_b32 v{d}, s77, v{d}")
            if u == 3: a(f"v_cvt_pk_bf16_f32 v{d}, v{y}, -v{x}\nv_xor_b32 v{d}, s77, v{d}")
            if (u & 1) and eq: word(eq.pop(0))
    fgl = a.lines[FG0:]; del a.lines[FG0:]
    FCUT = int(opt("fcut", 70))
    a.lines += fgl[:FCUT]
    flag2(0)
    stamp(a, 7)
    a(f"t_poll:\n{TCHK}")
    a(f"s_add_u32 s15, s15, 1\ns_cmp_gt_u32 s15, 0x40000\ns_cbranch_scc1 t_polled\ns_cbranch_vccz t_polled\ns_sleep {int(opt('psleep3', 8))}\n{TPL}\ns_waitcnt vmcnt(0)\ns_branch t_poll\nt_polled:")
    for k in range(8):
        a(f"buffer_load_dwordx4 v[{FR+4*k}:{FR+4*k+3}], v8, {W}, s12 offen sc1")
        if k < 7: a(f"s_add_u32 s12, s12, {2*TP}")
    a.lines += fgl[FCUT:]
    az = vr(AZ, 16)
    for k in range(8):
        a(f"s_waitcnt vmcnt({7-k})")
        a(f"{MF} {az}, {vr(FR+4*k,4)}, {vr(FREG[8+k],4)}, {'0' if k == 0 else az}")
        a(f"{MF} {ay}, {vr(FR+4*k,4)}, {vr(FREG[k],4)}, {'0' if k == 0 else ay}")
    for h in range(32):
        if h not in early: word(h)
    for i in range(4): a(f"ds_write_b128 v29, v[{AZ+4*i}:{AZ+4*i+3}] offset:{R[0]+1024*i}")
    a("s_waitcnt lgkmcnt(0)")
    def ords(c):
        for h in range(8): a(f"ds_read_b128 v[{FR+32*(c&1)+4*h}:{FR+32*(c&1)+4*h+3}], v6 offset:{16384*c+4096*(h>>1)+256*(h&1)}")
    SPL = int(opt("spl", 3))
    a("s_barrier")
    ords(0)
    a(f"buffer_load_dword v24, v5, {W}, s11 offen sc1")
    for c in range(4):
        for h in range(8):
            if h <= SPL: a(f"s_waitcnt lgkmcnt({7-h if h < SPL else 0})")
            a(f"{MF} {ab}, {vr(WF[8*c+h],4)}, {vr(FR+32*(c&1)+4*h,4)}, {'0' if c + h == 0 else ab}")
            if h == SPL and c < 3:
                a("s_barrier")
                if c == 1:
                    for i in range(4): a(f"ds_read_b128 v[{96+4*i}:{96+4*i+3}], v30 offset:{R[0]+1024*i}")
                ords(c + 1)
            if c == 3 and h < 4:
                for i in range(4 * h, 4 * h + 4): a(f"v_add_f32 v{AY+i}, v{AY+i}, v{96+i}")
            if c == 3 and h == 4: a("s_waitcnt vmcnt(0)\nv_sub_f32 v25, 1.0, v24")
            if c == 3 and 4 <= h:
                for i in range(4 * (h - 4), 4 * (h - 3)): a(f"v_mul_f32 v{AY+i}, v{AY+i}, v24")
    a.nop(8)
    for i in range(16): a(f"v_fmac_f32 v{AY+i}, v{AB+i}, v25")
    for i in range(8): a(f"v_cvt_pk_bf16_f32 v{FR+i}, v{AY+2*i}, v{AY+2*i+1}")
    a(f"buffer_store_dwordx4 v[{FR}:{FR+3}], v28, s[{sOUT}:{sOUT+3}], s14 offen")
    a(f"buffer_store_dwordx4 v[{FR+4}:{FR+7}], v28, s[{sOUT}:{sOUT+3}], s14 offen offset:16")
    stamp_out(a, 0)
    a("s_endpgm")
    a.label("att_fb")
    a("s_cmp_lg_u32 s15, 0\ns_cbranch_scc1 att_fin\ns_mov_b32 s15, 1\ns_mov_b32 s75, 0\ns_mov_b32 s14, 0xff800000\nv_mov_b32 v3, s14")
    def fbtile(j, mask):
        a(f"ds_read_b128 {vr(KRG,4)}, v{AK} offset:{4096*j}\ns_waitcnt lgkmcnt(0)")
        a(f"{MF} {vr(SA,16)}, {vr(KRG,4)}, {q}, 0")
        a.nop(12)
        if mask == 8:
            for i in range(16): a(f"v_bfi_b32 v{SA+i}, v{TM+i}, s14, v{SA+i}")
        if mask == 0:
            for i in range(16): a(f"v_bfi_b32 v{SA+i}, v{TM+i}, v{SA+i}, s14")
        for i in range(8): a(f"v_max3_f32 v{m}, v{m}, v{SA+2*i}, v{SA+2*i+1}")
    fbtile(8, 8)
    for n in range(8):
        a(f"s_cmp_eq_u32 s61, {n+1}\ns_cbranch_scc1 att_fb2")
        fbtile(7 - n, 0 if n == 7 else None)
    a.label("att_fb2")
    a(f"v_mov_b32 v4, v{m}\ns_nop 1\nv_permlane32_swap_b32 v4, v{m}\ns_nop 0\nv_max_f32 v{m}, v4, v{m}")
    a(f"v_sub_f32 v{CN}, 0, v{m}\nv_sub_f32 v{CN+1}, 0, v{m}")
    for i in range(2, 16, 2): a(f"v_mov_b64 v[{CN+i}:{CN+i+1}], v[{CN}:{CN+1}]")
    a("s_branch att_retry")
    if opt("lpos", "end") == "end": a.lines += l_lines

def desc(name, nv):
    return f""".p2align 6
.amdhsa_kernel {name}
  .amdhsa_next_free_vgpr {nv}
  .amdhsa_next_free_sgpr 102
  .amdhsa_accum_offset {(nv+3)//4*4}
  .amdhsa_group_segment_fixed_size 0
  .amdhsa_kernarg_size 96
  .amdhsa_user_sgpr_count 2
  .amdhsa_user_sgpr_kernarg_segment_ptr 1
  .amdhsa_system_sgpr_workgroup_id_x 1
.end_amdhsa_kernel
"""

a = Asm()
ka(a)
for m in check_hazards(a.lines): print("HAZARD", m, file=sys.stderr)
hdr = """; out = g*Re(DFT_seq(DFT_hid(x))) + (1-g)*(sliding-window attention(x) @ wo), one persistent launch, 256 workgroups of 8 waves.
"""
hdr += "; @launch grid=(256,1,1) block=(512,1,1) lds=163840\n"
hdr += f'.amdgcn_target "amdgcn-amd-amdhsa--gfx950"\n.text\n.globl {NAME}\n.type {NAME},@function\n'
out = hdr + a.text() + '.section .rodata,"a"\n' + desc(NAME, 256)
fn = [x for x in sys.argv[1:] if not x.startswith("--")][0]
open(fn, "w").write(out)
```

```python
import sys, math
from asmlib import *

def opt(name, default=None):
    for x in sys.argv:
        if x == "--" + name: return True
        if x.startswith("--" + name + "="): return x.split("=", 1)[1]
    return default
STAMP = opt("stamp", False)
STAG = int(opt("stag", 4))
PSLEEP = int(opt("psleep", 0))
FORCEFB = opt("forcefb", False)
KVB, TF, OF, GF, FL1, FL2, FL3 = 0x000000, 0x400000, 0x700000, 0xA00000, 0xA80000, 0xB00000, 0xB80000
STF = 0xC00000
WS_BYTES = 0x1000000
TP = 4224
OP = 131072 + 1024
MF = "v_mfma_f32_32x32x16_bf16"
MF16 = "v_mfma_f32_16x16x32_bf16"
QSCALE = 0.25 * math.log2(math.e)
sX, sW, sWS, sG, sDB, sOUT = 40, 44, 48, 52, 56, 68
NAME = 'gated_mix__spectral_fnet__sliding_block__prompt_kernel'
W = f"s[{sWS}:{sWS+3}]"
R = [32768 * i for i in range(5)]
L_KV, L_QB, L_ZX, L_OS = R[1], R[2] + 16384, R[2] + 20480, R[0] + 16384

def srd(a, d, ptr, nbytes):
    a(f"s_mov_b32 s{d}, s{ptr}\ns_mov_b32 s{d+1}, s{ptr+1}\ns_mov_b32 s{d+2}, {nbytes}\ns_mov_b32 s{d+3}, 0x00020000")

def entry(a, name):
    a(f".p2align 12\n{name}:")
    stamp(a, 0)
    a("s_load_dwordx16 s[16:31], s[0:1], 0")
    a("s_load_dwordx8 s[32:39], s[0:1], 64")
    a(f"s_cmp_ge_u32 s2, 256\ns_cbranch_scc1 {name}_end")
    a("v_lshrrev_b32 v1, 6, v0\nv_and_b32 v0, 63, v0\nv_readfirstlane_b32 s3, v1")

def stamp(a, i, p1=False):
    if opt("p1st") and i and not p1: return
    if STAMP: a(f"s_memrealtime s[{80+2*i}:{81+2*i}]")

def stamp_out(a, kidx):
    if not STAMP: return
    a("s_memrealtime s[96:97]\ns_waitcnt vmcnt(0) lgkmcnt(0)\ns_memrealtime s[98:99]\ns_waitcnt lgkmcnt(0)")
    a(f"s_lshl_b32 s78, s2, 3\ns_add_u32 s78, s78, s3\ns_lshl_b32 s78, s78, 7\ns_add_u32 s78, s78, {STF + kidx * 262144}")
    a("s_mov_b64 exec, 1")
    for i in range(20): a(f"v_mov_b32 v{4+i}, s{80+i}")
    a("v_mov_b32 v2, s78")
    for i in range(5): a(f"buffer_store_dwordx4 v[{4+4*i}:{7+4*i}], v2, {W}, 0 offen offset:{16*i}")

QA, QB = 20, 24
TM, PM, VB, KRG, SA, SB, SC_, CN, P, O = 192, 208, 216, 144, 64, 80, 128, 112, 32, 128
GX = 248
FREG = [160 + 4 * k for k in range(8)] + [96 + 4 * k for k in range(4)] + [48 + 4 * k for k in range(4)]
AK, AV, AO, AR = 8, 9, 10, 11
NONCE = 16

def att_setup(a):
    a("""v_and_b32 v2, 31, v0
    v_lshrrev_b32 v3, 5, v0
    v_lshlrev_b32 v4, v2, -2
    v_lshlrev_b32 v5, 2, v3
    v_lshrrev_b32 v4, v5, v4
    s_mov_b32 s13, 0xffff""")
    for r in range(16): a(f"v_bfe_i32 v{TM+r}, v4, {(r & 3) + 8 * (r >> 2)}, 1")
    for p in range(8): a(f"v_bfi_b32 v{PM+p}, s13, v{TM+2*p}, v{TM+2*p+1}")
    a(f"v_mov_b32 v{VB}, 0x3f803f80\nv_mov_b32 v{VB+1}, v{VB}")
    for i in range(2, 32, 2): a(f"v_mov_b64 v[{VB+i}:{VB+i+1}], v[{VB}:{VB+1}]")
    a(f"""s_and_b32 s9, s3, 3
    s_lshr_b32 s10, s3, 2
    s_lshl_b32 s11, s9, 12
    s_add_u32 s11, s11, {L_KV}
    s_lshl_b32 s12, s10, 10
    s_add_u32 s12, s12, s11
    v_lshlrev_b32 v4, 4, v0
    v_add_u32 v{AK}, s12, v4
    s_lshl_b32 s12, s10, 8
    s_add_u32 s12, s12, s11
    v_add_u32 v{AV}, s12, v4
    v_and_b32 v5, 15, v0
    v_mul_u32_u24 v5, 528, v5
    s_and_b32 s12, s4, 1
    v_xor_b32 v6, s12, v3
    v_lshl_add_u32 v5, v6, 7, v5
    v_bfe_u32 v6, v0, 4, 1
    v_lshl_add_u32 v5, v6, 4, v5
    s_lshl_b32 s12, s10, 8
    s_lshl_b32 s11, s9, 5
    s_add_u32 s12, s12, s11
    s_add_u32 s12, s12, {L_OS}
    v_add_u32 v{AO}, s12, v5
    s_mul_i32 s12, s3, 1056
    s_add_u32 s12, s12, {L_OS}
    v_mul_u32_u24 v5, 528, v3
    v_lshl_add_u32 v5, v2, 4, v5
    v_add_u32 v{AR}, s12, v5
    v_mul_u32_u24 v5, {OP}, v3
    v_lshl_add_u32 v12, v2, 4, v5""")
    a(f"""s_lshl_b32 s61, s4, 2
    s_add_u32 s61, s61, s9
    s_add_u32 s61, s61, 1
    s_min_u32 s61, s61, 9
    s_mul_i32 s62, s3, {2*OP}
    s_lshr_b32 s11, s4, 3
    s_lshl_b32 s11, s11, 16
    s_add_u32 s62, s62, s11
    s_lshl_b32 s11, s7, 12
    s_add_u32 s62, s62, s11
    s_and_b32 s11, s4, 7
    s_lshl_b32 s11, s11, 9
    s_add_u32 s62, s62, s11
    s_add_u32 s62, s62, {OF}""")
    a("""s_and_b32 s72, s2, 7
    s_lshl_b32 s72, s72, 1
    s_bfe_u32 s11, s2, 0x10003
    s_add_u32 s72, s72, s11
    s_bfe_u32 s73, s2, 0x10004
    s_lshr_b32 s74, s2, 5
    s_mov_b32 s75, 0
    v_lshlrev_b32 v14, 4, v0
    v_lshrrev_b32 v4, 3, v0
    v_lshlrev_b32 v4, 10, v4
    v_bfe_u32 v5, v0, 2, 1
    v_bfe_u32 v6, v0, 4, 1
    v_xor_b32 v5, v5, v6
    v_lshl_add_u32 v4, v5, 6, v4
    v_and_b32 v5, 3, v0
    v_lshl_add_u32 v4, v5, 4, v4
    s_lshl_b32 s11, s3, 16
    s_lshl_b32 s12, s74, 7
    s_add_u32 s11, s11, s12
    v_add_u32 v13, s11, v4""")
    srd(a, sOUT, 30, 512 * 512 * 2)

L_CNT = R[2] + 32512
def signal(a, k):
    a(f"s_mov_b64 exec, 1\nds_add_u32 v{CA}, v{CA+1} offset:{4*k}\ns_mov_b64 exec, -1")
_wn = [0]
def waitcnt_lds(a, k, n):
    _wn[0] += 1; t = f"lw{_wn[0]}"
    if opt("lsleep"):
        a(f"s_branch {t}e\n{t}:\ns_sleep {int(opt('lsleep'))}\n{t}e:\nds_read_b32 v{CA+2}, v{CA} offset:{4*k}\ns_waitcnt lgkmcnt(0)\nv_readfirstlane_b32 s78, v{CA+2}\ns_cmp_lt_u32 s78, {n}\ns_cbranch_scc1 {t}")
    else:
        a(f"{t}:\nds_read_b32 v{CA+2}, v{CA} offset:{4*k}\ns_waitcnt lgkmcnt(0)\nv_readfirstlane_b32 s78, v{CA+2}\ns_cmp_lt_u32 s78, {n}\ns_cbranch_scc1 {t}")
CA = 28

def get_nonce(a, tag, NONCE=None):
    NONCE = NONCE or (127 if tag == "ln" else 16)
    a("s_mov_b32 s15, 0")
    a(f"{tag}_n0:\nv_readfirstlane_b32 s63, v{NONCE}\ns_add_u32 s15, s15, 1\ns_cmp_lg_u32 s63, 0\ns_cbranch_scc1 {tag}_n1")
    a(f"s_cmp_gt_u32 s15, 0x40000\ns_cbranch_scc1 {tag}_n1\ns_sleep 2\nbuffer_load_dword v{NONCE}, off, s[{sDB}:{sDB+3}], 0 sc1\ns_waitcnt vmcnt(0)\ns_branch {tag}_n0")
    a(f"{tag}_n1:")

def ka(a):
    N = NAME
    entry(a, N)
    a(f"""s_getpc_b64 s[10:11]
    {N}_pc:
    s_nop 2
    s_sub_u32 s9, s3, 4
    s_cmp_ge_u32 s9, 3
    s_cbranch_scc1 {N}_npf
    s_lshl_b32 s9, s9, 13
    s_sub_u32 s9, s9, {N}_pc-{N}
    v_lshl_add_u32 v4, v0, 7, s9
    v_ashrrev_i32 v5, 31, v4
    v_add_co_u32 v4, vcc, s10, v4
    v_mov_b32 v6, s11
    s_nop 0
    v_addc_co_u32 v5, vcc, v6, v5, vcc
    global_load_dword v127, v[4:5], off
    {N}_npf:""")
    a("""s_and_b32 s8, s2, 7
    s_lshr_b32 s9, s2, 3
    s_lshr_b32 s10, s8, 1
    s_and_b32 s11, s8, 1
    s_lshl_b32 s4, s10, 2
    s_and_b32 s12, s9, 3
    s_add_u32 s4, s4, s12
    s_lshl_b32 s5, s11, 2
    s_bfe_u32 s13, s9, 0x20002
    s_add_u32 s5, s5, s13
    s_lshr_b32 s6, s9, 4
    s_lshl_b32 s7, s5, 1
    s_add_u32 s7, s7, s6""")
    a(f"v_mov_b32 v8, {L_CNT}\nv_mov_b64 v[4:5], 0\nv_mov_b64 v[6:7], 0\nds_write_b128 v8, v[4:7]\nds_write_b128 v8, v[4:7] offset:16")
    a("s_and_b32 s60, s3, 3")
    if STAG == 1: a("s_lshr_b32 s66, s9, 2\ns_lshl_b32 s13, s12, 1\ns_add_u32 s66, s66, s13")
    elif STAG == 0: a("s_mov_b32 s66, 0")
    else:
        XM = {2: (1, 1), 3: (1, 2), 4: (3, 1), 5: (1, 0), 6: (3, 0), 7: (3, 1), 8: (3, 1)}[STAG]
        a(f"s_lshr_b32 s66, s9, 2\ns_add_u32 s66, s66, s12\ns_and_b32 s66, s66, {XM[0]}\ns_lshl_b32 s66, s66, {XM[1]}")
    if STAG == 8:
        T = eval(opt("perm", "[[0,1,2,3,4,5,6,7],[0,3,4,5,6,7,1,2],[4,5,6,7,0,1,2,3],[4,7,2,1,0,3,5,6]]"))
        enc = [sum(c << (4 * k) for k, c in enumerate(t)) for t in T]
        a(f"s_mov_b32 s15, {enc[0]}")
        for k in range(1, 4): a(f"s_cmp_eq_u32 s66, {2*k}\ns_cselect_b32 s15, {enc[k]}, s15")
    a("s_lshl_b32 s64, s8, 2\ns_add_u32 s64, s64, s12\ns_lshr_b32 s65, s9, 2")
    XV, WV, QV, AXV, AA, WG, FP, ACC, XF, PK, ZB = 96, 100, 102, 104, 112, 128, 48, 64, 16, 32, 96
    global CA
    CA = 124
    a(f"""v_lshrrev_b32 v1, 3, v0
    v_and_b32 v2, 7, v0
    v_lshrrev_b32 v3, 4, v0
    v_xor_b32 v2, v2, v3
    v_lshlrev_b32 v2, 4, v2
    s_lshl_b32 s8, s4, 17
    s_lshl_b32 s10, s60, 15
    s_add_u32 s8, s8, s10
    v_lshl_add_u32 v5, v1, 10, v2
    v_add_u32 v{XV}, s8, v5
    v_add_u32 v{XV+1}, 7168, v{XV}
    v_xor_b32 v{XV+1}, 64, v{XV+1}
    v_add_u32 v{XV+2}, 14336, v{XV}
    v_add_u32 v{XV+3}, 14336, v{XV+1}
    v_mul_u32_u24 v5, 3072, v1
    v_bfe_u32 v6, v0, 2, 1
    v_and_b32 v7, 1, v3
    v_xor_b32 v6, v6, v7
    v_lshl_add_u32 v5, v6, 6, v5
    v_and_b32 v7, 3, v0
    v_lshl_add_u32 v5, v7, 4, v5
    s_mul_i32 s8, s60, 49152
    s_lshl_b32 s10, s6, 10
    s_add_u32 s10, s10, s8
    s_lshl_b32 s11, s5, 7
    s_add_u32 s10, s10, s11
    s_add_u32 s10, s10, 1024
    v_add_u32 v{WV}, s10, v5
    v_add_u32 v{WV+1}, 23552, v{WV}
    s_lshl_b32 s14, s60, 12
    s_lshl_b32 s67, s60, 11
    s_waitcnt lgkmcnt(0)""")
    srd(a, sX, 16, 2048 * 512 * 2)
    srd(a, sW, 28, 512 * 1536 * 2)
    SX = f"s[{sX}:{sX+3}]"; SW = f"s[{sW}:{sW+3}]"
    def chunk_idx(n):
        if STAG == 1: a(f"s_add_u32 s9, s66, {n}\ns_and_b32 s9, s9, 7")
        elif STAG == 7:
            if n == 0: a("s_mov_b32 s9, 0")
            else: a(f"s_add_u32 s9, s66, {n}\ns_cmp_gt_u32 s9, 7\ns_cselect_b32 s10, 7, 0\ns_sub_u32 s9, s9, s10")
        elif STAG == 8:
            a(f"s_lshr_b32 s9, s15, {4*n}\ns_and_b32 s9, s9, 7")
        else: a(f"s_xor_b32 s9, s66, {n}")
    pieces = []
    PER = int(opt("per", 1))
    def dma(x):
        a(x)
        for _ in range(PER):
            if pieces: a(pieces.pop(0))
    def issue(u):
        reg = R[u % 5]
        if u < 8:
            chunk_idx(u)
            a(f"s_add_u32 m0, s14, {reg}\ns_lshl_b32 s10, s9, 7\ns_mul_i32 s11, s9, 196608")
            for i in range(4): dma(f"buffer_load_dwordx4 v{XV+i}, {SX}, s10 offen offset:{1024*i} lds")
            a(f"s_add_u32 m0, s67, {reg+16384}\ns_nop 0")
            for i in range(2): dma(f"buffer_load_dwordx4 v{WV+i}, {SW}, s11 offen offset:{1024*i} lds")
            return 6
        if u == 8:
            a(f"s_lshr_b32 s12, s67, 1")
            for n in range(8):
                chunk_idx(n)
                a(f"s_add_u32 m0, s12, {reg+4096*n}\ns_mul_i32 s11, s9, 196608")
                dma(f"buffer_load_dwordx4 v{QV}, {SW}, s11 offen lds")
            return 8
        a(f"s_lshl_b32 s12, s14, 1\ns_movk_i32 s10, {512*(u-9)}")
        for i in range(8):
            if i % 4 == 0: a(f"s_add_u32 m0, s12, {reg+1024*i}\ns_nop 0")
            dma(f"buffer_load_dwordx4 v{AXV+i}, {SX}, s10 offen offset:{1024*(i%4)} lds")
        return 8
    NGU = int(opt("ng", 2))
    a(f"s_cmp_ge_u32 s3, 4\ns_cbranch_scc1 {N}_L")
    for u in range(NGU): issue(u)
    main_lines = a.lines; a.lines = []
    a(".p2align 6")
    a.label(f"{N}_L")
    def late_setup():
        a(f"""v_lshrrev_b32 v5, 2, v0
        v_mul_u32_u24 v5, 3072, v5
        v_lshl_add_u32 v5, v7, 4, v5
        s_lshl_b32 s10, s7, 6
        s_add_u32 s10, s10, s8
        v_add_u32 v{QV}, s10, v5""")
        a(f"""v_and_b32 v1, 31, v0
        v_lshrrev_b32 v2, 5, v0
        v_xor_b32 v5, v1, v2
        v_lshlrev_b32 v5, 4, v5
        v_lshl_add_u32 v5, v2, 17, v5
        s_lshl_b32 s10, s64, 2
        s_add_u32 s10, s10, s60
        s_lshl_b32 s10, s10, 10
        v_add_u32 v5, s10, v5""")
        for n in range(8):
            a(f"v_xor_b32 v{AXV+n}, {32*n}, v5")
            if n: a(f"v_add_u32 v{AXV+n}, {n*2*131072-1024*(n%4)}, v{AXV+n}")
        a(f"""v_and_b32 v5, 15, v0
        v_xor_b32 v5, v5, v2
        v_lshlrev_b32 v5, 4, v5
        v_lshl_add_u32 v5, v1, 9, v5
        s_lshr_b32 s10, s60, 1
        s_lshl_b32 s10, s10, 14
        s_add_u32 s10, s10, {R[4]}
        v_add_u32 v{AA}, s10, v5""")
        for ks in range(1, 8): a(f"v_xor_b32 v{AA+ks}, {32*ks}, v{AA}")
        a(f"v_mov_b32 v{CA}, {L_CNT}\nv_mov_b32 v{CA+1}, 1")
        a("""s_lshl_b32 s10, s65, 5
        v_add_u32 v5, s10, v1
        s_and_b32 s11, s60, 1
        v_lshlrev_b32 v15, 31, v5
        v_or_b32 v15, 1.0, v15
        v_sub_u32 v6, v5, s11
        v_ashrrev_i32 v6, 31, v6
        v_and_b32 v7, 256, v6
        v_or_b32 v5, v5, v7
        v_cvt_f32_u32 v120, v5
        v_mul_f32 v120, 0x3b000000, v120
        s_mul_i32 s11, s11, 0x3e800000
        v_not_b32 v6, v6
        v_and_b32 v121, s11, v6
        v_cvt_f32_u32 v5, v2
        v_mul_f32 v5, 0x41000000, v5
        v_fmac_f32 v121, v5, v120""")
    def gen_pieces():
        a("v_mul_f32 v123, 0x41800000, v120\nv_cos_f32 v123, v123\ns_nop 0\nv_add_f32 v123, v123, v123")
        for ks in range(16):
            r = 16 + 8 * (ks & 1); o_ = 16 + 8 * (1 - (ks & 1))
            for p in range(4):
                x, y = r + 2 * p, r + 2 * p + 1
                if ks < 2:
                    pieces.append(f"v_fmamk_f32 v{x}, v120, {fhex(float(16*ks+2*p))}, v121\nv_add_f32 v{y}, v{x}, v120\nv_cos_f32 v{x}, v{x}\nv_cos_f32 v{y}, v{y}\ns_nop 0\nv_cvt_pk_bf16_f32 v{WG+4*ks+p}, v{x}, v{y}")
                else:
                    pieces.append(f"v_fma_f32 v{x}, v123, v{o_+2*p}, -v{x}\nv_fma_f32 v{y}, v123, v{o_+2*p+1}, -v{y}\nv_cvt_pk_bf16_f32 v{WG+4*ks+p}, v{x}, v{y}")
    def first():
        srd(a, sWS, 38, WS_BYTES)
        srd(a, sDB, 36, 256)
        a(f"s_xor_b32 s9, s60, 3\ns_or_b32 s9, s9, s2\ns_cmp_lg_u32 s9, 0\ns_cbranch_scc1 {N}_nn")
        a(f"v_lshlrev_b32 v4, 8, v0\nv_mov_b32 v5, 0\ns_mov_b32 s9, {FL2}\nbuffer_store_dword v5, v4, {W}, s9 offen sc1")
        a("s_memrealtime s[10:11]\ns_waitcnt vmcnt(0) lgkmcnt(0)\ns_or_b32 s10, s10, 1\nv_mov_b32 v4, s10\ns_mov_b64 exec, 1")
        a(f"buffer_store_dword v4, off, s[{sDB}:{sDB+3}], 0 sc1\ns_mov_b64 exec, -1")
        a.label(f"{N}_nn")
    def touch():
        if opt("notouch"): return
        a(f"s_cmp_lg_u32 s60, 3\ns_cbranch_scc1 {N}_ntt")
        srd(a, sOUT, 34, 2048 * 512 * 2)
        srd(a, sG, 30, 512 * 512 * 2)
        a(f"v_lshlrev_b32 v4, 21, v0\nv_add_u32 v4, 0x1fff80, v4\ns_mov_b64 exec, 63\nbuffer_load_dword v127, v4, {W}, 0 offen sc1\ns_mov_b64 exec, 1")
        a(f"buffer_load_dword v127, off, s[{sOUT}:{sOUT+3}], 0 sc1\nbuffer_load_dword v127, off, s[{sG}:{sG+3}], 0")
        if True: a(f"buffer_load_dword v127, off, s[{sDB}:{sDB+3}], 0 offset:128 sc1")
        a("s_mov_b64 exec, -1")
        a.label(f"{N}_ntt")
    def warm():
        WM = opt("warm", "q")
        if "q" in WM:
            a(f"""s_cmp_lg_u32 s60, 0
            s_cbranch_scc1 {N}_w1
            s_and_b32 s9, s4, 3
            s_lshl_b32 s9, s9, 1
            s_add_u32 s9, s9, s6
            s_mul_i32 s9, s9, 196608
            s_lshl_b32 s10, s5, 7
            s_add_u32 s9, s9, s10
            v_mul_u32_u24 v4, 3072, v0
            buffer_load_dword v127, v4, {SW}, s9 offen
            {N}_w1:""")
        if "x" in WM:
            a(f"""s_cmp_lg_u32 s60, 1
            s_cbranch_scc1 {N}_w2
            s_lshl_b32 s9, s64, 12
            s_lshl_b32 s10, s65, 7
            s_add_u32 s9, s9, s10
            v_lshrrev_b32 v4, 2, v0
            v_lshlrev_b32 v4, 17, v4
            v_and_b32 v5, 3, v0
            v_lshl_add_u32 v4, v5, 10, v4
            buffer_load_dword v127, v4, {SX}, s9 offen
            {N}_w2:""")
        if "o" in WM:
            srd(a, sG, 30, 512 * 512 * 2)
            a(f"""s_cmp_lt_u32 s60, 2
            s_cbranch_scc1 {N}_w3
            s_lshr_b32 s9, s2, 3
            s_lshl_b32 s9, s9, 1
            s_add_u32 s9, s9, s60
            s_sub_u32 s9, s9, 2
            s_lshl_b32 s9, s9, 13
            v_lshlrev_b32 v4, 7, v0
            buffer_load_dword v127, v4, s[{sG}:{sG+3}], s9 offen
            {N}_w3:""")
    def gw_loads():
        srd(a, sG, 32, 1024)
        a(f"""v_lshlrev_b32 v6, 5, v0
        v_and_b32 v6, 1023, v6
        buffer_load_dwordx4 v[56:59], v6, s[{sG}:{sG+3}], 0 offen
        buffer_load_dwordx4 v[60:63], v6, s[{sG}:{sG+3}], 0 offen offset:16""")
    def gate_loads():
        a(f"""s_lshl_b32 s76, s4, 7
        s_lshl_b32 s9, s7, 3
        s_add_u32 s76, s76, s9
        s_lshl_b32 s9, s60, 1
        s_add_u32 s76, s76, s9
        s_lshl_b32 s9, s76, 10
        v_lshlrev_b32 v6, 5, v0
        buffer_load_dwordx4 v[48:51], v6, {SX}, s9 offen
        buffer_load_dwordx4 v[52:55], v6, {SX}, s9 offen offset:16""")
    def gate_comp():
        a("v_mov_b32 v5, 0")
        for i in range(8): a(f"v_dot2c_f32_bf16 v5, v{48+i}, v{56+i}")
        a("v_lshrrev_b32 v6, 5, v0\nv_add_u32 v6, s76, v6\nv_and_b32 v7, 15, v6")
        a("v_add_f32_dpp v5, v5, v5 quad_perm:[1,0,3,2] row_mask:0xf bank_mask:0xf")
        a("v_lshrrev_b32 v6, 4, v6\nv_lshlrev_b32 v7, 9, v7")
        a("v_add_f32_dpp v5, v5, v5 quad_perm:[2,3,0,1] row_mask:0xf bank_mask:0xf")
        a("v_lshl_add_u32 v6, v6, 2, v7\ns_nop 0")
        a("v_add_f32_dpp v5, v5, v5 row_half_mirror row_mask:0xf bank_mask:0xf\ns_nop 1")
        a("v_add_f32_dpp v5, v5, v5 row_mirror row_mask:0xf bank_mask:0xf\ns_nop 1")
        a("v_add_f32_dpp v5, v5, v5 row_bcast:15 row_mask:0xa bank_mask:0xf")
        a(f"v_mul_f32 v5, {fhex(-math.log2(math.e))}, v5\nv_exp_f32 v5, v5\ns_nop 0\nv_add_f32 v5, 1.0, v5\nv_rcp_f32 v5, v5")
        a("s_mov_b32 exec_lo, 0x80000000\ns_mov_b32 exec_hi, 0x80000000")
        a(f"s_mov_b32 s76, {GF}\nbuffer_store_dword v5, v6, {W}, s76 offen sc1\ns_mov_b64 exec, -1")
    def flush(k):
        for _ in range(k):
            if pieces: a(pieces.pop(0))
    if opt("lfast"):
        a('s_barrier')
        warm()
        WORK = {0: [first, touch, gw_loads, late_setup, gen_pieces, lambda: flush(int(opt("pre", 0)))], 9: [lambda: flush(1000)]}
    else:
        first(); late_setup(); gen_pieces()
        a('s_barrier')
        warm()
        WORK = {0: [touch, gw_loads, lambda: flush(int(opt("pre", 0)))], 9: [lambda: flush(1000)]}
    WORK[int(opt("asat", 0))] = WORK.get(int(opt("asat", 0)), []) + [lambda: att_setup(a)]
    SCHED = eval(opt("sched", "[[2],[3,4],[],[5],[6],[7],[],[8],[9],[10]]"))
    cnt = {}; issued = []
    for n in range(10):
        if n == 9:
            waitcnt_lds(a, 0, 8)
            gate_loads()
        for u in SCHED[n]:
            assert u < 5 or u - 5 <= min(n, 7) - 3 or n == 9, (u, n)
            cnt[u] = issue(u); issued.append(u)
        for f in WORK.get(n, []): f()
        if n == 7: continue
        younger = sum(cnt[u] for u in issued if u > (7 if n == 6 else n)) if n < 9 else 8 * len([u for u in SCHED[9] if u > 9]) + (2 if 9 not in SCHED[9] else 0)
        if n >= NGU: a(f"s_waitcnt vmcnt({younger})")
        if n < NGU: pass
        elif n < 8: a("s_barrier")
        else: signal(a, (0, 5)[n - 8])
        if opt("p1st") and 1 <= n <= 7: stamp(a, n, True)
        if n == 6: stamp(a, 2)
        if n == 8: stamp(a, 3)
    def ard(s):
        F = XF + 4 * (s & 7)
        a(f"ds_read_b128 v[{F}:{F+3}], v{AA+(s&7)} offset:{256*((s>>3)&1)}")
        if 8 <= s < 16: a(f"v_subrev_u32 v{AA+(s&7)}, {R[4]-R[0]}, v{AA+(s&7)}")
    for half in range(2):
        if half == 0: waitcnt_lds(a, 5, 4)
        else:
            a("s_waitcnt vmcnt(0)")
            signal(a, 1)
            waitcnt_lds(a, 1, 4)
            stamp(a, 4)
        b = 16 * half
        for s in range(b, b + 6): ard(s)
        for s in range(b, b + 16):
            a(f"s_waitcnt lgkmcnt({min(5, b+15-s)})")
            c = vr(ACC + 16 * (s >> 4), 16)
            a(f"{MF} {c}, {vr(XF+4*(s&7),4)}, {vr(WG+4*(s&15),4)}, {'0' if (s & 15) == 0 else c}")
            if s + 6 < b + 16: ard(s + 6)
    a(f"""s_and_b32 s9, s60, 1
    s_lshl_b32 s9, s9, 12
    s_lshr_b32 s10, s60, 1
    s_lshl_b32 s11, s10, 11
    s_add_u32 s9, s9, s11
    s_add_u32 s9, s9, {L_ZX}
    v_add_u32 v2, s9, v14
    s_lshl_b32 s12, s60, 10
    s_add_u32 s12, s12, {L_QB}
    v_add_u32 v1, s12, v14""")
    a.nop(2)
    for i in range(16): a(f"v_fmac_f32 v{ACC+i}, v{ACC+16+i}, v15")
    for i in range(8): a(f"v_cvt_pk_bf16_f32 v{PK+i}, v{ACC+2*i}, v{ACC+2*i+1}")
    a(f"ds_write_b128 v2, v[{PK}:{PK+3}]\nds_write_b128 v2, v[{PK+4}:{PK+7}] offset:1024")
    signal(a, 2)
    gate_comp()
    a(f"v_mov_b32 v28, {L_CNT}")
    CA = 28
    for i in range(0, 16, 2): a(f"v_mov_b64 v[{CN+i}:{CN+i+1}], 0")
    waitcnt_lds(a, 3, 4)
    a(f"ds_read_b128 v[{QA}:{QA+3}], v1")
    a("s_branch att_body2")
    a.label(f"{N}_end")
    a("s_endpgm")

    XR, WR, ACC, PK = 128, 96, 64, 32
    XA, WA = 8, 12
    CA = 28
    l_lines = a.lines; a.lines = main_lines
    a.label(f"{N}_comp")
    a(f"""v_and_b32 v1, 31, v0
    v_lshrrev_b32 v2, 5, v0
    v_bfe_u32 v3, v0, 1, 3
    v_xor_b32 v3, v3, v2
    v_lshlrev_b32 v3, 4, v3
    v_lshl_add_u32 v3, v1, 7, v3
    s_lshl_b32 s9, s3, 12
    v_add_u32 v{XA}, s9, v3""")
    for ks in range(1, 4): a(f"v_xor_b32 v{XA+ks}, {32*ks}, v{XA}")
    a(f"""v_bfe_u32 v4, v0, 2, 2
    v_lshl_add_u32 v5, v2, 3, v4
    v_bfe_u32 v6, v0, 4, 1
    v_lshlrev_b32 v6, 5, v6
    v_and_b32 v7, 3, v0
    v_lshl_add_u32 v6, v7, 3, v6
    v_lshl_add_u32 v14, v5, 6, v6
    v_add_u32 v14, {R[3]}, v14
    v_lshl_add_u32 v5, v5, 7, v6
    v_lshrrev_b32 v4, 1, v4
    v_lshl_add_u32 v{WA}, v4, 6, v5
    v_xor_b32 v{WA+1}, 64, v{WA}""")
    a(f"v_mov_b32 v{CA}, {L_CNT}\nv_mov_b32 v{CA+1}, 1")
    a("s_waitcnt lgkmcnt(0)")
    srd(a, sWS, 38, WS_BYTES)
    srd(a, sDB, 36, 256)
    a(f"""s_lshl_b32 s8, s5, 7
    s_lshl_b32 s9, s4, 2
    s_add_u32 s8, s8, s9
    s_add_u32 s8, s8, s3
    s_lshl_b32 s8, s8, 12
    s_lshl_b32 s9, s6, 11
    s_add_u32 s8, s8, s9
    s_add_u32 s60, s8, 262144
    s_lshl_b32 s77, s4, 4
    s_add_u32 s77, s77, s7
    s_lshl_b32 s77, s77, 2
    s_add_u32 s77, s77, s3
    s_lshl_b32 s77, s77, 8
    s_add_u32 s77, s77, {FL1}
    v_lshlrev_b32 v15, 4, v0""")
    a(f"""s_mul_i32 s66, s3, 3
    s_lshl_b32 s67, s4, 2
    s_add_u32 s66, s66, s67
    s_sub_u32 s66, s66, 8
    v_lshrrev_b32 v4, 1, v0
    v_add_u32 v4, s66, v4
    v_ashrrev_i32 v5, 31, v4
    v_mov_b32 v6, s67
    v_bfi_b32 v4, v5, v6, v4
    v_lshrrev_b32 v5, 2, v4
    v_lshlrev_b32 v5, 6, v5
    v_and_b32 v6, 3, v4
    v_and_b32 v7, 1, v0
    v_lshl_add_u32 v6, v7, 2, v6
    s_lshl_b32 s11, s5, 3
    v_add3_u32 v5, v5, v6, s11
    v_lshlrev_b32 v18, 8, v5""")
    a(f"s_cmp_eq_u32 s6, 1\ns_cbranch_scc1 {N}_V")
    def p1(swap):
        naddr = [XA + i for i in range(4)] + [WA, WA + 1]
        def rds(s):
            ks = s & 3; F = WR + 8 * ks
            o = [f"ds_read_b128 v[{XR+4*s}:{XR+4*s+3}], v{XA+ks}"]
            for nt in range(2):
                for h in range(2): o.append(f"ds_read_b64_tr_b16 v[{F+4*nt+2*h}:{F+4*nt+2*h+1}], v{WA+nt} offset:{16384+2048*ks+512*h}")
            return o
        a(f"s_barrier\ns_waitcnt vmcnt({6*(NGU-1)})")
        signal(a, 6); waitcnt_lds(a, 6, 4)
        if opt("p1st"): stamp(a, 1, True)
        stamp(a, 1)
        for x in rds(0) + rds(1): a(x)
        for s in range(32):
            ks = s & 3; c = s >> 2
            a(f"s_waitcnt lgkmcnt({5 if s < 31 else 0})")
            r = rds(s + 2) if s < 30 else []
            for nt in range(2):
                x = vr(XR + 4 * s, 4); w = vr(WR + 8 * ks + 4 * nt, 4); cc = vr(ACC + 16 * nt, 16)
                ci = "0" if s == 0 else cc
                a(f"{MF} {cc}, {w}, {x}, {ci}" if swap else f"{MF} {cc}, {x}, {w}, {ci}")
                if nt == 0 and ks == 2 and c < 7:
                    d = R[(c + 1) % 5] - R[c % 5]
                    for x_ in naddr: a(f"v_add_u32 v{x_}, {d}, v{x_}" if d > 0 else f"v_subrev_u32 v{x_}, {-d}, v{x_}")
                    if c == 5: a(f"buffer_load_dword v{NONCE}, off, s[{sDB}:{sDB+3}], 0 sc1")
                    if c + 1 < NGU:
                        a(f"s_waitcnt vmcnt({6*(NGU-2-c)})")
                        signal(a, 6); waitcnt_lds(a, 6, 4 * (c + 2))
                    else:
                        if opt("p1st"): stamp(a, c + 1, True)
                        if c < 6: a("s_barrier")
                for x_ in (r[:3] if nt == 0 else r[3:]): a(x_)
    p1(True)
    a(f"s_branch {N}_p1d")
    if opt("lpos", "end") == "mid": a.lines += l_lines
    a.label(f"{N}_V")
    p1(False)
    a.label(f"{N}_p1d")
    stamp(a, 2)
    a("s_waitcnt vmcnt(0)")
    get_nonce(a, "gm")
    a.nop(6)
    for nt in range(2):
        for i in range(8): a(f"v_cvt_pk_bf16_f32 v{PK+8*nt+i}, v{ACC+16*nt+2*i}, v{ACC+16*nt+2*i+1}")
        for h in range(2): a(f"buffer_store_dwordx4 v[{PK+8*nt+4*h}:{PK+8*nt+4*h+3}], v15, {W}, s{(8,60)[nt]} offen offset:{1024*h} sc1")
    signal(a, 0)
    a("""s_lshr_b32 s9, s3, 1
    s_lshl_b32 s9, s9, 3
    v_bfe_u32 v120, v0, 1, 3
    v_add_u32 v120, s9, v120
    v_cvt_f32_u32 v120, v120
    v_and_b32 v121, 1, v0
    v_lshrrev_b32 v6, 5, v0
    v_sub_u32 v121, v121, v6
    v_cvt_f32_i32 v121, v121
    v_mul_f32 v121, 0x3e800000, v121
    v_bfe_u32 v6, v0, 4, 1
    v_lshlrev_b32 v6, 9, v6
    s_lshl_b32 s9, s64, 2
    v_add_u32 v6, s9, v6
    v_cvt_f32_u32 v6, v6
    v_mul_f32 v122, 0x3a000000, v120
    v_fmac_f32 v121, v6, v122
    v_mul_f32 v120, 0x3d800000, v120""")
    for u in range(4):
        for p in range(4):
            c0 = (2 * p & 3) + 8 * (p >> 1)
            pre = "v_add_f32 v121, v121, v122\n" if (u and p == 0) else ""
            a(pre + f"v_fmamk_f32 v4, v120, {fhex(float(c0))}, v121\nv_add_f32 v5, v4, v120\nv_cos_f32 v4, v4\nv_cos_f32 v5, v5\ns_nop 0\nv_cvt_pk_bf16_f32 v{FP+4*u+p}, v4, v5")
    FLAGAT = int(opt("flagat", 8))
    if FLAGAT < 0:
        a(f"s_waitcnt vmcnt(0)\ns_mov_b64 exec, 1\nbuffer_store_dword v{NONCE}, off, {W}, s77 sc1\ns_mov_b64 exec, -1")
        stamp(a, 3)
    waitcnt_lds(a, 0, 8)
    KP = f"v_mov_b32 v19, 0\nbuffer_atomic_add v19, v18, {W}, s76 offen sc0 sc1"
    POLLAT = int(opt("pollat", 31))
    def qrd(s):
        F = WR + 4 * (s & 7)
        for h in range(2): a(f"ds_read_b64_tr_b16 v[{F+2*h}:{F+2*h+1}], v14 offset:{1024*s+256*h}")
    for s in range(6): qrd(s)
    for s in range(32):
        a(f"s_waitcnt lgkmcnt({2*min(5, 31-s)})")
        a(f"{MF} {vr(ACC,16)}, {vr(WR+4*(s&7),4)}, {vr(XR+4*s,4)}, {'0' if s == 0 else vr(ACC,16)}")
        if s + 6 < 32: qrd(s + 6)
        if s == FLAGAT:
            a(f"s_waitcnt vmcnt(0)\ns_mov_b64 exec, 1\nbuffer_store_dword v{NONCE}, off, {W}, s77 sc1\ns_mov_b64 exec, -1")
            stamp(a, 3)
        if s == POLLAT: a(f"s_mov_b32 s76, {FL1}\ns_mov_b64 exec, 63\n{KP}\ns_mov_b64 exec, -1")
    a(f"""s_lshl_b32 s9, s3, 10
    s_add_u32 s9, s9, {L_QB}
    v_add_u32 v4, s9, v15""")
    a.nop(9)
    for i in range(16): a(f"v_mul_f32 v{ACC+i}, {fhex(QSCALE)}, v{ACC+i}")
    for i in range(8): a(f"v_cvt_pk_bf16_f32 v{QA+i}, v{ACC+2*i}, v{ACC+2*i+1}")
    a(f"ds_write_b128 v4, v[{QB}:{QB+3}]")
    a("s_mov_b32 s15, 0\ns_mov_b64 exec, 63")
    a(f"gm_poll:\ns_add_u32 s15, s15, 1\ns_waitcnt vmcnt(0)\nv_cmp_ne_u32 vcc, s63, v19")
    a(f"s_cmp_gt_u32 s15, 0x40000\ns_cbranch_scc1 gm_polled\ns_cbranch_vccz gm_polled\ns_sleep {PSLEEP}")
    a(f"{KP}\ns_branch gm_poll")
    a("gm_polled:\ns_mov_b64 exec, -1")
    stamp(a, 4)
    a(f"s_mul_i32 s12, s3, 12288\ns_lshl_b32 s13, s7, 6")
    for t in range(3):
        a(f"s_add_u32 s11, s66, {t}\ns_cmp_lt_i32 s11, 0\ns_cselect_b32 s11, s67, s11\ns_add_u32 s11, s11, s13\ns_lshl_b32 s11, s11, 12")
        a(f"s_add_u32 m0, s12, {L_KV + 4096*t}\ns_nop 0")
        for i in range(4): a(f"buffer_load_dwordx4 v15, {W}, s11 offen offset:{1024*i} sc1 lds")
    att_setup(a)
    a(f"""s_lshl_b32 s9, s74, 1
    s_lshr_b32 s10, s3, 1
    s_add_u32 s9, s9, s10
    s_sub_u32 s10, 15, s9
    s_min_u32 s10, s10, s9
    v_and_b32 v5, 1, v0
    v_add_u32 v5, s10, v5
    v_and_b32 v5, 7, v5
    v_lshrrev_b32 v6, 1, v0
    v_lshl_add_u32 v5, v6, 3, v5
    v_lshlrev_b32 v18, 8, v5
    s_and_b32 s79, s3, 1
    s_lshl_b32 s79, s79, 15
    s_add_u32 s79, s79, {FL3}""")
    for i in range(0, 16, 2): a(f"v_mov_b64 v[{CN+i}:{CN+i+1}], 0")
    a(f"s_lshl_b32 s77, s64, 3\ns_add_u32 s77, s77, s65\ns_lshl_b32 s77, s77, 8\ns_lshl_b32 s9, s3, 2\ns_add_u32 s77, s77, s9\ns_add_u32 s77, s77, {FL3}")
    a(f"""v_lshrrev_b32 v4, 5, v0
    v_lshlrev_b32 v3, 12, v4
    v_bfe_u32 v5, v0, 4, 1
    v_lshl_add_u32 v3, v5, 9, v3
    v_and_b32 v6, 15, v0
    v_lshl_add_u32 v3, v6, 4, v3
    s_lshr_b32 s10, s3, 1
    s_and_b32 s9, s3, 1
    s_lshl_b32 s9, s9, 8
    s_add_u32 s11, s9, {L_ZX}
    v_add_u32 v3, s11, v3
    v_lshrrev_b32 v4, 4, v0
    v_mul_u32_u24 v4, {2*32*TP}, v4
    v_lshl_add_u32 v5, v6, 4, v4
    s_lshl_b32 s11, s65, 9
    s_add_u32 s9, s9, s11
    v_add_u32 v5, s9, v5
    s_mul_i32 s10, s10, {8*32*TP}
    s_mul_i32 s11, s64, {TP}
    s_add_u32 s10, s10, s11
    s_add_u32 s10, s10, {TF}
    s_add_u32 s11, s10, {32*TP}""")
    for i in range(0, 16, 2): a(f"v_mov_b64 v[{ZB+i}:{ZB+i+1}], 0")
    waitcnt_lds(a, 2, 4)
    a("s_cmp_eq_u32 s9, 0\ns_cselect_b32 exec_hi, 0xfffefffe, -1")
    def step1():
        for u in range(4): a(f"{MF16} {vr(ACC+4*u,4)}, {vr(FP+4*u,4)}, {vr(ZB+4*u,4)}, 0")
        a.nop(5)
        for r2 in range(2):
            for u in range(4): a(f"v_cvt_pk_bf16_f32 v{PK+4*r2+u}, v{ACC+4*u+2*r2}, v{ACC+4*u+2*r2+1}")
    for u in range(4): a(f"ds_read_b128 v[{ZB+4*u}:{ZB+4*u+3}], v3 offset:{1024*u}")
    a("s_waitcnt lgkmcnt(0)\ns_mov_b64 exec, -1")
    step1()
    a(f"buffer_store_dwordx4 v[{PK}:{PK+3}], v5, {W}, s10 offen sc1\nbuffer_store_dwordx4 v[{PK+4}:{PK+7}], v5, {W}, s11 offen sc1")
    a("s_waitcnt vmcnt(2)")
    signal(a, 3)
    a(f"s_cmp_lg_u32 s9, 0\ns_cbranch_scc1 {N}_nsp")
    a("s_mov_b32 exec_hi, 0")
    for u in range(4): a(f"ds_read_b128 v[{ZB+4*u}:{ZB+4*u+3}], v3 offset:{4096+1024*u}")
    a("s_mov_b64 exec, -1\nv_add_u32 v6, 4096, v4\ns_waitcnt lgkmcnt(0)")
    step1()
    a("s_mov_b32 exec_lo, 0x00010001\ns_mov_b32 exec_hi, 0x00010001")
    a(f"buffer_store_dwordx4 v[{PK}:{PK+3}], v6, {W}, s10 offen sc1\nbuffer_store_dwordx4 v[{PK+4}:{PK+7}], v6, {W}, s11 offen sc1")
    a("s_mov_b64 exec, -1")
    a.label(f"{N}_nsp")
    waitcnt_lds(a, 3, 4)

    a.label("att_body2")
    stamp(a, 5)
    q = vr(QA, 4); cn = vr(CN, 16); o = vr(O, 16); m = 3
    kslot = {8: 0, 0: 1}; vslot = {8: 0, 0: 1}
    for n in range(7): kslot[7 - n] = (2 + n) & 3; vslot[7 - n] = (2 + n) & 3
    kf = lambda j: vr(KRG + 4 * kslot[j], 4)
    vf = lambda j, ks: vr(VB + 8 * vslot[j] + 4 * ks, 4)
    def krd(j): a(f"ds_read_b128 {kf(j)}, v{AK} offset:{4096*j}")
    def vrd(js):
        a("s_mov_b64 exec, s[12:13]")
        for j in js:
            for ks in range(2): a(f"ds_read_b128 {vf(j,ks)}, v{AV} offset:{4096*j+2048+1024*ks}")
        a("s_mov_b64 exec, -1")
    def wo_dma():
        a(f"s_add_u32 m0, s75, s8\ns_lshl_b32 s9, s75, 3\nbuffer_load_dwordx4 v13, s[{sOUT}:{sOUT+3}], s9 offen lds\ns_add_u32 s75, s75, 1024")
    TPL = f"s_mov_b32 exec_hi, 0\nbuffer_load_dwordx4 v[24:27], v18, {W}, s79 offen sc1\ns_mov_b64 exec, -1"
    TCHK = "s_mov_b32 exec_hi, 0\nv_xor_b32 v24, s63, v24\nv_xor_b32 v25, s63, v25\nv_xor_b32 v26, s63, v26\nv_xor_b32 v27, s63, v27\nv_or3_b32 v24, v24, v25, v26\nv_or_b32 v24, v24, v27\nv_cmp_ne_u32 vcc, 0, v24\ns_mov_b64 exec, -1"
    a(f"""s_mov_b32 s12, 0xffff
    s_mov_b32 s13, 0xffff
    s_mov_b32 s15, 0
    s_lshl_b32 s8, s3, 13
    s_add_u32 s8, s8, {R[3]}""")
    a.label("att_retry")
    for j in (8, 0, 7, 6): krd(j)
    vrd((8, 0, 7))
    PR = opt("prio", "a")
    if PR == "a": a("s_setprio 3")
    if PR == "b": a("s_cmp_lt_u32 s3, 4\ns_cbranch_scc1 att_np\ns_setprio 1\natt_np:")
    a("s_waitcnt lgkmcnt(7)\ns_nop 0")
    a(f"{MF} {vr(SB,16)}, {kf(8)}, {q}, {cn}")
    a(f"{MF} {vr(SC_,16)}, {kf(0)}, {q}, {cn}")
    a(f"{MF} {vr(SA,16)}, {kf(7)}, {q}, {cn}")
    wo_dma()
    a("s_cmp_lg_u32 s61, 9")
    a.nop(5)
    a("s_cbranch_scc1 att_no0a")
    for i in range(16): a(f"v_bfi_b32 v{SB+i}, v{TM+i}, v{SC_+i}, v{SB+i}")
    a.label("att_no0a")
    for i in range(16): a(f"v_exp_f32 v{SB+i}, v{SB+i}")
    for i in range(8): a(f"v_cvt_pk_bf16_f32 v{P+i}, v{SB+2*i}, v{SB+2*i+1}")
    for i in range(8): a(f"v_and_b32 v{P+8+i}, v{PM+i}, v{P+i}")
    for i in range(8): a(f"v_xor_b32 v{P+i}, v{P+8+i}, v{P+i}")
    a("s_waitcnt lgkmcnt(0)\ns_cmp_lg_u32 s61, 9")
    a(f"{MF} {o}, {vf(8,0)}, {vr(P,4)}, 0")
    a(f"{MF} {o}, {vf(8,1)}, {vr(P+4,4)}, {o}")
    a("s_cbranch_scc1 att_no0b")
    a(f"{MF} {o}, {vf(0,0)}, {vr(P+8,4)}, {o}")
    a(f"{MF} {o}, {vf(0,1)}, {vr(P+12,4)}, {o}")
    a.label("att_no0b")
    a("s_cmp_ge_u32 s3, 4\ns_cbranch_scc1 att_nof3")
    a(f"v_mov_b32 v4, s63\ns_waitcnt vmcnt(1)\ns_mov_b64 exec, 1\nbuffer_store_dword v4, off, {W}, s77 sc1\ns_mov_b64 exec, -1")
    a.label("att_nof3")
    a("s_cmp_eq_u32 s61, 1\ns_cbranch_scc1 att_done")
    S = [SA, SB]
    for n in range(7):
        j = 7 - n
        s = S[n & 1]; p = P + 8 * (n & 1)
        if PR == "a" and n in (1, 3, 5): a(f"s_setprio {2 - n // 2}")
        if PR == "c" : a(f"s_setprio {(3,2,2,1,1,0,0)[n]}")
        if n < 6:
            a(f"{MF} {vr(S[(n+1)&1],16)}, {kf(j-1)}, {q}, {cn}")
            if n < 5: krd(j - 2)
            vrd((j - 1,))
        if n < 3 and (not opt('wo1')): wo_dma()
        for i in range(8): a(f"v_exp_f32 v{s+i}, v{s+i}")
        for i in range(4): a(f"v_cvt_pk_bf16_f32 v{p+i}, v{s+2*i}, v{s+2*i+1}")
        for i in range(8, 10): a(f"v_exp_f32 v{s+i}, v{s+i}")
        a(f"{MF} {o}, {vf(j,0)}, {vr(p,4)}, {o}")
        if n < 4 or not (not opt('wo1')): wo_dma()
        for i in range(10, 16): a(f"v_exp_f32 v{s+i}, v{s+i}")
        for i in range(4, 8): a(f"v_cvt_pk_bf16_f32 v{p+i}, v{s+2*i}, v{s+2*i+1}")
        a(f"s_cmp_eq_u32 s61, {n+2}\ns_waitcnt lgkmcnt(0)")
        a(f"{MF} {o}, {vf(j,1)}, {vr(p+4,4)}, {o}")
        if n < 6 and not opt("nobr"): a("s_cbranch_scc1 att_done")
    a.label("att_done")
    a(f"s_nop 0\ns_mov_b32 s14, {fhex(0.0 if FORCEFB else 2.0**90)}\nv_mov_b32 v6, 0")
    a(f"""s_lshl_b32 s101, s3, 3
    s_bfe_u32 s9, s4, 0x10003
    s_lshl_b32 s9, s9, 2
    s_add_u32 s101, s101, s9
    s_and_b32 s9, s7, 3
    s_add_u32 s101, s101, s9
    s_lshl_b32 s101, s101, 8
    s_add_u32 s101, s101, {FL2}""")
    a.nop(1)
    a(f"v_rcp_f32 v4, v{O+8}\nv_mov_b32 v7, v{O+8}")
    for i in range(8): a(f"v_fmac_f32 v7, v{O+i}, v6")
    a(f"v_fmamk_f32 v7, v4, {fhex(2.0**50)}, v7\nv_cmp_nge_f32 vcc, s14, v7\ns_cbranch_vccnz att_fb")
    a.label("att_fin")
    for i in range(8): a(f"v_mul_f32 v{O+i}, v{O+i}, v4")
    for i in range(4): a(f"v_cvt_pk_bf16_f32 v{P+i}, v{O+2*i}, v{O+2*i+1}")
    a(f"ds_write_b128 v{AO}, v[{P}:{P+3}]")
    stamp(a, 6)
    a.label("att_wo")
    a("s_cmp_ge_u32 s75, 8192\ns_cbranch_scc1 att_wo2")
    wo_dma()
    a("s_branch att_wo")
    a.label("att_wo2")
    a(f"s_setprio 0\nv_mov_b32 v4, 1\ns_waitcnt vmcnt(0)\ns_cmp_lt_u32 s3, 4\ns_cbranch_scc0 att_nt\n{TPL}\natt_nt:")
    a(f"s_waitcnt lgkmcnt(0)\ns_barrier\nds_read_b128 v[{P}:{P+3}], v{AR}\ns_waitcnt lgkmcnt(0)")
    a(f"buffer_store_dwordx4 v[{P}:{P+3}], v12, {W}, s62 offen sc1")
    def flag2(n): a(f"s_waitcnt vmcnt({n})\ns_mov_b64 exec, 1\nbuffer_atomic_add v4, off, {W}, s101 sc1\ns_mov_b64 exec, -1")
    a("s_cmp_lt_u32 s3, 4\ns_cbranch_scc1 out_comp")
    a(f"""s_sub_u32 s60, s3, 4
    s_lshr_b32 s9, s72, 1
    s_lshl_b32 s9, s9, 3
    s_lshl_b32 s10, s73, 2
    s_add_u32 s9, s9, s10
    s_add_u32 s9, s9, s60
    s_lshl_b32 s9, s9, 8
    s_add_u32 s9, s9, {FL2}
    s_mul_i32 s8, s72, {OP}
    s_lshl_b32 s10, s73, 16
    s_add_u32 s8, s8, s10
    s_lshl_b32 s10, s60, 12
    s_add_u32 s8, s8, s10
    s_add_u32 s8, s8, {OF}
    s_mov_b32 s15, 0""")
    flag2(0)
    a("s_mov_b64 exec, 1")
    PA = lambda r: f"v_mov_b32 v{r}, 0\nbuffer_atomic_add v{r}, off, {W}, s9 sc0 sc1"
    if opt("pp"):
        g = int(opt("pp"))
        a(f"{PA(6)}\ns_sleep {g}\no_poll:")
        for x, y in ((7, 6), (6, 7)):
            a(f"{PA(x)}\ns_waitcnt vmcnt(1)\nv_cmp_gt_u32 vcc, 32, v{y}\ns_add_u32 s15, s15, 1\ns_cbranch_vccz o_polled")
        a("s_cmp_lt_u32 s15, 0x80000\ns_cbranch_scc1 o_poll")
    else:
        a(f"o_poll:\n{PA(6)}\ns_add_u32 s15, s15, 1\ns_waitcnt vmcnt(0)\nv_cmp_gt_u32 vcc, 32, v6")
        a(f"s_cmp_gt_u32 s15, 0x40000\ns_cbranch_scc1 o_polled\ns_cbranch_vccz o_polled\ns_sleep {int(opt('psleep2', 0))}\ns_branch o_poll")
    a("o_polled:\ns_mov_b64 exec, -1")
    stamp(a, 7)
    def oissue(c):
        a(f"s_add_u32 m0, s10, {R[1] + 16384*c}")
        a("s_add_u32 s8, s8, 16384" if c else "s_nop 0")
        for i in range(4): a(f"buffer_load_dwordx4 v14, {W}, s8 offen offset:{1024*i} sc1 lds")
    OS_ = eval(opt("osched", "[[0,1],[2],[3],[]]"))
    ni = 0
    for c in range(4):
        for u in OS_[c]: oissue(u); ni += 1
        a(f"s_waitcnt vmcnt({4*(ni-c-1)})\ns_barrier")
    stamp_out(a, 0)
    a("s_endpgm")
    AB, AY, FR = 64, 80, 192
    a.label("out_comp")
    a("s_lshr_b32 s66, s3, 1\ns_and_b32 s67, s3, 1")
    srd(a, sOUT, 34, 2048 * 512 * 2)
    a(f"""v_and_b32 v1, 31, v0
    v_lshrrev_b32 v2, 5, v0
    s_lshl_b32 s9, s67, 5
    s_lshl_b32 s10, s73, 6
    s_add_u32 s9, s9, s10
    v_add_u32 v3, s9, v1
    v_bfe_u32 v9, v0, 3, 2
    v_lshlrev_b32 v6, 9, v9
    v_and_b32 v9, 1, v9
    v_xor_b32 v9, v9, v2
    v_lshl_add_u32 v6, v9, 7, v6
    v_and_b32 v9, 7, v0
    v_lshl_add_u32 v6, v9, 4, v6
    s_lshl_b32 s9, s67, 11
    s_add_u32 s9, s9, {R[1]}
    v_add_u32 v6, s9, v6
    v_bfe_u32 v9, v0, 2, 2
    v_lshl_add_u32 v7, v2, 2, v9
    v_lshlrev_b32 v7, 7, v7
    v_lshrrev_b32 v9, 1, v9
    v_xor_b32 v9, s66, v9
    v_lshl_add_u32 v7, v9, 6, v7
    v_and_b32 v9, 1, v0
    v_lshl_add_u32 v7, v9, 5, v7
    v_bfe_u32 v9, v0, 4, 1
    v_lshl_add_u32 v7, v9, 4, v7
    v_bfe_u32 v9, v0, 1, 1
    v_lshl_add_u32 v7, v9, 3, v7
    v_add_u32 v7, {R[3]}, v7
    v_bfe_u32 v9, v0, 2, 1
    v_lshlrev_b32 v8, 4, v9
    v_and_b32 v9, 3, v0
    v_add_u32 v8, v8, v9
    v_bfe_u32 v9, v0, 3, 2
    v_lshl_add_u32 v8, v9, 2, v8
    s_lshl_b32 s9, s66, 5
    s_lshl_b32 s10, s74, 6
    s_add_u32 s9, s9, s10
    v_add_u32 v8, s9, v8
    v_sub_u32 v9, 512, v8
    s_sub_u32 s12, 16, s72
    s_and_b32 s12, s12, 15
    s_cmp_ge_u32 s74, 4
    s_cselect_b32 s12, s12, s72
    s_cselect_b32 s13, -1, 0
    v_bfi_b32 v8, s13, v9, v8
    v_lshlrev_b32 v8, 4, v8
    v_mul_u32_u24 v9, {TP}, v2
    v_add_u32 v8, v8, v9
    s_lshl_b32 s12, s12, 1
    s_add_u32 s12, s12, s67
    s_mul_i32 s12, s12, {16*TP}
    s_add_u32 s12, s12, {TF}
    s_lshl_b32 s9, s3, 12
    v_add_u32 v29, s9, v14
    v_xor_b32 v30, 4096, v29
    v_lshlrev_b32 v28, 14, v3
    v_lshl_add_u32 v28, v2, 5, v28
    s_lshl_b32 s14, s72, 10
    s_lshl_b32 s10, s74, 7
    s_add_u32 s14, s14, s10
    s_lshl_b32 s10, s66, 6
    s_add_u32 s14, s14, s10
    v_lshlrev_b32 v5, 2, v3
    s_lshl_b32 s11, s72, 9
    s_add_u32 s11, s11, {GF}
    s_mov_b32 s15, 0""")
    ab = vr(AB, 16); ay = vr(AY, 16)
    AZ = 224
    FG0 = len(a.lines)
    a("""s_cmp_eq_u32 s72, 0
    s_cselect_b32 s9, 1, 0
    s_add_u32 s9, s9, 127
    s_lshl_b32 s10, s67, 4
    v_add_u32 v15, s10, v2
    v_cvt_f32_u32 v15, v15
    v_mul_f32 v15, 4.0, v15""")
    a("""s_sub_u32 s77, 0, s67
    s_xor_b32 s77, s77, s13
    s_and_b32 s77, s77, 0x80008000
    v_sub_u32 v10, s9, v3
    v_and_b32 v10, 127, v10
    v_bfi_b32 v10, s13, v10, v3
    v_cvt_f32_u32 v10, v10
    v_mul_f32 v10, 0x3c000000, v10
    v_mul_f32 v11, v15, v10
    v_mul_f32 v12, 0x41000000, v10
    v_cos_f32 v12, v12
    s_nop 0
    v_add_f32 v12, v12, v12""")
    WF = [96 + 4 * k for k in range(24)] + [32 + 4 * k for k in range(8)]
    early = [h for h in range(32) if 128 <= WF[h] < 160 or 36 <= WF[h] < 48] if opt("ewo", "1") == "1" else []
    eq = list(early)
    def word(h):
        a(f"ds_read_b64_tr_b16 v[{WF[h]}:{WF[h]+1}], v7 offset:{2048*h}")
        a(f"ds_read_b64_tr_b16 v[{WF[h]+2}:{WF[h]+3}], v7 offset:{2048*h+1024}")
    for k in range(8):
        r = 112 + 8 * (k & 1); o_ = 112 + 8 * (1 - (k & 1))
        for u in range(4):
            x, y = r + 2 * u, r + 2 * u + 1
            if k < 2: a(f"v_fmamk_f32 v13, v10, {fhex(float(8*k+u))}, v11\nv_cos_f32 v{x}, v13\nv_sin_f32 v{y}, v13\ns_nop 0")
            else: a(f"v_fma_f32 v{x}, v12, v{o_+2*u}, -v{x}\nv_fma_f32 v{y}, v12, v{o_+2*u+1}, -v{y}")
            a(f"v_cvt_pk_bf16_f32 v{FREG[k]+u}, v{x}, v{y}")
            d = FREG[8 + k] + u
            if u == 0: a(f"v_mov_b32 v{d}, v{FREG[k]}")
            if u == 2: a(f"v_xor_b32 v{d}, 0x80008000, v{FREG[k]+2}")
            if u == 1: a(f"v_cvt_pk_bf16_f32 v{d}, -v{y}, v{x}\nv_xor_b32 v{d}, s77, v{d}")
            if u == 3: a(f"v_cvt_pk_bf16_f32 v{d}, v{y}, -v{x}\nv_xor_b32 v{d}, s77, v{d}")
            if (u & 1) and eq: word(eq.pop(0))
    fgl = a.lines[FG0:]; del a.lines[FG0:]
    FCUT = int(opt("fcut", 70))
    a.lines += fgl[:FCUT]
    flag2(0)
    stamp(a, 7)
    a(f"t_poll:\n{TCHK}")
    a(f"s_add_u32 s15, s15, 1\ns_cmp_gt_u32 s15, 0x40000\ns_cbranch_scc1 t_polled\ns_cbranch_vccz t_polled\ns_sleep {int(opt('psleep3', 8))}\n{TPL}\ns_waitcnt vmcnt(0)\ns_branch t_poll\nt_polled:")
    for k in range(8):
        a(f"buffer_load_dwordx4 v[{FR+4*k}:{FR+4*k+3}], v8, {W}, s12 offen sc1")
        if k < 7: a(f"s_add_u32 s12, s12, {2*TP}")
    a.lines += fgl[FCUT:]
    az = vr(AZ, 16)
    for k in range(8):
        a(f"s_waitcnt vmcnt({7-k})")
        a(f"{MF} {az}, {vr(FR+4*k,4)}, {vr(FREG[8+k],4)}, {'0' if k == 0 else az}")
        a(f"{MF} {ay}, {vr(FR+4*k,4)}, {vr(FREG[k],4)}, {'0' if k == 0 else ay}")
    for h in range(32):
        if h not in early: word(h)
    for i in range(4): a(f"ds_write_b128 v29, v[{AZ+4*i}:{AZ+4*i+3}] offset:{R[0]+1024*i}")
    a("s_waitcnt lgkmcnt(0)")
    def ords(c):
        for h in range(8): a(f"ds_read_b128 v[{FR+32*(c&1)+4*h}:{FR+32*(c&1)+4*h+3}], v6 offset:{16384*c+4096*(h>>1)+256*(h&1)}")
    SPL = int(opt("spl", 3))
    a("s_barrier")
    ords(0)
    a(f"buffer_load_dword v24, v5, {W}, s11 offen sc1")
    for c in range(4):
        for h in range(8):
            if h <= SPL: a(f"s_waitcnt lgkmcnt({7-h if h < SPL else 0})")
            a(f"{MF} {ab}, {vr(WF[8*c+h],4)}, {vr(FR+32*(c&1)+4*h,4)}, {'0' if c + h == 0 else ab}")
            if h == SPL and c < 3:
                a("s_barrier")
                if c == 1:
                    for i in range(4): a(f"ds_read_b128 v[{96+4*i}:{96+4*i+3}], v30 offset:{R[0]+1024*i}")
                ords(c + 1)
            if c == 3 and h < 4:
                for i in range(4 * h, 4 * h + 4): a(f"v_add_f32 v{AY+i}, v{AY+i}, v{96+i}")
            if c == 3 and h == 4: a("s_waitcnt vmcnt(0)\nv_sub_f32 v25, 1.0, v24")
            if c == 3 and 4 <= h:
                for i in range(4 * (h - 4), 4 * (h - 3)): a(f"v_mul_f32 v{AY+i}, v{AY+i}, v24")
    a.nop(8)
    for i in range(16): a(f"v_fmac_f32 v{AY+i}, v{AB+i}, v25")
    for i in range(8): a(f"v_cvt_pk_bf16_f32 v{FR+i}, v{AY+2*i}, v{AY+2*i+1}")
    a(f"buffer_store_dwordx4 v[{FR}:{FR+3}], v28, s[{sOUT}:{sOUT+3}], s14 offen")
    a(f"buffer_store_dwordx4 v[{FR+4}:{FR+7}], v28, s[{sOUT}:{sOUT+3}], s14 offen offset:16")
    stamp_out(a, 0)
    a("s_endpgm")
    a.label("att_fb")
    a("s_cmp_lg_u32 s15, 0\ns_cbranch_scc1 att_fin\ns_mov_b32 s15, 1\ns_mov_b32 s75, 0\ns_mov_b32 s14, 0xff800000\nv_mov_b32 v3, s14")
    def fbtile(j, mask):
        a(f"ds_read_b128 {vr(KRG,4)}, v{AK} offset:{4096*j}\ns_waitcnt lgkmcnt(0)")
        a(f"{MF} {vr(SA,16)}, {vr(KRG,4)}, {q}, 0")
        a.nop(12)
        if mask == 8:
            for i in range(16): a(f"v_bfi_b32 v{SA+i}, v{TM+i}, s14, v{SA+i}")
        if mask == 0:
            for i in range(16): a(f"v_bfi_b32 v{SA+i}, v{TM+i}, v{SA+i}, s14")
        for i in range(8): a(f"v_max3_f32 v{m}, v{m}, v{SA+2*i}, v{SA+2*i+1}")
    fbtile(8, 8)
    for n in range(8):
        a(f"s_cmp_eq_u32 s61, {n+1}\ns_cbranch_scc1 att_fb2")
        fbtile(7 - n, 0 if n == 7 else None)
    a.label("att_fb2")
    a(f"v_mov_b32 v4, v{m}\ns_nop 1\nv_permlane32_swap_b32 v4, v{m}\ns_nop 0\nv_max_f32 v{m}, v4, v{m}")
    a(f"v_sub_f32 v{CN}, 0, v{m}\nv_sub_f32 v{CN+1}, 0, v{m}")
    for i in range(2, 16, 2): a(f"v_mov_b64 v[{CN+i}:{CN+i+1}], v[{CN}:{CN+1}]")
    a("s_branch att_retry")
    if opt("lpos", "end") == "end": a.lines += l_lines

def desc(name, nv):
    return f""".p2align 6
.amdhsa_kernel {name}
  .amdhsa_next_free_vgpr {nv}
  .amdhsa_next_free_sgpr 102
  .amdhsa_accum_offset {(nv+3)//4*4}
  .amdhsa_group_segment_fixed_size 0
  .amdhsa_kernarg_size 96
  .amdhsa_user_sgpr_count 2
  .amdhsa_user_sgpr_kernarg_segment_ptr 1
  .amdhsa_system_sgpr_workgroup_id_x 1
.end_amdhsa_kernel
"""

a = Asm()
ka(a)
for m in check_hazards(a.lines): print("HAZARD", m, file=sys.stderr)
hdr = """; out = g*Re(DFT_seq(DFT_hid(x))) + (1-g)*(sliding-window attention(x) @ wo), one persistent launch, 256 workgroups of 8 waves.
"""
hdr += "; @launch grid=(256,1,1) block=(512,1,1) lds=163840\n"
hdr += f'.amdgcn_target "amdgcn-amd-amdhsa--gfx950"\n.text\n.globl {NAME}\n.type {NAME},@function\n'
out = hdr + a.text() + '.section .rodata,"a"\n' + desc(NAME, 256)
fn = [x for x in sys.argv[1:] if not x.startswith("--")][0]
open(fn, "w").write(out)
```

```python
import sys, math
from asmlib import *

def opt(name, default=None):
    for x in sys.argv:
        if x == "--" + name: return True
        if x.startswith("--" + name + "="): return x.split("=", 1)[1]
    return default
STAMP = opt("stamp", False)
STAG = int(opt("stag", 4))
PSLEEP = int(opt("psleep", 0))
FORCEFB = opt("forcefb", False)
KVB, TF, OF, GF, FL1, FL2, FL3 = 0x000000, 0x400000, 0x700000, 0xA00000, 0xA80000, 0xB00000, 0xB80000
STF = 0xC00000
WS_BYTES = 0x1000000
TP = 4224
OP = 131072 + 1024
MF = "v_mfma_f32_32x32x16_bf16"
MF16 = "v_mfma_f32_16x16x32_bf16"
QSCALE = 0.25 * math.log2(math.e)
sX, sW, sWS, sG, sDB, sOUT = 40, 44, 48, 52, 56, 68
NAME = 'gated_mix__spectral_fnet__sliding_block__prompt_kernel'
W = f"s[{sWS}:{sWS+3}]"
R = [32768 * i for i in range(5)]
L_KV, L_QB, L_ZX, L_OS = R[1], R[2] + 16384, R[2] + 20480, R[0] + 16384

def srd(a, d, ptr, nbytes):
    a(f"s_mov_b32 s{d}, s{ptr}\ns_mov_b32 s{d+1}, s{ptr+1}\ns_mov_b32 s{d+2}, {nbytes}\ns_mov_b32 s{d+3}, 0x00020000")

def entry(a, name):
    a(f".p2align 12\n{name}:")
    stamp(a, 0)
    a("s_load_dwordx16 s[16:31], s[0:1], 0")
    a("s_load_dwordx8 s[32:39], s[0:1], 64")
    a(f"s_cmp_ge_u32 s2, 256\ns_cbranch_scc1 {name}_end")
    a("v_lshrrev_b32 v1, 6, v0\nv_and_b32 v0, 63, v0\nv_readfirstlane_b32 s3, v1")

def stamp(a, i, p1=False):
    if opt("p1st") and i and not p1: return
    if STAMP: a(f"s_memrealtime s[{80+2*i}:{81+2*i}]")

def stamp_out(a, kidx):
    if not STAMP: return
    a("s_memrealtime s[96:97]\ns_waitcnt vmcnt(0) lgkmcnt(0)\ns_memrealtime s[98:99]\ns_waitcnt lgkmcnt(0)")
    a(f"s_lshl_b32 s78, s2, 3\ns_add_u32 s78, s78, s3\ns_lshl_b32 s78, s78, 7\ns_add_u32 s78, s78, {STF + kidx * 262144}")
    a("s_mov_b64 exec, 1")
    for i in range(20): a(f"v_mov_b32 v{4+i}, s{80+i}")
    a("v_mov_b32 v2, s78")
    for i in range(5): a(f"buffer_store_dwordx4 v[{4+4*i}:{7+4*i}], v2, {W}, 0 offen offset:{16*i}")

QA, QB = 20, 24
TM, PM, VB, KRG, SA, SB, SC_, CN, P, O = 192, 208, 216, 144, 64, 80, 128, 112, 32, 128
GX = 248
FREG = [160 + 4 * k for k in range(8)] + [96 + 4 * k for k in range(4)] + [48 + 4 * k for k in range(4)]
AK, AV, AO, AR = 8, 9, 10, 11
NONCE = 16

def att_setup(a):
    a("""v_and_b32 v2, 31, v0
    v_lshrrev_b32 v3, 5, v0
    v_lshlrev_b32 v4, v2, -2
    v_lshlrev_b32 v5, 2, v3
    v_lshrrev_b32 v4, v5, v4
    s_mov_b32 s13, 0xffff""")
    for r in range(16): a(f"v_bfe_i32 v{TM+r}, v4, {(r & 3) + 8 * (r >> 2)}, 1")
    for p in range(8): a(f"v_bfi_b32 v{PM+p}, s13, v{TM+2*p}, v{TM+2*p+1}")
    a(f"v_mov_b32 v{VB}, 0x3f803f80\nv_mov_b32 v{VB+1}, v{VB}")
    for i in range(2, 32, 2): a(f"v_mov_b64 v[{VB+i}:{VB+i+1}], v[{VB}:{VB+1}]")
    a(f"""s_and_b32 s9, s3, 3
    s_lshr_b32 s10, s3, 2
    s_lshl_b32 s11, s9, 12
    s_add_u32 s11, s11, {L_KV}
    s_lshl_b32 s12, s10, 10
    s_add_u32 s12, s12, s11
    v_lshlrev_b32 v4, 4, v0
    v_add_u32 v{AK}, s12, v4
    s_lshl_b32 s12, s10, 8
    s_add_u32 s12, s12, s11
    v_add_u32 v{AV}, s12, v4
    v_and_b32 v5, 15, v0
    v_mul_u32_u24 v5, 528, v5
    s_and_b32 s12, s4, 1
    v_xor_b32 v6, s12, v3
    v_lshl_add_u32 v5, v6, 7, v5
    v_bfe_u32 v6, v0, 4, 1
    v_lshl_add_u32 v5, v6, 4, v5
    s_lshl_b32 s12, s10, 8
    s_lshl_b32 s11, s9, 5
    s_add_u32 s12, s12, s11
    s_add_u32 s12, s12, {L_OS}
    v_add_u32 v{AO}, s12, v5
    s_mul_i32 s12, s3, 1056
    s_add_u32 s12, s12, {L_OS}
    v_mul_u32_u24 v5, 528, v3
    v_lshl_add_u32 v5, v2, 4, v5
    v_add_u32 v{AR}, s12, v5
    v_mul_u32_u24 v5, {OP}, v3
    v_lshl_add_u32 v12, v2, 4, v5""")
    a(f"""s_lshl_b32 s61, s4, 2
    s_add_u32 s61, s61, s9
    s_add_u32 s61, s61, 1
    s_min_u32 s61, s61, 9
    s_mul_i32 s62, s3, {2*OP}
    s_lshr_b32 s11, s4, 3
    s_lshl_b32 s11, s11, 16
    s_add_u32 s62, s62, s11
    s_lshl_b32 s11, s7, 12
    s_add_u32 s62, s62, s11
    s_and_b32 s11, s4, 7
    s_lshl_b32 s11, s11, 9
    s_add_u32 s62, s62, s11
    s_add_u32 s62, s62, {OF}""")
    a("""s_and_b32 s72, s2, 7
    s_lshl_b32 s72, s72, 1
    s_bfe_u32 s11, s2, 0x10003
    s_add_u32 s72, s72, s11
    s_bfe_u32 s73, s2, 0x10004
    s_lshr_b32 s74, s2, 5
    s_mov_b32 s75, 0
    v_lshlrev_b32 v14, 4, v0
    v_lshrrev_b32 v4, 3, v0
    v_lshlrev_b32 v4, 10, v4
    v_bfe_u32 v5, v0, 2, 1
    v_bfe_u32 v6, v0, 4, 1
    v_xor_b32 v5, v5, v6
    v_lshl_add_u32 v4, v5, 6, v4
    v_and_b32 v5, 3, v0
    v_lshl_add_u32 v4, v5, 4, v4
    s_lshl_b32 s11, s3, 16
    s_lshl_b32 s12, s74, 7
    s_add_u32 s11, s11, s12
    v_add_u32 v13, s11, v4""")
    srd(a, sOUT, 30, 512 * 512 * 2)

L_CNT = R[2] + 32512
def signal(a, k):
    a(f"s_mov_b64 exec, 1\nds_add_u32 v{CA}, v{CA+1} offset:{4*k}\ns_mov_b64 exec, -1")
_wn = [0]
def waitcnt_lds(a, k, n):
    _wn[0] += 1; t = f"lw{_wn[0]}"
    if opt("lsleep"):
        a(f"s_branch {t}e\n{t}:\ns_sleep {int(opt('lsleep'))}\n{t}e:\nds_read_b32 v{CA+2}, v{CA} offset:{4*k}\ns_waitcnt lgkmcnt(0)\nv_readfirstlane_b32 s78, v{CA+2}\ns_cmp_lt_u32 s78, {n}\ns_cbranch_scc1 {t}")
    else:
        a(f"{t}:\nds_read_b32 v{CA+2}, v{CA} offset:{4*k}\ns_waitcnt lgkmcnt(0)\nv_readfirstlane_b32 s78, v{CA+2}\ns_cmp_lt_u32 s78, {n}\ns_cbranch_scc1 {t}")
CA = 28

def get_nonce(a, tag, NONCE=None):
    NONCE = NONCE or (127 if tag == "ln" else 16)
    a("s_mov_b32 s15, 0")
    a(f"{tag}_n0:\nv_readfirstlane_b32 s63, v{NONCE}\ns_add_u32 s15, s15, 1\ns_cmp_lg_u32 s63, 0\ns_cbranch_scc1 {tag}_n1")
    a(f"s_cmp_gt_u32 s15, 0x40000\ns_cbranch_scc1 {tag}_n1\ns_sleep 2\nbuffer_load_dword v{NONCE}, off, s[{sDB}:{sDB+3}], 0 sc1\ns_waitcnt vmcnt(0)\ns_branch {tag}_n0")
    a(f"{tag}_n1:")

def ka(a):
    N = NAME
    entry(a, N)
    a(f"""s_getpc_b64 s[10:11]
    {N}_pc:
    s_nop 2
    s_sub_u32 s9, s3, 4
    s_cmp_ge_u32 s9, 3
    s_cbranch_scc1 {N}_npf
    s_lshl_b32 s9, s9, 13
    s_sub_u32 s9, s9, {N}_pc-{N}
    v_lshl_add_u32 v4, v0, 7, s9
    v_ashrrev_i32 v5, 31, v4
    v_add_co_u32 v4, vcc, s10, v4
    v_mov_b32 v6, s11
    s_nop 0
    v_addc_co_u32 v5, vcc, v6, v5, vcc
    global_load_dword v127, v[4:5], off
    {N}_npf:""")
    a("""s_and_b32 s8, s2, 7
    s_lshr_b32 s9, s2, 3
    s_lshr_b32 s10, s8, 1
    s_and_b32 s11, s8, 1
    s_lshl_b32 s4, s10, 2
    s_and_b32 s12, s9, 3
    s_add_u32 s4, s4, s12
    s_lshl_b32 s5, s11, 2
    s_bfe_u32 s13, s9, 0x20002
    s_add_u32 s5, s5, s13
    s_lshr_b32 s6, s9, 4
    s_lshl_b32 s7, s5, 1
    s_add_u32 s7, s7, s6""")
    a(f"v_mov_b32 v8, {L_CNT}\nv_mov_b64 v[4:5], 0\nv_mov_b64 v[6:7], 0\nds_write_b128 v8, v[4:7]\nds_write_b128 v8, v[4:7] offset:16")
    a("s_and_b32 s60, s3, 3")
    if STAG == 1: a("s_lshr_b32 s66, s9, 2\ns_lshl_b32 s13, s12, 1\ns_add_u32 s66, s66, s13")
    elif STAG == 0: a("s_mov_b32 s66, 0")
    else:
        XM = {2: (1, 1), 3: (1, 2), 4: (3, 1), 5: (1, 0), 6: (3, 0), 7: (3, 1), 8: (3, 1)}[STAG]
        a(f"s_lshr_b32 s66, s9, 2\ns_add_u32 s66, s66, s12\ns_and_b32 s66, s66, {XM[0]}\ns_lshl_b32 s66, s66, {XM[1]}")
    if STAG == 8:
        T = eval(opt("perm", "[[0,1,2,3,4,5,6,7],[0,3,4,5,6,7,1,2],[4,5,6,7,0,1,2,3],[4,7,2,1,0,3,5,6]]"))
        enc = [sum(c << (4 * k) for k, c in enumerate(t)) for t in T]
        a(f"s_mov_b32 s15, {enc[0]}")
        for k in range(1, 4): a(f"s_cmp_eq_u32 s66, {2*k}\ns_cselect_b32 s15, {enc[k]}, s15")
    a("s_lshl_b32 s64, s8, 2\ns_add_u32 s64, s64, s12\ns_lshr_b32 s65, s9, 2")
    XV, WV, QV, AXV, AA, WG, FP, ACC, XF, PK, ZB = 96, 100, 102, 104, 112, 128, 48, 64, 16, 32, 96
    global CA
    CA = 124
    a(f"""v_lshrrev_b32 v1, 3, v0
    v_and_b32 v2, 7, v0
    v_lshrrev_b32 v3, 4, v0
    v_xor_b32 v2, v2, v3
    v_lshlrev_b32 v2, 4, v2
    s_lshl_b32 s8, s4, 17
    s_lshl_b32 s10, s60, 15
    s_add_u32 s8, s8, s10
    v_lshl_add_u32 v5, v1, 10, v2
    v_add_u32 v{XV}, s8, v5
    v_add_u32 v{XV+1}, 7168, v{XV}
    v_xor_b32 v{XV+1}, 64, v{XV+1}
    v_add_u32 v{XV+2}, 14336, v{XV}
    v_add_u32 v{XV+3}, 14336, v{XV+1}
    v_mul_u32_u24 v5, 3072, v1
    v_bfe_u32 v6, v0, 2, 1
    v_and_b32 v7, 1, v3
    v_xor_b32 v6, v6, v7
    v_lshl_add_u32 v5, v6, 6, v5
    v_and_b32 v7, 3, v0
    v_lshl_add_u32 v5, v7, 4, v5
    s_mul_i32 s8, s60, 49152
    s_lshl_b32 s10, s6, 10
    s_add_u32 s10, s10, s8
    s_lshl_b32 s11, s5, 7
    s_add_u32 s10, s10, s11
    s_add_u32 s10, s10, 1024
    v_add_u32 v{WV}, s10, v5
    v_add_u32 v{WV+1}, 23552, v{WV}
    s_lshl_b32 s14, s60, 12
    s_lshl_b32 s67, s60, 11
    s_waitcnt lgkmcnt(0)""")
    srd(a, sX, 16, 2048 * 512 * 2)
    srd(a, sW, 28, 512 * 1536 * 2)
    SX = f"s[{sX}:{sX+3}]"; SW = f"s[{sW}:{sW+3}]"
    def chunk_idx(n):
        if STAG == 1: a(f"s_add_u32 s9, s66, {n}\ns_and_b32 s9, s9, 7")
        elif STAG == 7:
            if n == 0: a("s_mov_b32 s9, 0")
            else: a(f"s_add_u32 s9, s66, {n}\ns_cmp_gt_u32 s9, 7\ns_cselect_b32 s10, 7, 0\ns_sub_u32 s9, s9, s10")
        elif STAG == 8:
            a(f"s_lshr_b32 s9, s15, {4*n}\ns_and_b32 s9, s9, 7")
        else: a(f"s_xor_b32 s9, s66, {n}")
    pieces = []
    PER = int(opt("per", 1))
    def dma(x):
        a(x)
        for _ in range(PER):
            if pieces: a(pieces.pop(0))
    def issue(u):
        reg = R[u % 5]
        if u < 8:
            chunk_idx(u)
            a(f"s_add_u32 m0, s14, {reg}\ns_lshl_b32 s10, s9, 7\ns_mul_i32 s11, s9, 196608")
            for i in range(4): dma(f"buffer_load_dwordx4 v{XV+i}, {SX}, s10 offen offset:{1024*i} lds")
            a(f"s_add_u32 m0, s67, {reg+16384}\ns_nop 0")
            for i in range(2): dma(f"buffer_load_dwordx4 v{WV+i}, {SW}, s11 offen offset:{1024*i} lds")
            return 6
        if u == 8:
            a(f"s_lshr_b32 s12, s67, 1")
            for n in range(8):
                chunk_idx(n)
                a(f"s_add_u32 m0, s12, {reg+4096*n}\ns_mul_i32 s11, s9, 196608")
                dma(f"buffer_load_dwordx4 v{QV}, {SW}, s11 offen lds")
            return 8
        a(f"s_lshl_b32 s12, s14, 1\ns_movk_i32 s10, {512*(u-9)}")
        for i in range(8):
            if i % 4 == 0: a(f"s_add_u32 m0, s12, {reg+1024*i}\ns_nop 0")
            dma(f"buffer_load_dwordx4 v{AXV+i}, {SX}, s10 offen offset:{1024*(i%4)} lds")
        return 8
    NGU = int(opt("ng", 2))
    a(f"s_cmp_ge_u32 s3, 4\ns_cbranch_scc1 {N}_L")
    for u in range(NGU): issue(u)
    main_lines = a.lines; a.lines = []
    a(".p2align 6")
    a.label(f"{N}_L")
    def late_setup():
        a(f"""v_lshrrev_b32 v5, 2, v0
        v_mul_u32_u24 v5, 3072, v5
        v_lshl_add_u32 v5, v7, 4, v5
        s_lshl_b32 s10, s7, 6
        s_add_u32 s10, s10, s8
        v_add_u32 v{QV}, s10, v5""")
        a(f"""v_and_b32 v1, 31, v0
        v_lshrrev_b32 v2, 5, v0
        v_xor_b32 v5, v1, v2
        v_lshlrev_b32 v5, 4, v5
        v_lshl_add_u32 v5, v2, 17, v5
        s_lshl_b32 s10, s64, 2
        s_add_u32 s10, s10, s60
        s_lshl_b32 s10, s10, 10
        v_add_u32 v5, s10, v5""")
        for n in range(8):
            a(f"v_xor_b32 v{AXV+n}, {32*n}, v5")
            if n: a(f"v_add_u32 v{AXV+n}, {n*2*131072-1024*(n%4)}, v{AXV+n}")
        a(f"""v_and_b32 v5, 15, v0
        v_xor_b32 v5, v5, v2
        v_lshlrev_b32 v5, 4, v5
        v_lshl_add_u32 v5, v1, 9, v5
        s_lshr_b32 s10, s60, 1
        s_lshl_b32 s10, s10, 14
        s_add_u32 s10, s10, {R[4]}
        v_add_u32 v{AA}, s10, v5""")
        for ks in range(1, 8): a(f"v_xor_b32 v{AA+ks}, {32*ks}, v{AA}")
        a(f"v_mov_b32 v{CA}, {L_CNT}\nv_mov_b32 v{CA+1}, 1")
        a("""s_lshl_b32 s10, s65, 5
        v_add_u32 v5, s10, v1
        s_and_b32 s11, s60, 1
        v_lshlrev_b32 v15, 31, v5
        v_or_b32 v15, 1.0, v15
        v_sub_u32 v6, v5, s11
        v_ashrrev_i32 v6, 31, v6
        v_and_b32 v7, 256, v6
        v_or_b32 v5, v5, v7
        v_cvt_f32_u32 v120, v5
        v_mul_f32 v120, 0x3b000000, v120
        s_mul_i32 s11, s11, 0x3e800000
        v_not_b32 v6, v6
        v_and_b32 v121, s11, v6
        v_cvt_f32_u32 v5, v2
        v_mul_f32 v5, 0x41000000, v5
        v_fmac_f32 v121, v5, v120""")
    def gen_pieces():
        a("v_mul_f32 v123, 0x41800000, v120\nv_cos_f32 v123, v123\ns_nop 0\nv_add_f32 v123, v123, v123")
        for ks in range(16):
            r = 16 + 8 * (ks & 1); o_ = 16 + 8 * (1 - (ks & 1))
            for p in range(4):
                x, y = r + 2 * p, r + 2 * p + 1
                if ks < 2:
                    pieces.append(f"v_fmamk_f32 v{x}, v120, {fhex(float(16*ks+2*p))}, v121\nv_add_f32 v{y}, v{x}, v120\nv_cos_f32 v{x}, v{x}\nv_cos_f32 v{y}, v{y}\ns_nop 0\nv_cvt_pk_bf16_f32 v{WG+4*ks+p}, v{x}, v{y}")
                else:
                    pieces.append(f"v_fma_f32 v{x}, v123, v{o_+2*p}, -v{x}\nv_fma_f32 v{y}, v123, v{o_+2*p+1}, -v{y}\nv_cvt_pk_bf16_f32 v{WG+4*ks+p}, v{x}, v{y}")
    def first():
        srd(a, sWS, 38, WS_BYTES)
        srd(a, sDB, 36, 256)
        a(f"s_xor_b32 s9, s60, 3\ns_or_b32 s9, s9, s2\ns_cmp_lg_u32 s9, 0\ns_cbranch_scc1 {N}_nn")
        a(f"v_lshlrev_b32 v4, 8, v0\nv_mov_b32 v5, 0\ns_mov_b32 s9, {FL2}\nbuffer_store_dword v5, v4, {W}, s9 offen sc1")
        a("s_memrealtime s[10:11]\ns_waitcnt vmcnt(0) lgkmcnt(0)\ns_or_b32 s10, s10, 1\nv_mov_b32 v4, s10\ns_mov_b64 exec, 1")
        a(f"buffer_store_dword v4, off, s[{sDB}:{sDB+3}], 0 sc1\ns_mov_b64 exec, -1")
        a.label(f"{N}_nn")
    def touch():
        if opt("notouch"): return
        a(f"s_cmp_lg_u32 s60, 3\ns_cbranch_scc1 {N}_ntt")
        srd(a, sOUT, 34, 2048 * 512 * 2)
        srd(a, sG, 30, 512 * 512 * 2)
        TM_ = opt("tmode", "0")
        if TM_ == "0":
            a(f"v_lshlrev_b32 v4, 21, v0\nv_add_u32 v4, 0x1fff80, v4\ns_mov_b64 exec, 63\nbuffer_load_dword v127, v4, {W}, 0 offen sc1\ns_mov_b64 exec, 1")
            a(f"buffer_load_dword v127, off, s[{sOUT}:{sOUT+3}], 0 sc1\nbuffer_load_dword v127, off, s[{sG}:{sG+3}], 0")
        if TM_ == "a":
            a(f"v_lshlrev_b32 v4, 18, v0\nv_add_u32 v4, 0x3ff80, v4\ns_mov_b32 exec_hi, 0xffff\nbuffer_load_dword v127, v4, {W}, 0 offen sc1")
            a(f"s_mov_b64 exec, 255\nbuffer_load_dword v127, v4, s[{sOUT}:{sOUT+3}], 0 offen sc1\ns_mov_b64 exec, 3\nbuffer_load_dword v127, v4, s[{sG}:{sG+3}], 0 offen\ns_mov_b64 exec, 1")
        if TM_ == "b":
            a(f"v_lshlrev_b32 v4, 21, v0\ns_lshr_b32 s9, s2, 3\ns_lshl_b32 s9, s9, 16\ns_add_u32 s9, s9, 0xff80\ns_mov_b64 exec, 63\nbuffer_load_dword v127, v4, {W}, s9 offen sc1\ns_mov_b64 exec, 1")
            a(f"buffer_load_dword v127, off, s[{sOUT}:{sOUT+3}], s9 sc1\ns_and_b32 s9, s9, 0x7ffff\nbuffer_load_dword v127, off, s[{sG}:{sG+3}], s9")
        if TM_ == "c":
            a(f"v_lshlrev_b32 v4, 18, v0\ns_lshr_b32 s9, s2, 3\ns_lshl_b32 s9, s9, 13\ns_add_u32 s9, s9, 0x1f80\ns_mov_b32 exec_hi, 0xffff\nbuffer_load_dword v127, v4, {W}, s9 offen sc1")
            a(f"s_mov_b64 exec, 255\nbuffer_load_dword v127, v4, s[{sOUT}:{sOUT+3}], s9 offen sc1\ns_mov_b64 exec, 3\nbuffer_load_dword v127, v4, s[{sG}:{sG+3}], s9 offen\ns_mov_b64 exec, 1")
        if True: a(f"buffer_load_dword v127, off, s[{sDB}:{sDB+3}], 0 offset:128 sc1")
        a("s_mov_b64 exec, -1")
        a.label(f"{N}_ntt")
    def warm():
        WM = opt("warm", "q")
        if "q" in WM:
            a(f"""s_cmp_lg_u32 s60, 0
            s_cbranch_scc1 {N}_w1
            s_and_b32 s9, s4, 3
            s_lshl_b32 s9, s9, 1
            s_add_u32 s9, s9, s6
            s_mul_i32 s9, s9, 196608
            s_lshl_b32 s10, s5, 7
            s_add_u32 s9, s9, s10
            v_mul_u32_u24 v4, 3072, v0
            buffer_load_dword v127, v4, {SW}, s9 offen
            {N}_w1:""")
        if "x" in WM:
            a(f"""s_cmp_lg_u32 s60, 1
            s_cbranch_scc1 {N}_w2
            s_lshl_b32 s9, s64, 12
            s_lshl_b32 s10, s65, 7
            s_add_u32 s9, s9, s10
            v_lshrrev_b32 v4, 2, v0
            v_lshlrev_b32 v4, 17, v4
            v_and_b32 v5, 3, v0
            v_lshl_add_u32 v4, v5, 10, v4
            buffer_load_dword v127, v4, {SX}, s9 offen
            {N}_w2:""")
        if "o" in WM:
            srd(a, sG, 30, 512 * 512 * 2)
            a(f"""s_cmp_lt_u32 s60, 2
            s_cbranch_scc1 {N}_w3
            s_lshr_b32 s9, s2, 3
            s_lshl_b32 s9, s9, 1
            s_add_u32 s9, s9, s60
            s_sub_u32 s9, s9, 2
            s_lshl_b32 s9, s9, 13
            v_lshlrev_b32 v4, 7, v0
            buffer_load_dword v127, v4, s[{sG}:{sG+3}], s9 offen
            {N}_w3:""")
    def gw_loads():
        srd(a, sG, 32, 1024)
        a(f"""v_lshlrev_b32 v6, 5, v0
        v_and_b32 v6, 1023, v6
        buffer_load_dwordx4 v[56:59], v6, s[{sG}:{sG+3}], 0 offen
        buffer_load_dwordx4 v[60:63], v6, s[{sG}:{sG+3}], 0 offen offset:16""")
    def gate_loads():
        a(f"""s_lshl_b32 s76, s4, 7
        s_lshl_b32 s9, s7, 3
        s_add_u32 s76, s76, s9
        s_lshl_b32 s9, s60, 1
        s_add_u32 s76, s76, s9
        s_lshl_b32 s9, s76, 10
        v_lshlrev_b32 v6, 5, v0
        buffer_load_dwordx4 v[48:51], v6, {SX}, s9 offen
        buffer_load_dwordx4 v[52:55], v6, {SX}, s9 offen offset:16""")
    def gate_comp():
        a("v_mov_b32 v5, 0")
        for i in range(8): a(f"v_dot2c_f32_bf16 v5, v{48+i}, v{56+i}")
        a("v_lshrrev_b32 v6, 5, v0\nv_add_u32 v6, s76, v6\nv_and_b32 v7, 15, v6")
        a("v_add_f32_dpp v5, v5, v5 quad_perm:[1,0,3,2] row_mask:0xf bank_mask:0xf")
        a("v_lshrrev_b32 v6, 4, v6\nv_lshlrev_b32 v7, 9, v7")
        a("v_add_f32_dpp v5, v5, v5 quad_perm:[2,3,0,1] row_mask:0xf bank_mask:0xf")
        a("v_lshl_add_u32 v6, v6, 2, v7\ns_nop 0")
        a("v_add_f32_dpp v5, v5, v5 row_half_mirror row_mask:0xf bank_mask:0xf\ns_nop 1")
        a("v_add_f32_dpp v5, v5, v5 row_mirror row_mask:0xf bank_mask:0xf\ns_nop 1")
        a("v_add_f32_dpp v5, v5, v5 row_bcast:15 row_mask:0xa bank_mask:0xf")
        a(f"v_mul_f32 v5, {fhex(-math.log2(math.e))}, v5\nv_exp_f32 v5, v5\ns_nop 0\nv_add_f32 v5, 1.0, v5\nv_rcp_f32 v5, v5")
        a("s_mov_b32 exec_lo, 0x80000000\ns_mov_b32 exec_hi, 0x80000000")
        a(f"s_mov_b32 s76, {GF}\nbuffer_store_dword v5, v6, {W}, s76 offen sc1\ns_mov_b64 exec, -1")
    def flush(k):
        for _ in range(k):
            if pieces: a(pieces.pop(0))
    if opt("lfast"):
        a('s_barrier')
        warm()
        WORK = {0: [first, touch, gw_loads, late_setup, gen_pieces, lambda: flush(int(opt("pre", 0)))], 9: [lambda: flush(1000)]}
    else:
        first()
        if opt('tearly'): touch()
        late_setup(); gen_pieces()
        a('s_barrier')
        warm()
        WORK = {0: [(lambda: None) if opt('tearly') else touch, gw_loads, lambda: flush(int(opt("pre", 0)))], 9: [lambda: flush(1000)]}
    WORK[int(opt("asat", 0))] = WORK.get(int(opt("asat", 0)), []) + [lambda: att_setup(a)]
    SCHED = eval(opt("sched", "[[2],[3,4],[],[5],[6],[7],[],[8],[9],[10]]"))
    cnt = {}; issued = []
    for n in range(10):
        if n == 9:
            waitcnt_lds(a, 0, 8)
            gate_loads()
        for u in SCHED[n]:
            assert u < 5 or u - 5 <= min(n, 7) - 3 or n == 9, (u, n)
            cnt[u] = issue(u); issued.append(u)
        for f in WORK.get(n, []): f()
        if n == 7: continue
        younger = sum(cnt[u] for u in issued if u > (7 if n == 6 else n)) if n < 9 else 8 * len([u for u in SCHED[9] if u > 9]) + (2 if 9 not in SCHED[9] else 0)
        if n >= NGU: a(f"s_waitcnt vmcnt({younger})")
        if n < NGU: pass
        elif n < 8: a("s_barrier")
        else: signal(a, (0, 5)[n - 8])
        if opt("p1st") and 1 <= n <= 7: stamp(a, n, True)
        if n == 6: stamp(a, 2)
        if n == 8: stamp(a, 3)
    def ard(s):
        F = XF + 4 * (s & 7)
        a(f"ds_read_b128 v[{F}:{F+3}], v{AA+(s&7)} offset:{256*((s>>3)&1)}")
        if 8 <= s < 16: a(f"v_subrev_u32 v{AA+(s&7)}, {R[4]-R[0]}, v{AA+(s&7)}")
    for half in range(2):
        if half == 0: waitcnt_lds(a, 5, 4)
        else:
            a("s_waitcnt vmcnt(0)")
            signal(a, 1)
            waitcnt_lds(a, 1, 4)
            stamp(a, 4)
        b = 16 * half
        for s in range(b, b + 6): ard(s)
        for s in range(b, b + 16):
            a(f"s_waitcnt lgkmcnt({min(5, b+15-s)})")
            c = vr(ACC + 16 * (s >> 4), 16)
            a(f"{MF} {c}, {vr(XF+4*(s&7),4)}, {vr(WG+4*(s&15),4)}, {'0' if (s & 15) == 0 else c}")
            if s + 6 < b + 16: ard(s + 6)
    a(f"""s_and_b32 s9, s60, 1
    s_lshl_b32 s9, s9, 12
    s_lshr_b32 s10, s60, 1
    s_lshl_b32 s11, s10, 11
    s_add_u32 s9, s9, s11
    s_add_u32 s9, s9, {L_ZX}
    v_add_u32 v2, s9, v14
    s_lshl_b32 s12, s60, 10
    s_add_u32 s12, s12, {L_QB}
    v_add_u32 v1, s12, v14""")
    a.nop(2)
    for i in range(16): a(f"v_fmac_f32 v{ACC+i}, v{ACC+16+i}, v15")
    for i in range(8): a(f"v_cvt_pk_bf16_f32 v{PK+i}, v{ACC+2*i}, v{ACC+2*i+1}")
    a(f"ds_write_b128 v2, v[{PK}:{PK+3}]\nds_write_b128 v2, v[{PK+4}:{PK+7}] offset:1024")
    signal(a, 2)
    gate_comp()
    a(f"v_mov_b32 v28, {L_CNT}")
    CA = 28
    for i in range(0, 16, 2): a(f"v_mov_b64 v[{CN+i}:{CN+i+1}], 0")
    waitcnt_lds(a, 3, 4)
    a(f"ds_read_b128 v[{QA}:{QA+3}], v1")
    a("s_branch att_body2")
    a.label(f"{N}_end")
    a("s_endpgm")

    XR, WR, ACC, PK = 128, 96, 64, 32
    XA, WA = 8, 12
    CA = 28
    l_lines = a.lines; a.lines = main_lines
    a.label(f"{N}_comp")
    a(f"""v_and_b32 v1, 31, v0
    v_lshrrev_b32 v2, 5, v0
    v_bfe_u32 v3, v0, 1, 3
    v_xor_b32 v3, v3, v2
    v_lshlrev_b32 v3, 4, v3
    v_lshl_add_u32 v3, v1, 7, v3
    s_lshl_b32 s9, s3, 12
    v_add_u32 v{XA}, s9, v3""")
    for ks in range(1, 4): a(f"v_xor_b32 v{XA+ks}, {32*ks}, v{XA}")
    a(f"""v_bfe_u32 v4, v0, 2, 2
    v_lshl_add_u32 v5, v2, 3, v4
    v_bfe_u32 v6, v0, 4, 1
    v_lshlrev_b32 v6, 5, v6
    v_and_b32 v7, 3, v0
    v_lshl_add_u32 v6, v7, 3, v6
    v_lshl_add_u32 v14, v5, 6, v6
    v_add_u32 v14, {R[3]}, v14
    v_lshl_add_u32 v5, v5, 7, v6
    v_lshrrev_b32 v4, 1, v4
    v_lshl_add_u32 v{WA}, v4, 6, v5
    v_xor_b32 v{WA+1}, 64, v{WA}""")
    a(f"v_mov_b32 v{CA}, {L_CNT}\nv_mov_b32 v{CA+1}, 1")
    a("s_waitcnt lgkmcnt(0)")
    srd(a, sWS, 38, WS_BYTES)
    srd(a, sDB, 36, 256)
    a(f"""s_lshl_b32 s8, s5, 7
    s_lshl_b32 s9, s4, 2
    s_add_u32 s8, s8, s9
    s_add_u32 s8, s8, s3
    s_lshl_b32 s8, s8, 12
    s_lshl_b32 s9, s6, 11
    s_add_u32 s8, s8, s9
    s_add_u32 s60, s8, 262144
    s_lshl_b32 s77, s4, 4
    s_add_u32 s77, s77, s7
    s_lshl_b32 s77, s77, 2
    s_add_u32 s77, s77, s3
    s_lshl_b32 s77, s77, 8
    s_add_u32 s77, s77, {FL1}
    v_lshlrev_b32 v15, 4, v0""")
    a(f"""s_mul_i32 s66, s3, 3
    s_lshl_b32 s67, s4, 2
    s_add_u32 s66, s66, s67
    s_sub_u32 s66, s66, 8
    v_lshrrev_b32 v4, 1, v0
    v_add_u32 v4, s66, v4
    v_ashrrev_i32 v5, 31, v4
    v_mov_b32 v6, s67
    v_bfi_b32 v4, v5, v6, v4
    v_lshrrev_b32 v5, 2, v4
    v_lshlrev_b32 v5, 6, v5
    v_and_b32 v6, 3, v4
    v_and_b32 v7, 1, v0
    v_lshl_add_u32 v6, v7, 2, v6
    s_lshl_b32 s11, s5, 3
    v_add3_u32 v5, v5, v6, s11
    v_lshlrev_b32 v18, 8, v5""")
    a(f"s_cmp_eq_u32 s6, 1\ns_cbranch_scc1 {N}_V")
    def p1(swap):
        naddr = [XA + i for i in range(4)] + [WA, WA + 1]
        def rds(s):
            ks = s & 3; F = WR + 8 * ks
            o = [f"ds_read_b128 v[{XR+4*s}:{XR+4*s+3}], v{XA+ks}"]
            for nt in range(2):
                for h in range(2): o.append(f"ds_read_b64_tr_b16 v[{F+4*nt+2*h}:{F+4*nt+2*h+1}], v{WA+nt} offset:{16384+2048*ks+512*h}")
            return o
        a(f"s_barrier\ns_waitcnt vmcnt({6*(NGU-1)})")
        signal(a, 6); waitcnt_lds(a, 6, 4)
        if opt("p1st"): stamp(a, 1, True)
        stamp(a, 1)
        for x in rds(0) + rds(1): a(x)
        for s in range(32):
            ks = s & 3; c = s >> 2
            a(f"s_waitcnt lgkmcnt({5 if s < 31 else 0})")
            r = rds(s + 2) if s < 30 else []
            for nt in range(2):
                x = vr(XR + 4 * s, 4); w = vr(WR + 8 * ks + 4 * nt, 4); cc = vr(ACC + 16 * nt, 16)
                ci = "0" if s == 0 else cc
                a(f"{MF} {cc}, {w}, {x}, {ci}" if swap else f"{MF} {cc}, {x}, {w}, {ci}")
                if nt == 0 and ks == 2 and c < 7:
                    d = R[(c + 1) % 5] - R[c % 5]
                    for x_ in naddr: a(f"v_add_u32 v{x_}, {d}, v{x_}" if d > 0 else f"v_subrev_u32 v{x_}, {-d}, v{x_}")
                    if c == 5: a(f"buffer_load_dword v{NONCE}, off, s[{sDB}:{sDB+3}], 0 sc1")
                    if c + 1 < NGU:
                        a(f"s_waitcnt vmcnt({6*(NGU-2-c)})")
                        signal(a, 6); waitcnt_lds(a, 6, 4 * (c + 2))
                    else:
                        if opt("p1st"): stamp(a, c + 1, True)
                        if c < 6: a("s_barrier")
                for x_ in (r[:3] if nt == 0 else r[3:]): a(x_)
    p1(True)
    a(f"s_branch {N}_p1d")
    if opt("lpos", "end") == "mid": a.lines += l_lines
    a.label(f"{N}_V")
    p1(False)
    a.label(f"{N}_p1d")
    stamp(a, 2)
    a("s_waitcnt vmcnt(0)")
    get_nonce(a, "gm")
    a.nop(6)
    for nt in range(2):
        for i in range(8): a(f"v_cvt_pk_bf16_f32 v{PK+8*nt+i}, v{ACC+16*nt+2*i}, v{ACC+16*nt+2*i+1}")
        for h in range(2): a(f"buffer_store_dwordx4 v[{PK+8*nt+4*h}:{PK+8*nt+4*h+3}], v15, {W}, s{(8,60)[nt]} offen offset:{1024*h} sc1")
    signal(a, 0)
    a("""s_lshr_b32 s9, s3, 1
    s_lshl_b32 s9, s9, 3
    v_bfe_u32 v120, v0, 1, 3
    v_add_u32 v120, s9, v120
    v_cvt_f32_u32 v120, v120
    v_and_b32 v121, 1, v0
    v_lshrrev_b32 v6, 5, v0
    v_sub_u32 v121, v121, v6
    v_cvt_f32_i32 v121, v121
    v_mul_f32 v121, 0x3e800000, v121
    v_bfe_u32 v6, v0, 4, 1
    v_lshlrev_b32 v6, 9, v6
    s_lshl_b32 s9, s64, 2
    v_add_u32 v6, s9, v6
    v_cvt_f32_u32 v6, v6
    v_mul_f32 v122, 0x3a000000, v120
    v_fmac_f32 v121, v6, v122
    v_mul_f32 v120, 0x3d800000, v120""")
    for u in range(4):
        for p in range(4):
            c0 = (2 * p & 3) + 8 * (p >> 1)
            pre = "v_add_f32 v121, v121, v122\n" if (u and p == 0) else ""
            a(pre + f"v_fmamk_f32 v4, v120, {fhex(float(c0))}, v121\nv_add_f32 v5, v4, v120\nv_cos_f32 v4, v4\nv_cos_f32 v5, v5\ns_nop 0\nv_cvt_pk_bf16_f32 v{FP+4*u+p}, v4, v5")
    FLAGAT = int(opt("flagat", 8))
    if FLAGAT < 0:
        a(f"s_waitcnt vmcnt(0)\ns_mov_b64 exec, 1\nbuffer_store_dword v{NONCE}, off, {W}, s77 sc1\ns_mov_b64 exec, -1")
        stamp(a, 3)
    waitcnt_lds(a, 0, 8)
    KP = f"v_mov_b32 v19, 0\nbuffer_atomic_add v19, v18, {W}, s76 offen sc0 sc1"
    POLLAT = int(opt("pollat", 31))
    def qrd(s):
        F = WR + 4 * (s & 7)
        for h in range(2): a(f"ds_read_b64_tr_b16 v[{F+2*h}:{F+2*h+1}], v14 offset:{1024*s+256*h}")
    for s in range(6): qrd(s)
    for s in range(32):
        a(f"s_waitcnt lgkmcnt({2*min(5, 31-s)})")
        a(f"{MF} {vr(ACC,16)}, {vr(WR+4*(s&7),4)}, {vr(XR+4*s,4)}, {'0' if s == 0 else vr(ACC,16)}")
        if s + 6 < 32: qrd(s + 6)
        if s == FLAGAT:
            a(f"s_waitcnt vmcnt(0)\ns_mov_b64 exec, 1\nbuffer_store_dword v{NONCE}, off, {W}, s77 sc1\ns_mov_b64 exec, -1")
            stamp(a, 3)
        if s == POLLAT: a(f"s_mov_b32 s76, {FL1}\ns_mov_b64 exec, 63\n{KP}\ns_mov_b64 exec, -1")
    a(f"""s_lshl_b32 s9, s3, 10
    s_add_u32 s9, s9, {L_QB}
    v_add_u32 v4, s9, v15""")
    a.nop(9)
    for i in range(16): a(f"v_mul_f32 v{ACC+i}, {fhex(QSCALE)}, v{ACC+i}")
    for i in range(8): a(f"v_cvt_pk_bf16_f32 v{QA+i}, v{ACC+2*i}, v{ACC+2*i+1}")
    a(f"ds_write_b128 v4, v[{QB}:{QB+3}]")
    a("s_mov_b32 s15, 0\ns_mov_b64 exec, 63")
    a(f"gm_poll:\ns_add_u32 s15, s15, 1\ns_waitcnt vmcnt(0)\nv_cmp_ne_u32 vcc, s63, v19")
    a(f"s_cmp_gt_u32 s15, 0x40000\ns_cbranch_scc1 gm_polled\ns_cbranch_vccz gm_polled\ns_sleep {PSLEEP}")
    a(f"{KP}\ns_branch gm_poll")
    a("gm_polled:\ns_mov_b64 exec, -1")
    stamp(a, 4)
    a(f"s_mul_i32 s12, s3, 12288\ns_lshl_b32 s13, s7, 6")
    for t in range(3):
        a(f"s_add_u32 s11, s66, {t}\ns_cmp_lt_i32 s11, 0\ns_cselect_b32 s11, s67, s11\ns_add_u32 s11, s11, s13\ns_lshl_b32 s11, s11, 12")
        a(f"s_add_u32 m0, s12, {L_KV + 4096*t}\ns_nop 0")
        for i in range(4): a(f"buffer_load_dwordx4 v15, {W}, s11 offen offset:{1024*i} sc1 lds")
    att_setup(a)
    a(f"""s_lshl_b32 s9, s74, 1
    s_lshr_b32 s10, s3, 1
    s_add_u32 s9, s9, s10
    s_sub_u32 s10, 15, s9
    s_min_u32 s10, s10, s9
    v_and_b32 v5, 1, v0
    v_add_u32 v5, s10, v5
    v_and_b32 v5, 7, v5
    v_lshrrev_b32 v6, 1, v0
    v_lshl_add_u32 v5, v6, 3, v5
    v_lshlrev_b32 v18, 8, v5
    s_and_b32 s79, s3, 1
    s_lshl_b32 s79, s79, 15
    s_add_u32 s79, s79, {FL3}""")
    for i in range(0, 16, 2): a(f"v_mov_b64 v[{CN+i}:{CN+i+1}], 0")
    a(f"s_lshl_b32 s77, s64, 3\ns_add_u32 s77, s77, s65\ns_lshl_b32 s77, s77, 8\ns_lshl_b32 s9, s3, 2\ns_add_u32 s77, s77, s9\ns_add_u32 s77, s77, {FL3}")
    a(f"""v_lshrrev_b32 v4, 5, v0
    v_lshlrev_b32 v3, 12, v4
    v_bfe_u32 v5, v0, 4, 1
    v_lshl_add_u32 v3, v5, 9, v3
    v_and_b32 v6, 15, v0
    v_lshl_add_u32 v3, v6, 4, v3
    s_lshr_b32 s10, s3, 1
    s_and_b32 s9, s3, 1
    s_lshl_b32 s9, s9, 8
    s_add_u32 s11, s9, {L_ZX}
    v_add_u32 v3, s11, v3
    v_lshrrev_b32 v4, 4, v0
    v_mul_u32_u24 v4, {2*32*TP}, v4
    v_lshl_add_u32 v5, v6, 4, v4
    s_lshl_b32 s11, s65, 9
    s_add_u32 s9, s9, s11
    v_add_u32 v5, s9, v5
    s_mul_i32 s10, s10, {8*32*TP}
    s_mul_i32 s11, s64, {TP}
    s_add_u32 s10, s10, s11
    s_add_u32 s10, s10, {TF}
    s_add_u32 s11, s10, {32*TP}""")
    for i in range(0, 16, 2): a(f"v_mov_b64 v[{ZB+i}:{ZB+i+1}], 0")
    waitcnt_lds(a, 2, 4)
    a("s_cmp_eq_u32 s9, 0\ns_cselect_b32 exec_hi, 0xfffefffe, -1")
    def step1():
        for u in range(4): a(f"{MF16} {vr(ACC+4*u,4)}, {vr(FP+4*u,4)}, {vr(ZB+4*u,4)}, 0")
        a.nop(5)
        for r2 in range(2):
            for u in range(4): a(f"v_cvt_pk_bf16_f32 v{PK+4*r2+u}, v{ACC+4*u+2*r2}, v{ACC+4*u+2*r2+1}")
    for u in range(4): a(f"ds_read_b128 v[{ZB+4*u}:{ZB+4*u+3}], v3 offset:{1024*u}")
    a("s_waitcnt lgkmcnt(0)\ns_mov_b64 exec, -1")
    step1()
    a(f"buffer_store_dwordx4 v[{PK}:{PK+3}], v5, {W}, s10 offen sc1\nbuffer_store_dwordx4 v[{PK+4}:{PK+7}], v5, {W}, s11 offen sc1")
    a("s_waitcnt vmcnt(2)")
    signal(a, 3)
    a(f"s_cmp_lg_u32 s9, 0\ns_cbranch_scc1 {N}_nsp")
    a("s_mov_b32 exec_hi, 0")
    for u in range(4): a(f"ds_read_b128 v[{ZB+4*u}:{ZB+4*u+3}], v3 offset:{4096+1024*u}")
    a("s_mov_b64 exec, -1\nv_add_u32 v6, 4096, v4\ns_waitcnt lgkmcnt(0)")
    step1()
    a("s_mov_b32 exec_lo, 0x00010001\ns_mov_b32 exec_hi, 0x00010001")
    a(f"buffer_store_dwordx4 v[{PK}:{PK+3}], v6, {W}, s10 offen sc1\nbuffer_store_dwordx4 v[{PK+4}:{PK+7}], v6, {W}, s11 offen sc1")
    a("s_mov_b64 exec, -1")
    a.label(f"{N}_nsp")
    waitcnt_lds(a, 3, 4)

    a.label("att_body2")
    stamp(a, 5)
    q = vr(QA, 4); cn = vr(CN, 16); o = vr(O, 16); m = 3
    kslot = {8: 0, 0: 1}; vslot = {8: 0, 0: 1}
    for n in range(7): kslot[7 - n] = (2 + n) & 3; vslot[7 - n] = (2 + n) & 3
    kf = lambda j: vr(KRG + 4 * kslot[j], 4)
    vf = lambda j, ks: vr(VB + 8 * vslot[j] + 4 * ks, 4)
    def krd(j): a(f"ds_read_b128 {kf(j)}, v{AK} offset:{4096*j}")
    def vrd(js):
        a("s_mov_b64 exec, s[12:13]")
        for j in js:
            for ks in range(2): a(f"ds_read_b128 {vf(j,ks)}, v{AV} offset:{4096*j+2048+1024*ks}")
        a("s_mov_b64 exec, -1")
    def wo_dma():
        a(f"s_add_u32 m0, s75, s8\ns_lshl_b32 s9, s75, 3\nbuffer_load_dwordx4 v13, s[{sOUT}:{sOUT+3}], s9 offen lds\ns_add_u32 s75, s75, 1024")
    TPL = f"s_mov_b32 exec_hi, 0\nbuffer_load_dwordx4 v[24:27], v18, {W}, s79 offen sc1\ns_mov_b64 exec, -1"
    TCHK = "s_mov_b32 exec_hi, 0\nv_xor_b32 v24, s63, v24\nv_xor_b32 v25, s63, v25\nv_xor_b32 v26, s63, v26\nv_xor_b32 v27, s63, v27\nv_or3_b32 v24, v24, v25, v26\nv_or_b32 v24, v24, v27\nv_cmp_ne_u32 vcc, 0, v24\ns_mov_b64 exec, -1"
    a(f"""s_mov_b32 s12, 0xffff
    s_mov_b32 s13, 0xffff
    s_mov_b32 s15, 0
    s_lshl_b32 s8, s3, 13
    s_add_u32 s8, s8, {R[3]}""")
    a.label("att_retry")
    for j in (8, 0, 7, 6): krd(j)
    vrd((8, 0, 7))
    PR = opt("prio", "a")
    if PR == "a": a("s_setprio 3")
    if PR == "b": a("s_cmp_lt_u32 s3, 4\ns_cbranch_scc1 att_np\ns_setprio 1\natt_np:")
    a("s_waitcnt lgkmcnt(7)\ns_nop 0")
    a(f"{MF} {vr(SB,16)}, {kf(8)}, {q}, {cn}")
    a(f"{MF} {vr(SC_,16)}, {kf(0)}, {q}, {cn}")
    a(f"{MF} {vr(SA,16)}, {kf(7)}, {q}, {cn}")
    wo_dma()
    a("s_cmp_lg_u32 s61, 9")
    a.nop(5)
    a("s_cbranch_scc1 att_no0a")
    for i in range(16): a(f"v_bfi_b32 v{SB+i}, v{TM+i}, v{SC_+i}, v{SB+i}")
    a.label("att_no0a")
    for i in range(16): a(f"v_exp_f32 v{SB+i}, v{SB+i}")
    for i in range(8): a(f"v_cvt_pk_bf16_f32 v{P+i}, v{SB+2*i}, v{SB+2*i+1}")
    for i in range(8): a(f"v_and_b32 v{P+8+i}, v{PM+i}, v{P+i}")
    for i in range(8): a(f"v_xor_b32 v{P+i}, v{P+8+i}, v{P+i}")
    a("s_waitcnt lgkmcnt(0)\ns_cmp_lg_u32 s61, 9")
    a(f"{MF} {o}, {vf(8,0)}, {vr(P,4)}, 0")
    a(f"{MF} {o}, {vf(8,1)}, {vr(P+4,4)}, {o}")
    a("s_cbranch_scc1 att_no0b")
    a(f"{MF} {o}, {vf(0,0)}, {vr(P+8,4)}, {o}")
    a(f"{MF} {o}, {vf(0,1)}, {vr(P+12,4)}, {o}")
    a.label("att_no0b")
    a("s_cmp_ge_u32 s3, 4\ns_cbranch_scc1 att_nof3")
    a(f"v_mov_b32 v4, s63\ns_waitcnt vmcnt(1)\ns_mov_b64 exec, 1\nbuffer_store_dword v4, off, {W}, s77 sc1\ns_mov_b64 exec, -1")
    a.label("att_nof3")
    a("s_cmp_eq_u32 s61, 1\ns_cbranch_scc1 att_done")
    S = [SA, SB]
    for n in range(7):
        j = 7 - n
        s = S[n & 1]; p = P + 8 * (n & 1)
        if PR == "a" and n in (1, 3, 5): a(f"s_setprio {2 - n // 2}")
        if PR == "c" : a(f"s_setprio {(3,2,2,1,1,0,0)[n]}")
        if n < 6:
            a(f"{MF} {vr(S[(n+1)&1],16)}, {kf(j-1)}, {q}, {cn}")
            if n < 5: krd(j - 2)
            vrd((j - 1,))
        if n < 3 and (not opt('wo1')): wo_dma()
        for i in range(8): a(f"v_exp_f32 v{s+i}, v{s+i}")
        for i in range(4): a(f"v_cvt_pk_bf16_f32 v{p+i}, v{s+2*i}, v{s+2*i+1}")
        for i in range(8, 10): a(f"v_exp_f32 v{s+i}, v{s+i}")
        a(f"{MF} {o}, {vf(j,0)}, {vr(p,4)}, {o}")
        if n < 4 or not (not opt('wo1')): wo_dma()
        for i in range(10, 16): a(f"v_exp_f32 v{s+i}, v{s+i}")
        for i in range(4, 8): a(f"v_cvt_pk_bf16_f32 v{p+i}, v{s+2*i}, v{s+2*i+1}")
        a(f"s_cmp_eq_u32 s61, {n+2}\ns_waitcnt lgkmcnt(0)")
        a(f"{MF} {o}, {vf(j,1)}, {vr(p+4,4)}, {o}")
        if n < 6 and not opt("nobr"): a("s_cbranch_scc1 att_done")
    a.label("att_done")
    a(f"s_nop 0\ns_mov_b32 s14, {fhex(0.0 if FORCEFB else 2.0**90)}\nv_mov_b32 v6, 0")
    a(f"""s_lshl_b32 s101, s3, 3
    s_bfe_u32 s9, s4, 0x10003
    s_lshl_b32 s9, s9, 2
    s_add_u32 s101, s101, s9
    s_and_b32 s9, s7, 3
    s_add_u32 s101, s101, s9
    s_lshl_b32 s101, s101, 8
    s_add_u32 s101, s101, {FL2}""")
    a.nop(1)
    a(f"v_rcp_f32 v4, v{O+8}\nv_mov_b32 v7, v{O+8}")
    for i in range(8): a(f"v_fmac_f32 v7, v{O+i}, v6")
    a(f"v_fmamk_f32 v7, v4, {fhex(2.0**50)}, v7\nv_cmp_nge_f32 vcc, s14, v7\ns_cbranch_vccnz att_fb")
    a.label("att_fin")
    for i in range(8): a(f"v_mul_f32 v{O+i}, v{O+i}, v4")
    for i in range(4): a(f"v_cvt_pk_bf16_f32 v{P+i}, v{O+2*i}, v{O+2*i+1}")
    a(f"ds_write_b128 v{AO}, v[{P}:{P+3}]")
    stamp(a, 6)
    a.label("att_wo")
    a("s_cmp_ge_u32 s75, 8192\ns_cbranch_scc1 att_wo2")
    wo_dma()
    a("s_branch att_wo")
    a.label("att_wo2")
    a(f"s_setprio 0\nv_mov_b32 v4, 1\ns_waitcnt vmcnt(0)\ns_cmp_lt_u32 s3, 4\ns_cbranch_scc0 att_nt\n{TPL}\natt_nt:")
    a(f"s_waitcnt lgkmcnt(0)\ns_barrier\nds_read_b128 v[{P}:{P+3}], v{AR}\ns_waitcnt lgkmcnt(0)")
    a(f"buffer_store_dwordx4 v[{P}:{P+3}], v12, {W}, s62 offen sc1")
    def flag2(n): a(f"s_waitcnt vmcnt({n})\ns_mov_b64 exec, 1\nbuffer_atomic_add v4, off, {W}, s101 sc1\ns_mov_b64 exec, -1")
    a("s_cmp_lt_u32 s3, 4\ns_cbranch_scc1 out_comp")
    a(f"""s_sub_u32 s60, s3, 4
    s_lshr_b32 s9, s72, 1
    s_lshl_b32 s9, s9, 3
    s_lshl_b32 s10, s73, 2
    s_add_u32 s9, s9, s10
    s_add_u32 s9, s9, s60
    s_lshl_b32 s9, s9, 8
    s_add_u32 s9, s9, {FL2}
    s_mul_i32 s8, s72, {OP}
    s_lshl_b32 s10, s73, 16
    s_add_u32 s8, s8, s10
    s_lshl_b32 s10, s60, 12
    s_add_u32 s8, s8, s10
    s_add_u32 s8, s8, {OF}
    s_mov_b32 s15, 0""")
    flag2(0)
    a("s_mov_b64 exec, 1")
    PA = lambda r: f"v_mov_b32 v{r}, 0\nbuffer_atomic_add v{r}, off, {W}, s9 sc0 sc1"
    if opt("pp"):
        g = int(opt("pp"))
        a(f"{PA(6)}\ns_sleep {g}\no_poll:")
        for x, y in ((7, 6), (6, 7)):
            a(f"{PA(x)}\ns_waitcnt vmcnt(1)\nv_cmp_gt_u32 vcc, 32, v{y}\ns_add_u32 s15, s15, 1\ns_cbranch_vccz o_polled")
        a("s_cmp_lt_u32 s15, 0x80000\ns_cbranch_scc1 o_poll")
    else:
        a(f"o_poll:\n{PA(6)}\ns_add_u32 s15, s15, 1\ns_waitcnt vmcnt(0)\nv_cmp_gt_u32 vcc, 32, v6")
        a(f"s_cmp_gt_u32 s15, 0x40000\ns_cbranch_scc1 o_polled\ns_cbranch_vccz o_polled\ns_sleep {int(opt('psleep2', 0))}\ns_branch o_poll")
    a("o_polled:\ns_mov_b64 exec, -1")
    stamp(a, 7)
    def oissue(c):
        a(f"s_add_u32 m0, s10, {R[1] + 16384*c}")
        a("s_add_u32 s8, s8, 16384" if c else "s_nop 0")
        for i in range(4): a(f"buffer_load_dwordx4 v14, {W}, s8 offen offset:{1024*i} sc1 lds")
    OS_ = eval(opt("osched", "[[0,1],[2],[3],[]]"))
    ni = 0
    for c in range(4):
        for u in OS_[c]: oissue(u); ni += 1
        a(f"s_waitcnt vmcnt({4*(ni-c-1)})\ns_barrier")
    stamp_out(a, 0)
    a("s_endpgm")
    AB, AY, FR = 64, 80, 192
    a.label("out_comp")
    a("s_lshr_b32 s66, s3, 1\ns_and_b32 s67, s3, 1")
    srd(a, sOUT, 34, 2048 * 512 * 2)
    a(f"""v_and_b32 v1, 31, v0
    v_lshrrev_b32 v2, 5, v0
    s_lshl_b32 s9, s67, 5
    s_lshl_b32 s10, s73, 6
    s_add_u32 s9, s9, s10
    v_add_u32 v3, s9, v1
    v_bfe_u32 v9, v0, 3, 2
    v_lshlrev_b32 v6, 9, v9
    v_and_b32 v9, 1, v9
    v_xor_b32 v9, v9, v2
    v_lshl_add_u32 v6, v9, 7, v6
    v_and_b32 v9, 7, v0
    v_lshl_add_u32 v6, v9, 4, v6
    s_lshl_b32 s9, s67, 11
    s_add_u32 s9, s9, {R[1]}
    v_add_u32 v6, s9, v6
    v_bfe_u32 v9, v0, 2, 2
    v_lshl_add_u32 v7, v2, 2, v9
    v_lshlrev_b32 v7, 7, v7
    v_lshrrev_b32 v9, 1, v9
    v_xor_b32 v9, s66, v9
    v_lshl_add_u32 v7, v9, 6, v7
    v_and_b32 v9, 1, v0
    v_lshl_add_u32 v7, v9, 5, v7
    v_bfe_u32 v9, v0, 4, 1
    v_lshl_add_u32 v7, v9, 4, v7
    v_bfe_u32 v9, v0, 1, 1
    v_lshl_add_u32 v7, v9, 3, v7
    v_add_u32 v7, {R[3]}, v7
    v_bfe_u32 v9, v0, 2, 1
    v_lshlrev_b32 v8, 4, v9
    v_and_b32 v9, 3, v0
    v_add_u32 v8, v8, v9
    v_bfe_u32 v9, v0, 3, 2
    v_lshl_add_u32 v8, v9, 2, v8
    s_lshl_b32 s9, s66, 5
    s_lshl_b32 s10, s74, 6
    s_add_u32 s9, s9, s10
    v_add_u32 v8, s9, v8
    v_sub_u32 v9, 512, v8
    s_sub_u32 s12, 16, s72
    s_and_b32 s12, s12, 15
    s_cmp_ge_u32 s74, 4
    s_cselect_b32 s12, s12, s72
    s_cselect_b32 s13, -1, 0
    v_bfi_b32 v8, s13, v9, v8
    v_lshlrev_b32 v8, 4, v8
    v_mul_u32_u24 v9, {TP}, v2
    v_add_u32 v8, v8, v9
    s_lshl_b32 s12, s12, 1
    s_add_u32 s12, s12, s67
    s_mul_i32 s12, s12, {16*TP}
    s_add_u32 s12, s12, {TF}
    s_lshl_b32 s9, s3, 12
    v_add_u32 v29, s9, v14
    v_xor_b32 v30, 4096, v29
    v_lshlrev_b32 v28, 14, v3
    v_lshl_add_u32 v28, v2, 5, v28
    s_lshl_b32 s14, s72, 10
    s_lshl_b32 s10, s74, 7
    s_add_u32 s14, s14, s10
    s_lshl_b32 s10, s66, 6
    s_add_u32 s14, s14, s10
    v_lshlrev_b32 v5, 2, v3
    s_lshl_b32 s11, s72, 9
    s_add_u32 s11, s11, {GF}
    s_mov_b32 s15, 0""")
    ab = vr(AB, 16); ay = vr(AY, 16)
    AZ = 224
    FG0 = len(a.lines)
    a("""s_cmp_eq_u32 s72, 0
    s_cselect_b32 s9, 1, 0
    s_add_u32 s9, s9, 127
    s_lshl_b32 s10, s67, 4
    v_add_u32 v15, s10, v2
    v_cvt_f32_u32 v15, v15
    v_mul_f32 v15, 4.0, v15""")
    a("""s_sub_u32 s77, 0, s67
    s_xor_b32 s77, s77, s13
    s_and_b32 s77, s77, 0x80008000
    v_sub_u32 v10, s9, v3
    v_and_b32 v10, 127, v10
    v_bfi_b32 v10, s13, v10, v3
    v_cvt_f32_u32 v10, v10
    v_mul_f32 v10, 0x3c000000, v10
    v_mul_f32 v11, v15, v10
    v_mul_f32 v12, 0x41000000, v10
    v_cos_f32 v12, v12
    s_nop 0
    v_add_f32 v12, v12, v12""")
    WF = [96 + 4 * k for k in range(24)] + [32 + 4 * k for k in range(8)]
    early = [h for h in range(32) if 128 <= WF[h] < 160 or 36 <= WF[h] < 48] if opt("ewo", "1") == "1" else []
    eq = list(early)
    def word(h):
        a(f"ds_read_b64_tr_b16 v[{WF[h]}:{WF[h]+1}], v7 offset:{2048*h}")
        a(f"ds_read_b64_tr_b16 v[{WF[h]+2}:{WF[h]+3}], v7 offset:{2048*h+1024}")
    for k in range(8):
        r = 112 + 8 * (k & 1); o_ = 112 + 8 * (1 - (k & 1))
        for u in range(4):
            x, y = r + 2 * u, r + 2 * u + 1
            if k < 2: a(f"v_fmamk_f32 v13, v10, {fhex(float(8*k+u))}, v11\nv_cos_f32 v{x}, v13\nv_sin_f32 v{y}, v13\ns_nop 0")
            else: a(f"v_fma_f32 v{x}, v12, v{o_+2*u}, -v{x}\nv_fma_f32 v{y}, v12, v{o_+2*u+1}, -v{y}")
            a(f"v_cvt_pk_bf16_f32 v{FREG[k]+u}, v{x}, v{y}")
            d = FREG[8 + k] + u
            if u == 0: a(f"v_mov_b32 v{d}, v{FREG[k]}")
            if u == 2: a(f"v_xor_b32 v{d}, 0x80008000, v{FREG[k]+2}")
            if u == 1: a(f"v_cvt_pk_bf16_f32 v{d}, -v{y}, v{x}\nv_xor_b32 v{d}, s77, v{d}")
            if u == 3: a(f"v_cvt_pk_bf16_f32 v{d}, v{y}, -v{x}\nv_xor_b32 v{d}, s77, v{d}")
            if (u & 1) and eq: word(eq.pop(0))
    fgl = a.lines[FG0:]; del a.lines[FG0:]
    FCUT = int(opt("fcut", 70))
    a.lines += fgl[:FCUT]
    flag2(0)
    stamp(a, 7)
    a(f"t_poll:\n{TCHK}")
    a(f"s_add_u32 s15, s15, 1\ns_cmp_gt_u32 s15, 0x40000\ns_cbranch_scc1 t_polled\ns_cbranch_vccz t_polled\ns_sleep {int(opt('psleep3', 8))}\n{TPL}\ns_waitcnt vmcnt(0)\ns_branch t_poll\nt_polled:")
    for k in range(8):
        a(f"buffer_load_dwordx4 v[{FR+4*k}:{FR+4*k+3}], v8, {W}, s12 offen sc1")
        if k < 7: a(f"s_add_u32 s12, s12, {2*TP}")
    a.lines += fgl[FCUT:]
    az = vr(AZ, 16)
    for k in range(8):
        a(f"s_waitcnt vmcnt({7-k})")
        a(f"{MF} {az}, {vr(FR+4*k,4)}, {vr(FREG[8+k],4)}, {'0' if k == 0 else az}")
        a(f"{MF} {ay}, {vr(FR+4*k,4)}, {vr(FREG[k],4)}, {'0' if k == 0 else ay}")
    for h in range(32):
        if h not in early: word(h)
    for i in range(4): a(f"ds_write_b128 v29, v[{AZ+4*i}:{AZ+4*i+3}] offset:{R[0]+1024*i}")
    a("s_waitcnt lgkmcnt(0)")
    def ords(c):
        for h in range(8): a(f"ds_read_b128 v[{FR+32*(c&1)+4*h}:{FR+32*(c&1)+4*h+3}], v6 offset:{16384*c+4096*(h>>1)+256*(h&1)}")
    SPL = int(opt("spl", 3))
    a("s_barrier")
    ords(0)
    a(f"buffer_load_dword v24, v5, {W}, s11 offen sc1")
    for c in range(4):
        for h in range(8):
            if h <= SPL: a(f"s_waitcnt lgkmcnt({7-h if h < SPL else 0})")
            a(f"{MF} {ab}, {vr(WF[8*c+h],4)}, {vr(FR+32*(c&1)+4*h,4)}, {'0' if c + h == 0 else ab}")
            if h == SPL and c < 3:
                a("s_barrier")
                if c == 1:
                    for i in range(4): a(f"ds_read_b128 v[{96+4*i}:{96+4*i+3}], v30 offset:{R[0]+1024*i}")
                ords(c + 1)
            if c == 3 and h < 4:
                for i in range(4 * h, 4 * h + 4): a(f"v_add_f32 v{AY+i}, v{AY+i}, v{96+i}")
            if c == 3 and h == 4: a("s_waitcnt vmcnt(0)\nv_sub_f32 v25, 1.0, v24")
            if c == 3 and 4 <= h:
                for i in range(4 * (h - 4), 4 * (h - 3)): a(f"v_mul_f32 v{AY+i}, v{AY+i}, v24")
    a.nop(8)
    for i in range(16): a(f"v_fmac_f32 v{AY+i}, v{AB+i}, v25")
    for i in range(8): a(f"v_cvt_pk_bf16_f32 v{FR+i}, v{AY+2*i}, v{AY+2*i+1}")
    a(f"buffer_store_dwordx4 v[{FR}:{FR+3}], v28, s[{sOUT}:{sOUT+3}], s14 offen")
    a(f"buffer_store_dwordx4 v[{FR+4}:{FR+7}], v28, s[{sOUT}:{sOUT+3}], s14 offen offset:16")
    stamp_out(a, 0)
    a("s_endpgm")
    a.label("att_fb")
    a("s_cmp_lg_u32 s15, 0\ns_cbranch_scc1 att_fin\ns_mov_b32 s15, 1\ns_mov_b32 s75, 0\ns_mov_b32 s14, 0xff800000\nv_mov_b32 v3, s14")
    def fbtile(j, mask):
        a(f"ds_read_b128 {vr(KRG,4)}, v{AK} offset:{4096*j}\ns_waitcnt lgkmcnt(0)")
        a(f"{MF} {vr(SA,16)}, {vr(KRG,4)}, {q}, 0")
        a.nop(12)
        if mask == 8:
            for i in range(16): a(f"v_bfi_b32 v{SA+i}, v{TM+i}, s14, v{SA+i}")
        if mask == 0:
            for i in range(16): a(f"v_bfi_b32 v{SA+i}, v{TM+i}, v{SA+i}, s14")
        for i in range(8): a(f"v_max3_f32 v{m}, v{m}, v{SA+2*i}, v{SA+2*i+1}")
    fbtile(8, 8)
    for n in range(8):
        a(f"s_cmp_eq_u32 s61, {n+1}\ns_cbranch_scc1 att_fb2")
        fbtile(7 - n, 0 if n == 7 else None)
    a.label("att_fb2")
    a(f"v_mov_b32 v4, v{m}\ns_nop 1\nv_permlane32_swap_b32 v4, v{m}\ns_nop 0\nv_max_f32 v{m}, v4, v{m}")
    a(f"v_sub_f32 v{CN}, 0, v{m}\nv_sub_f32 v{CN+1}, 0, v{m}")
    for i in range(2, 16, 2): a(f"v_mov_b64 v[{CN+i}:{CN+i+1}], v[{CN}:{CN+1}]")
    a("s_branch att_retry")
    if opt("lpos", "end") == "end": a.lines += l_lines

def desc(name, nv):
    return f""".p2align 6
.amdhsa_kernel {name}
  .amdhsa_next_free_vgpr {nv}
  .amdhsa_next_free_sgpr 102
  .amdhsa_accum_offset {(nv+3)//4*4}
  .amdhsa_group_segment_fixed_size 0
  .amdhsa_kernarg_size 96
  .amdhsa_user_sgpr_count 2
  .amdhsa_user_sgpr_kernarg_segment_ptr 1
  .amdhsa_system_sgpr_workgroup_id_x 1
.end_amdhsa_kernel
"""

a = Asm()
ka(a)
for m in check_hazards(a.lines): print("HAZARD", m, file=sys.stderr)
hdr = """; out = g*Re(DFT_seq(DFT_hid(x))) + (1-g)*(sliding-window attention(x) @ wo), one persistent launch, 256 workgroups of 8 waves.
"""
hdr += "; @launch grid=(256,1,1) block=(512,1,1) lds=163840\n"
hdr += f'.amdgcn_target "amdgcn-amd-amdhsa--gfx950"\n.text\n.globl {NAME}\n.type {NAME},@function\n'
out = hdr + a.text() + '.section .rodata,"a"\n' + desc(NAME, 256)
fn = [x for x in sys.argv[1:] if not x.startswith("--")][0]
open(fn, "w").write(out)
```

```python
import sys, math
from asmlib import *

def opt(name, default=None):
    for x in sys.argv:
        if x == "--" + name: return True
        if x.startswith("--" + name + "="): return x.split("=", 1)[1]
    return default
STAMP = opt("stamp", False)
STAG = int(opt("stag", 4))
PSLEEP = int(opt("psleep", 0))
FORCEFB = opt("forcefb", False)
KVB, TF, OF, GF, FL1, FL2, FL3 = 0x000000, 0x400000, 0x700000, 0xA00000, 0xA80000, 0xB00000, 0xB80000
STF = 0xC00000
WS_BYTES = 0x1000000
TP = 4224
OP = 131072 + 1024
MF = "v_mfma_f32_32x32x16_bf16"
MF16 = "v_mfma_f32_16x16x32_bf16"
QSCALE = 0.25 * math.log2(math.e)
sX, sW, sWS, sG, sDB, sOUT = 40, 44, 48, 52, 56, 68
NAME = 'gated_mix__spectral_fnet__sliding_block__prompt_kernel'
W = f"s[{sWS}:{sWS+3}]"
R = [32768 * i for i in range(5)]
L_KV, L_QB, L_ZX, L_OS = R[1], R[2] + 16384, R[2] + 20480, R[0] + 16384

def srd(a, d, ptr, nbytes):
    a(f"s_mov_b32 s{d}, s{ptr}\ns_mov_b32 s{d+1}, s{ptr+1}\ns_mov_b32 s{d+2}, {nbytes}\ns_mov_b32 s{d+3}, 0x00020000")

def entry(a, name):
    a(f".p2align 12\n{name}:")
    stamp(a, 0)
    a("s_load_dwordx16 s[16:31], s[0:1], 0")
    a("s_load_dwordx8 s[32:39], s[0:1], 64")
    a(f"s_cmp_ge_u32 s2, 256\ns_cbranch_scc1 {name}_end")
    a("v_lshrrev_b32 v1, 6, v0\nv_and_b32 v0, 63, v0\nv_readfirstlane_b32 s3, v1")

def stamp(a, i, p1=False):
    if opt("p1st") and i and not p1: return
    if STAMP: a(f"s_memrealtime s[{80+2*i}:{81+2*i}]")

def stamp_out(a, kidx):
    if not STAMP: return
    a("s_memrealtime s[96:97]\ns_waitcnt vmcnt(0) lgkmcnt(0)\ns_memrealtime s[98:99]\ns_waitcnt lgkmcnt(0)")
    a(f"s_lshl_b32 s78, s2, 3\ns_add_u32 s78, s78, s3\ns_lshl_b32 s78, s78, 7\ns_add_u32 s78, s78, {STF + kidx * 262144}")
    a("s_mov_b64 exec, 1")
    for i in range(20): a(f"v_mov_b32 v{4+i}, s{80+i}")
    a("v_mov_b32 v2, s78")
    for i in range(5): a(f"buffer_store_dwordx4 v[{4+4*i}:{7+4*i}], v2, {W}, 0 offen offset:{16*i}")

QA, QB = 20, 24
TM, PM, VB, KRG, SA, SB, SC_, CN, P, O = 192, 208, 216, 144, 64, 80, 128, 112, 32, 128
GX = 248
FREG = [160 + 4 * k for k in range(8)] + [96 + 4 * k for k in range(4)] + [48 + 4 * k for k in range(4)]
AK, AV, AO, AR = 8, 9, 10, 11
NONCE = 16

def att_setup(a):
    a("""v_and_b32 v2, 31, v0
    v_lshrrev_b32 v3, 5, v0
    v_lshlrev_b32 v4, v2, -2
    v_lshlrev_b32 v5, 2, v3
    v_lshrrev_b32 v4, v5, v4
    s_mov_b32 s13, 0xffff""")
    for r in range(16): a(f"v_bfe_i32 v{TM+r}, v4, {(r & 3) + 8 * (r >> 2)}, 1")
    for p in range(8): a(f"v_bfi_b32 v{PM+p}, s13, v{TM+2*p}, v{TM+2*p+1}")
    a(f"v_mov_b32 v{VB}, 0x3f803f80\nv_mov_b32 v{VB+1}, v{VB}")
    for i in range(2, 32, 2): a(f"v_mov_b64 v[{VB+i}:{VB+i+1}], v[{VB}:{VB+1}]")
    a(f"""s_and_b32 s9, s3, 3
    s_lshr_b32 s10, s3, 2
    s_lshl_b32 s11, s9, 12
    s_add_u32 s11, s11, {L_KV}
    s_lshl_b32 s12, s10, 10
    s_add_u32 s12, s12, s11
    v_lshlrev_b32 v4, 4, v0
    v_add_u32 v{AK}, s12, v4
    s_lshl_b32 s12, s10, 8
    s_add_u32 s12, s12, s11
    v_add_u32 v{AV}, s12, v4
    v_and_b32 v5, 15, v0
    v_mul_u32_u24 v5, 528, v5
    s_and_b32 s12, s4, 1
    v_xor_b32 v6, s12, v3
    v_lshl_add_u32 v5, v6, 7, v5
    v_bfe_u32 v6, v0, 4, 1
    v_lshl_add_u32 v5, v6, 4, v5
    s_lshl_b32 s12, s10, 8
    s_lshl_b32 s11, s9, 5
    s_add_u32 s12, s12, s11
    s_add_u32 s12, s12, {L_OS}
    v_add_u32 v{AO}, s12, v5
    s_mul_i32 s12, s3, 1056
    s_add_u32 s12, s12, {L_OS}
    v_mul_u32_u24 v5, 528, v3
    v_lshl_add_u32 v5, v2, 4, v5
    v_add_u32 v{AR}, s12, v5
    v_mul_u32_u24 v5, {OP}, v3
    v_lshl_add_u32 v12, v2, 4, v5""")
    a(f"""s_lshl_b32 s61, s4, 2
    s_add_u32 s61, s61, s9
    s_add_u32 s61, s61, 1
    s_min_u32 s61, s61, 9
    s_mul_i32 s62, s3, {2*OP}
    s_lshr_b32 s11, s4, 3
    s_lshl_b32 s11, s11, 16
    s_add_u32 s62, s62, s11
    s_lshl_b32 s11, s7, 12
    s_add_u32 s62, s62, s11
    s_and_b32 s11, s4, 7
    s_lshl_b32 s11, s11, 9
    s_add_u32 s62, s62, s11
    s_add_u32 s62, s62, {OF}""")
    a("""s_and_b32 s72, s2, 7
    s_lshl_b32 s72, s72, 1
    s_bfe_u32 s11, s2, 0x10003
    s_add_u32 s72, s72, s11
    s_bfe_u32 s73, s2, 0x10004
    s_lshr_b32 s74, s2, 5
    s_mov_b32 s75, 0
    v_lshlrev_b32 v14, 4, v0
    v_lshrrev_b32 v4, 3, v0
    v_lshlrev_b32 v4, 10, v4
    v_bfe_u32 v5, v0, 2, 1
    v_bfe_u32 v6, v0, 4, 1
    v_xor_b32 v5, v5, v6
    v_lshl_add_u32 v4, v5, 6, v4
    v_and_b32 v5, 3, v0
    v_lshl_add_u32 v4, v5, 4, v4
    s_lshl_b32 s11, s3, 16
    s_lshl_b32 s12, s74, 7
    s_add_u32 s11, s11, s12
    v_add_u32 v13, s11, v4""")
    srd(a, sOUT, 30, 512 * 512 * 2)

L_CNT = R[2] + 32512
def signal(a, k):
    a(f"s_mov_b64 exec, 1\nds_add_u32 v{CA}, v{CA+1} offset:{4*k}\ns_mov_b64 exec, -1")
_wn = [0]
def waitcnt_lds(a, k, n):
    _wn[0] += 1; t = f"lw{_wn[0]}"
    if opt("lsleep"):
        a(f"s_branch {t}e\n{t}:\ns_sleep {int(opt('lsleep'))}\n{t}e:\nds_read_b32 v{CA+2}, v{CA} offset:{4*k}\ns_waitcnt lgkmcnt(0)\nv_readfirstlane_b32 s78, v{CA+2}\ns_cmp_lt_u32 s78, {n}\ns_cbranch_scc1 {t}")
    else:
        a(f"{t}:\nds_read_b32 v{CA+2}, v{CA} offset:{4*k}\ns_waitcnt lgkmcnt(0)\nv_readfirstlane_b32 s78, v{CA+2}\ns_cmp_lt_u32 s78, {n}\ns_cbranch_scc1 {t}")
CA = 28

def get_nonce(a, tag, NONCE=None):
    NONCE = NONCE or (127 if tag == "ln" else 16)
    a("s_mov_b32 s15, 0")
    a(f"{tag}_n0:\nv_readfirstlane_b32 s63, v{NONCE}\ns_add_u32 s15, s15, 1\ns_cmp_lg_u32 s63, 0\ns_cbranch_scc1 {tag}_n1")
    a(f"s_cmp_gt_u32 s15, 0x40000\ns_cbranch_scc1 {tag}_n1\ns_sleep 2\nbuffer_load_dword v{NONCE}, off, s[{sDB}:{sDB+3}], 0 sc1\ns_waitcnt vmcnt(0)\ns_branch {tag}_n0")
    a(f"{tag}_n1:")

def ka(a):
    N = NAME
    entry(a, N)
    a(f"""s_getpc_b64 s[10:11]
    {N}_pc:
    s_nop 2
    s_sub_u32 s9, s3, 4
    s_cmp_ge_u32 s9, 3
    s_cbranch_scc1 {N}_npf
    s_lshl_b32 s9, s9, 13
    s_sub_u32 s9, s9, {N}_pc-{N}
    v_lshl_add_u32 v4, v0, 7, s9
    v_ashrrev_i32 v5, 31, v4
    v_add_co_u32 v4, vcc, s10, v4
    v_mov_b32 v6, s11
    s_nop 0
    v_addc_co_u32 v5, vcc, v6, v5, vcc
    global_load_dword v127, v[4:5], off
    {N}_npf:""")
    a("""s_and_b32 s8, s2, 7
    s_lshr_b32 s9, s2, 3
    s_lshr_b32 s10, s8, 1
    s_and_b32 s11, s8, 1
    s_lshl_b32 s4, s10, 2
    s_and_b32 s12, s9, 3
    s_add_u32 s4, s4, s12
    s_lshl_b32 s5, s11, 2
    s_bfe_u32 s13, s9, 0x20002
    s_add_u32 s5, s5, s13
    s_lshr_b32 s6, s9, 4
    s_lshl_b32 s7, s5, 1
    s_add_u32 s7, s7, s6""")
    a(f"v_mov_b32 v8, {L_CNT}\nv_mov_b64 v[4:5], 0\nv_mov_b64 v[6:7], 0\nds_write_b128 v8, v[4:7]\nds_write_b128 v8, v[4:7] offset:16")
    a("s_and_b32 s60, s3, 3")
    if STAG == 1: a("s_lshr_b32 s66, s9, 2\ns_lshl_b32 s13, s12, 1\ns_add_u32 s66, s66, s13")
    elif STAG == 0: a("s_mov_b32 s66, 0")
    else:
        XM = {2: (1, 1), 3: (1, 2), 4: (3, 1), 5: (1, 0), 6: (3, 0), 7: (3, 1), 8: (3, 1)}[STAG]
        a(f"s_lshr_b32 s66, s9, 2\ns_add_u32 s66, s66, s12\ns_and_b32 s66, s66, {XM[0]}\ns_lshl_b32 s66, s66, {XM[1]}")
    if STAG == 8:
        T = eval(opt("perm", "[[0,1,2,3,4,5,6,7],[0,3,4,5,6,7,1,2],[4,5,6,7,0,1,2,3],[4,7,2,1,0,3,5,6]]"))
        enc = [sum(c << (4 * k) for k, c in enumerate(t)) for t in T]
        a(f"s_mov_b32 s15, {enc[0]}")
        for k in range(1, 4): a(f"s_cmp_eq_u32 s66, {2*k}\ns_cselect_b32 s15, {enc[k]}, s15")
    a("s_lshl_b32 s64, s8, 2\ns_add_u32 s64, s64, s12\ns_lshr_b32 s65, s9, 2")
    XV, WV, QV, AXV, AA, WG, FP, ACC, XF, PK, ZB = 96, 100, 102, 104, 112, 128, 48, 64, 16, 32, 96
    global CA
    CA = 124
    a(f"""v_lshrrev_b32 v1, 3, v0
    v_and_b32 v2, 7, v0
    v_lshrrev_b32 v3, 4, v0
    v_xor_b32 v2, v2, v3
    v_lshlrev_b32 v2, 4, v2
    s_lshl_b32 s8, s4, 17
    s_lshl_b32 s10, s60, 15
    s_add_u32 s8, s8, s10
    v_lshl_add_u32 v5, v1, 10, v2
    v_add_u32 v{XV}, s8, v5
    v_add_u32 v{XV+1}, 7168, v{XV}
    v_xor_b32 v{XV+1}, 64, v{XV+1}
    v_add_u32 v{XV+2}, 14336, v{XV}
    v_add_u32 v{XV+3}, 14336, v{XV+1}
    v_mul_u32_u24 v5, 3072, v1
    v_bfe_u32 v6, v0, 2, 1
    v_and_b32 v7, 1, v3
    v_xor_b32 v6, v6, v7
    v_lshl_add_u32 v5, v6, 6, v5
    v_and_b32 v7, 3, v0
    v_lshl_add_u32 v5, v7, 4, v5
    s_mul_i32 s8, s60, 49152
    s_lshl_b32 s10, s6, 10
    s_add_u32 s10, s10, s8
    s_lshl_b32 s11, s5, 7
    s_add_u32 s10, s10, s11
    s_add_u32 s10, s10, 1024
    v_add_u32 v{WV}, s10, v5
    v_add_u32 v{WV+1}, 23552, v{WV}
    s_lshl_b32 s14, s60, 12
    s_lshl_b32 s67, s60, 11
    s_waitcnt lgkmcnt(0)""")
    srd(a, sX, 16, 2048 * 512 * 2)
    srd(a, sW, 28, 512 * 1536 * 2)
    SX = f"s[{sX}:{sX+3}]"; SW = f"s[{sW}:{sW+3}]"
    def chunk_idx(n):
        if STAG == 1: a(f"s_add_u32 s9, s66, {n}\ns_and_b32 s9, s9, 7")
        elif STAG == 7:
            if n == 0: a("s_mov_b32 s9, 0")
            else: a(f"s_add_u32 s9, s66, {n}\ns_cmp_gt_u32 s9, 7\ns_cselect_b32 s10, 7, 0\ns_sub_u32 s9, s9, s10")
        elif STAG == 8:
            a(f"s_lshr_b32 s9, s15, {4*n}\ns_and_b32 s9, s9, 7")
        else: a(f"s_xor_b32 s9, s66, {n}")
    pieces = []
    PER = int(opt("per", 1))
    def dma(x):
        a(x)
        for _ in range(PER):
            if pieces: a(pieces.pop(0))
    def issue(u):
        reg = R[u % 5]
        if u < 8:
            chunk_idx(u)
            a(f"s_add_u32 m0, s14, {reg}\ns_lshl_b32 s10, s9, 7\ns_mul_i32 s11, s9, 196608")
            for i in range(4): dma(f"buffer_load_dwordx4 v{XV+i}, {SX}, s10 offen offset:{1024*i} lds")
            a(f"s_add_u32 m0, s67, {reg+16384}\ns_nop 0")
            for i in range(2): dma(f"buffer_load_dwordx4 v{WV+i}, {SW}, s11 offen offset:{1024*i} lds")
            return 6
        if u == 8:
            a(f"s_lshr_b32 s12, s67, 1")
            for n in range(8):
                chunk_idx(n)
                a(f"s_add_u32 m0, s12, {reg+4096*n}\ns_mul_i32 s11, s9, 196608")
                dma(f"buffer_load_dwordx4 v{QV}, {SW}, s11 offen lds")
            return 8
        a(f"s_lshl_b32 s12, s14, 1\ns_movk_i32 s10, {512*(u-9)}")
        for i in range(8):
            if i % 4 == 0: a(f"s_add_u32 m0, s12, {reg+1024*i}\ns_nop 0")
            dma(f"buffer_load_dwordx4 v{AXV+i}, {SX}, s10 offen offset:{1024*(i%4)} lds")
        return 8
    NGU = int(opt("ng", 2))
    a(f"s_cmp_ge_u32 s3, 4\ns_cbranch_scc1 {N}_L")
    for u in range(NGU): issue(u)
    main_lines = a.lines; a.lines = []
    a(".p2align 6")
    a.label(f"{N}_L")
    def late_setup():
        a(f"""v_lshrrev_b32 v5, 2, v0
        v_mul_u32_u24 v5, 3072, v5
        v_lshl_add_u32 v5, v7, 4, v5
        s_lshl_b32 s10, s7, 6
        s_add_u32 s10, s10, s8
        v_add_u32 v{QV}, s10, v5""")
        a(f"""v_and_b32 v1, 31, v0
        v_lshrrev_b32 v2, 5, v0
        v_xor_b32 v5, v1, v2
        v_lshlrev_b32 v5, 4, v5
        v_lshl_add_u32 v5, v2, 17, v5
        s_lshl_b32 s10, s64, 2
        s_add_u32 s10, s10, s60
        s_lshl_b32 s10, s10, 10
        v_add_u32 v5, s10, v5""")
        for n in range(8):
            a(f"v_xor_b32 v{AXV+n}, {32*n}, v5")
            if n: a(f"v_add_u32 v{AXV+n}, {n*2*131072-1024*(n%4)}, v{AXV+n}")
        a(f"""v_and_b32 v5, 15, v0
        v_xor_b32 v5, v5, v2
        v_lshlrev_b32 v5, 4, v5
        v_lshl_add_u32 v5, v1, 9, v5
        s_lshr_b32 s10, s60, 1
        s_lshl_b32 s10, s10, 14
        s_add_u32 s10, s10, {R[4]}
        v_add_u32 v{AA}, s10, v5""")
        for ks in range(1, 8): a(f"v_xor_b32 v{AA+ks}, {32*ks}, v{AA}")
        a(f"v_mov_b32 v{CA}, {L_CNT}\nv_mov_b32 v{CA+1}, 1")
        a("""s_lshl_b32 s10, s65, 5
        v_add_u32 v5, s10, v1
        s_and_b32 s11, s60, 1
        v_lshlrev_b32 v15, 31, v5
        v_or_b32 v15, 1.0, v15
        v_sub_u32 v6, v5, s11
        v_ashrrev_i32 v6, 31, v6
        v_and_b32 v7, 256, v6
        v_or_b32 v5, v5, v7
        v_cvt_f32_u32 v120, v5
        v_mul_f32 v120, 0x3b000000, v120
        s_mul_i32 s11, s11, 0x3e800000
        v_not_b32 v6, v6
        v_and_b32 v121, s11, v6
        v_cvt_f32_u32 v5, v2
        v_mul_f32 v5, 0x41000000, v5
        v_fmac_f32 v121, v5, v120""")
    def gen_pieces():
        a("v_mul_f32 v123, 0x41800000, v120\nv_cos_f32 v123, v123\ns_nop 0\nv_add_f32 v123, v123, v123")
        for ks in range(16):
            r = 16 + 8 * (ks & 1); o_ = 16 + 8 * (1 - (ks & 1))
            for p in range(4):
                x, y = r + 2 * p, r + 2 * p + 1
                if ks < 2:
                    pieces.append(f"v_fmamk_f32 v{x}, v120, {fhex(float(16*ks+2*p))}, v121\nv_add_f32 v{y}, v{x}, v120\nv_cos_f32 v{x}, v{x}\nv_cos_f32 v{y}, v{y}\ns_nop 0\nv_cvt_pk_bf16_f32 v{WG+4*ks+p}, v{x}, v{y}")
                else:
                    pieces.append(f"v_fma_f32 v{x}, v123, v{o_+2*p}, -v{x}\nv_fma_f32 v{y}, v123, v{o_+2*p+1}, -v{y}\nv_cvt_pk_bf16_f32 v{WG+4*ks+p}, v{x}, v{y}")
    def first():
        srd(a, sWS, 38, WS_BYTES)
        srd(a, sDB, 36, 256)
        a(f"s_xor_b32 s9, s60, 3\ns_or_b32 s9, s9, s2\ns_cmp_lg_u32 s9, 0\ns_cbranch_scc1 {N}_nn")
        a(f"v_lshlrev_b32 v4, 8, v0\nv_mov_b32 v5, 0\ns_mov_b32 s9, {FL2}\nbuffer_store_dword v5, v4, {W}, s9 offen sc1")
        a("s_memrealtime s[10:11]\ns_waitcnt vmcnt(0) lgkmcnt(0)\ns_or_b32 s10, s10, 1\nv_mov_b32 v4, s10\ns_mov_b64 exec, 1")
        a(f"buffer_store_dword v4, off, s[{sDB}:{sDB+3}], 0 sc1\ns_mov_b64 exec, -1")
        a.label(f"{N}_nn")
    def touch():
        if opt("notouch"): return
        a(f"s_cmp_lg_u32 s60, 3\ns_cbranch_scc1 {N}_ntt")
        srd(a, sOUT, 34, 2048 * 512 * 2)
        srd(a, sG, 30, 512 * 512 * 2)
        TM_ = opt("tmode", "0")
        if TM_ == "0":
            a(f"v_lshlrev_b32 v4, 21, v0\nv_add_u32 v4, 0x1fff80, v4\ns_mov_b64 exec, 63\nbuffer_load_dword v127, v4, {W}, 0 offen sc1\ns_mov_b64 exec, 1")
            a(f"buffer_load_dword v127, off, s[{sOUT}:{sOUT+3}], 0 sc1\nbuffer_load_dword v127, off, s[{sG}:{sG+3}], 0")
        if TM_ == "a":
            a(f"v_lshlrev_b32 v4, 18, v0\nv_add_u32 v4, 0x3ff80, v4\ns_mov_b32 exec_hi, 0xffff\nbuffer_load_dword v127, v4, {W}, 0 offen sc1")
            a(f"s_mov_b64 exec, 255\nbuffer_load_dword v127, v4, s[{sOUT}:{sOUT+3}], 0 offen sc1\ns_mov_b64 exec, 3\nbuffer_load_dword v127, v4, s[{sG}:{sG+3}], 0 offen\ns_mov_b64 exec, 1")
        if TM_ == "b":
            a(f"v_lshlrev_b32 v4, 21, v0\ns_lshr_b32 s9, s2, 3\ns_lshl_b32 s9, s9, 16\ns_add_u32 s9, s9, 0xff80\ns_mov_b64 exec, 63\nbuffer_load_dword v127, v4, {W}, s9 offen sc1\ns_mov_b64 exec, 1")
            a(f"buffer_load_dword v127, off, s[{sOUT}:{sOUT+3}], s9 sc1\ns_and_b32 s9, s9, 0x7ffff\nbuffer_load_dword v127, off, s[{sG}:{sG+3}], s9")
        if TM_ == "c":
            a(f"v_lshlrev_b32 v4, 18, v0\ns_lshr_b32 s9, s2, 3\ns_lshl_b32 s9, s9, 13\ns_add_u32 s9, s9, 0x1f80\ns_mov_b32 exec_hi, 0xffff\nbuffer_load_dword v127, v4, {W}, s9 offen sc1")
            a(f"s_mov_b64 exec, 255\nbuffer_load_dword v127, v4, s[{sOUT}:{sOUT+3}], s9 offen sc1\ns_mov_b64 exec, 3\nbuffer_load_dword v127, v4, s[{sG}:{sG+3}], s9 offen\ns_mov_b64 exec, 1")
        if True: a(f"buffer_load_dword v127, off, s[{sDB}:{sDB+3}], 0 offset:128 sc1")
        a("s_mov_b64 exec, -1")
        a.label(f"{N}_ntt")
    def warm():
        WM = opt("warm", "q")
        if "q" in WM:
            a(f"""s_cmp_lg_u32 s60, 0
            s_cbranch_scc1 {N}_w1
            s_and_b32 s9, s4, 3
            s_lshl_b32 s9, s9, 1
            s_add_u32 s9, s9, s6
            s_mul_i32 s9, s9, 196608
            s_lshl_b32 s10, s5, 7
            s_add_u32 s9, s9, s10
            v_mul_u32_u24 v4, 3072, v0
            buffer_load_dword v127, v4, {SW}, s9 offen
            {N}_w1:""")
        if "x" in WM:
            a(f"""s_cmp_lg_u32 s60, 1
            s_cbranch_scc1 {N}_w2
            s_lshl_b32 s9, s64, 12
            s_lshl_b32 s10, s65, 7
            s_add_u32 s9, s9, s10
            v_lshrrev_b32 v4, 2, v0
            v_lshlrev_b32 v4, 17, v4
            v_and_b32 v5, 3, v0
            v_lshl_add_u32 v4, v5, 10, v4
            buffer_load_dword v127, v4, {SX}, s9 offen
            {N}_w2:""")
        if "o" in WM:
            srd(a, sG, 30, 512 * 512 * 2)
            a(f"""s_cmp_lt_u32 s60, 2
            s_cbranch_scc1 {N}_w3
            s_lshr_b32 s9, s2, 3
            s_lshl_b32 s9, s9, 1
            s_add_u32 s9, s9, s60
            s_sub_u32 s9, s9, 2
            s_lshl_b32 s9, s9, 13
            v_lshlrev_b32 v4, 7, v0
            buffer_load_dword v127, v4, s[{sG}:{sG+3}], s9 offen
            {N}_w3:""")
    def gw_loads():
        srd(a, sG, 32, 1024)
        a(f"""v_lshlrev_b32 v6, 5, v0
        v_and_b32 v6, 1023, v6
        buffer_load_dwordx4 v[56:59], v6, s[{sG}:{sG+3}], 0 offen
        buffer_load_dwordx4 v[60:63], v6, s[{sG}:{sG+3}], 0 offen offset:16""")
    def gate_loads():
        a(f"""s_lshl_b32 s76, s4, 7
        s_lshl_b32 s9, s7, 3
        s_add_u32 s76, s76, s9
        s_lshl_b32 s9, s60, 1
        s_add_u32 s76, s76, s9
        s_lshl_b32 s9, s76, 10
        v_lshlrev_b32 v6, 5, v0
        buffer_load_dwordx4 v[48:51], v6, {SX}, s9 offen
        buffer_load_dwordx4 v[52:55], v6, {SX}, s9 offen offset:16""")
    def gate_comp():
        a("v_mov_b32 v5, 0")
        for i in range(8): a(f"v_dot2c_f32_bf16 v5, v{48+i}, v{56+i}")
        a("v_lshrrev_b32 v6, 5, v0\nv_add_u32 v6, s76, v6\nv_and_b32 v7, 15, v6")
        a("v_add_f32_dpp v5, v5, v5 quad_perm:[1,0,3,2] row_mask:0xf bank_mask:0xf")
        a("v_lshrrev_b32 v6, 4, v6\nv_lshlrev_b32 v7, 9, v7")
        a("v_add_f32_dpp v5, v5, v5 quad_perm:[2,3,0,1] row_mask:0xf bank_mask:0xf")
        a("v_lshl_add_u32 v6, v6, 2, v7\ns_nop 0")
        a("v_add_f32_dpp v5, v5, v5 row_half_mirror row_mask:0xf bank_mask:0xf\ns_nop 1")
        a("v_add_f32_dpp v5, v5, v5 row_mirror row_mask:0xf bank_mask:0xf\ns_nop 1")
        a("v_add_f32_dpp v5, v5, v5 row_bcast:15 row_mask:0xa bank_mask:0xf")
        a(f"v_mul_f32 v5, {fhex(-math.log2(math.e))}, v5\nv_exp_f32 v5, v5\ns_nop 0\nv_add_f32 v5, 1.0, v5\nv_rcp_f32 v5, v5")
        a("s_mov_b32 exec_lo, 0x80000000\ns_mov_b32 exec_hi, 0x80000000")
        a(f"s_mov_b32 s76, {GF}\nbuffer_store_dword v5, v6, {W}, s76 offen sc1\ns_mov_b64 exec, -1")
    def flush(k):
        for _ in range(k):
            if pieces: a(pieces.pop(0))
    if opt("lfast"):
        a('s_barrier')
        warm()
        WORK = {0: [first, touch, gw_loads, late_setup, gen_pieces, lambda: flush(int(opt("pre", 0)))], 9: [lambda: flush(1000)]}
    else:
        first()
        if opt('tearly'): touch()
        late_setup(); gen_pieces()
        a('s_barrier')
        warm()
        WORK = {0: [(lambda: None) if opt('tearly') else touch, gw_loads, lambda: flush(int(opt("pre", 0)))], 9: [lambda: flush(1000)]}
    if opt("tat"):
        WORK[0] = WORK[0][1:]; WORK[int(opt("tat"))] = [touch] + WORK.get(int(opt("tat")), [])
    WORK[int(opt("asat", 0))] = WORK.get(int(opt("asat", 0)), []) + [lambda: att_setup(a)]
    SCHED = eval(opt("sched", "[[2],[3,4],[],[5],[6],[7],[],[8],[9],[10]]"))
    cnt = {}; issued = []
    for n in range(10):
        if n == 9:
            waitcnt_lds(a, 0, 8)
            gate_loads()
        for u in SCHED[n]:
            assert u < 5 or u - 5 <= min(n, 7) - 3 or n == 9, (u, n)
            cnt[u] = issue(u); issued.append(u)
        for f in WORK.get(n, []): f()
        if n == 7: continue
        younger = sum(cnt[u] for u in issued if u > (7 if n == 6 else n)) if n < 9 else 8 * len([u for u in SCHED[9] if u > 9]) + (2 if 9 not in SCHED[9] else 0)
        if n >= NGU: a(f"s_waitcnt vmcnt({younger})")
        if n < NGU: pass
        elif n < 8: a("s_barrier")
        else: signal(a, (0, 5)[n - 8])
        if opt("p1st") and 1 <= n <= 7: stamp(a, n, True)
        if n == 6: stamp(a, 2)
        if n == 8: stamp(a, 3)
    def ard(s):
        F = XF + 4 * (s & 7)
        a(f"ds_read_b128 v[{F}:{F+3}], v{AA+(s&7)} offset:{256*((s>>3)&1)}")
        if 8 <= s < 16: a(f"v_subrev_u32 v{AA+(s&7)}, {R[4]-R[0]}, v{AA+(s&7)}")
    for half in range(2):
        if half == 0: waitcnt_lds(a, 5, 4)
        else:
            a("s_waitcnt vmcnt(0)")
            signal(a, 1)
            waitcnt_lds(a, 1, 4)
            stamp(a, 4)
        b = 16 * half
        for s in range(b, b + 6): ard(s)
        for s in range(b, b + 16):
            a(f"s_waitcnt lgkmcnt({min(5, b+15-s)})")
            c = vr(ACC + 16 * (s >> 4), 16)
            a(f"{MF} {c}, {vr(XF+4*(s&7),4)}, {vr(WG+4*(s&15),4)}, {'0' if (s & 15) == 0 else c}")
            if s + 6 < b + 16: ard(s + 6)
    a(f"""s_and_b32 s9, s60, 1
    s_lshl_b32 s9, s9, 12
    s_lshr_b32 s10, s60, 1
    s_lshl_b32 s11, s10, 11
    s_add_u32 s9, s9, s11
    s_add_u32 s9, s9, {L_ZX}
    v_add_u32 v2, s9, v14
    s_lshl_b32 s12, s60, 10
    s_add_u32 s12, s12, {L_QB}
    v_add_u32 v1, s12, v14""")
    a.nop(2)
    for i in range(16): a(f"v_fmac_f32 v{ACC+i}, v{ACC+16+i}, v15")
    for i in range(8): a(f"v_cvt_pk_bf16_f32 v{PK+i}, v{ACC+2*i}, v{ACC+2*i+1}")
    a(f"ds_write_b128 v2, v[{PK}:{PK+3}]\nds_write_b128 v2, v[{PK+4}:{PK+7}] offset:1024")
    signal(a, 2)
    gate_comp()
    a(f"v_mov_b32 v28, {L_CNT}")
    CA = 28
    for i in range(0, 16, 2): a(f"v_mov_b64 v[{CN+i}:{CN+i+1}], 0")
    waitcnt_lds(a, 3, 4)
    a(f"ds_read_b128 v[{QA}:{QA+3}], v1")
    a("s_branch att_body2")
    a.label(f"{N}_end")
    a("s_endpgm")

    XR, WR, ACC, PK = 128, 96, 64, 32
    XA, WA = 8, 12
    CA = 28
    l_lines = a.lines; a.lines = main_lines
    a.label(f"{N}_comp")
    if opt("stouch"):
        a(f"s_cmp_lg_u32 s3, 0\ns_cbranch_scc1 {N}_nst")
        a("s_add_u32 s10, s38, 0x1fff80\ns_addc_u32 s11, s39, 0")
        for k in range(6):
            a("s_load_dword s78, s[10:11], 0")
            if k < 5: a("s_add_u32 s10, s10, 0x200000\ns_addc_u32 s11, s11, 0")
        a("s_load_dword s78, s[34:35], 0\ns_load_dword s78, s[30:31], 0\ns_load_dword s78, s[36:37], 128\ns_load_dword s78, s[32:33], 0")
        a.label(f"{N}_nst")
    a(f"""v_and_b32 v1, 31, v0
    v_lshrrev_b32 v2, 5, v0
    v_bfe_u32 v3, v0, 1, 3
    v_xor_b32 v3, v3, v2
    v_lshlrev_b32 v3, 4, v3
    v_lshl_add_u32 v3, v1, 7, v3
    s_lshl_b32 s9, s3, 12
    v_add_u32 v{XA}, s9, v3""")
    for ks in range(1, 4): a(f"v_xor_b32 v{XA+ks}, {32*ks}, v{XA}")
    a(f"""v_bfe_u32 v4, v0, 2, 2
    v_lshl_add_u32 v5, v2, 3, v4
    v_bfe_u32 v6, v0, 4, 1
    v_lshlrev_b32 v6, 5, v6
    v_and_b32 v7, 3, v0
    v_lshl_add_u32 v6, v7, 3, v6
    v_lshl_add_u32 v14, v5, 6, v6
    v_add_u32 v14, {R[3]}, v14
    v_lshl_add_u32 v5, v5, 7, v6
    v_lshrrev_b32 v4, 1, v4
    v_lshl_add_u32 v{WA}, v4, 6, v5
    v_xor_b32 v{WA+1}, 64, v{WA}""")
    a(f"v_mov_b32 v{CA}, {L_CNT}\nv_mov_b32 v{CA+1}, 1")
    srd(a, sWS, 38, WS_BYTES)
    srd(a, sDB, 36, 256)
    a(f"""s_lshl_b32 s8, s5, 7
    s_lshl_b32 s9, s4, 2
    s_add_u32 s8, s8, s9
    s_add_u32 s8, s8, s3
    s_lshl_b32 s8, s8, 12
    s_lshl_b32 s9, s6, 11
    s_add_u32 s8, s8, s9
    s_add_u32 s60, s8, 262144
    s_lshl_b32 s77, s4, 4
    s_add_u32 s77, s77, s7
    s_lshl_b32 s77, s77, 2
    s_add_u32 s77, s77, s3
    s_lshl_b32 s77, s77, 8
    s_add_u32 s77, s77, {FL1}
    v_lshlrev_b32 v15, 4, v0""")
    a(f"""s_mul_i32 s66, s3, 3
    s_lshl_b32 s67, s4, 2
    s_add_u32 s66, s66, s67
    s_sub_u32 s66, s66, 8
    v_lshrrev_b32 v4, 1, v0
    v_add_u32 v4, s66, v4
    v_ashrrev_i32 v5, 31, v4
    v_mov_b32 v6, s67
    v_bfi_b32 v4, v5, v6, v4
    v_lshrrev_b32 v5, 2, v4
    v_lshlrev_b32 v5, 6, v5
    v_and_b32 v6, 3, v4
    v_and_b32 v7, 1, v0
    v_lshl_add_u32 v6, v7, 2, v6
    s_lshl_b32 s11, s5, 3
    v_add3_u32 v5, v5, v6, s11
    v_lshlrev_b32 v18, 8, v5""")
    a(f"s_cmp_eq_u32 s6, 1\ns_cbranch_scc1 {N}_V")
    def p1(swap):
        naddr = [XA + i for i in range(4)] + [WA, WA + 1]
        def rds(s):
            ks = s & 3; F = WR + 8 * ks
            o = [f"ds_read_b128 v[{XR+4*s}:{XR+4*s+3}], v{XA+ks}"]
            for nt in range(2):
                for h in range(2): o.append(f"ds_read_b64_tr_b16 v[{F+4*nt+2*h}:{F+4*nt+2*h+1}], v{WA+nt} offset:{16384+2048*ks+512*h}")
            return o
        a(f"s_barrier\ns_waitcnt vmcnt({6*(NGU-1)})")
        signal(a, 6); waitcnt_lds(a, 6, 4)
        if opt("p1st"): stamp(a, 1, True)
        stamp(a, 1)
        for x in rds(0) + rds(1): a(x)
        for s in range(32):
            ks = s & 3; c = s >> 2
            a(f"s_waitcnt lgkmcnt({5 if s < 31 else 0})")
            r = rds(s + 2) if s < 30 else []
            for nt in range(2):
                x = vr(XR + 4 * s, 4); w = vr(WR + 8 * ks + 4 * nt, 4); cc = vr(ACC + 16 * nt, 16)
                ci = "0" if s == 0 else cc
                a(f"{MF} {cc}, {w}, {x}, {ci}" if swap else f"{MF} {cc}, {x}, {w}, {ci}")
                if nt == 0 and ks == 2 and c < 7:
                    d = R[(c + 1) % 5] - R[c % 5]
                    for x_ in naddr: a(f"v_add_u32 v{x_}, {d}, v{x_}" if d > 0 else f"v_subrev_u32 v{x_}, {-d}, v{x_}")
                    if c == 5: a(f"buffer_load_dword v{NONCE}, off, s[{sDB}:{sDB+3}], 0 sc1")
                    if c + 1 < NGU:
                        a(f"s_waitcnt vmcnt({6*(NGU-2-c)})")
                        signal(a, 6); waitcnt_lds(a, 6, 4 * (c + 2))
                    else:
                        if opt("p1st"): stamp(a, c + 1, True)
                        if c < 6: a("s_barrier")
                for x_ in (r[:3] if nt == 0 else r[3:]): a(x_)
    p1(True)
    a(f"s_branch {N}_p1d")
    if opt("lpos", "end") == "mid": a.lines += l_lines
    a.label(f"{N}_V")
    p1(False)
    a.label(f"{N}_p1d")
    stamp(a, 2)
    a("s_waitcnt vmcnt(0)")
    get_nonce(a, "gm")
    a.nop(6)
    for nt in range(2):
        for i in range(8): a(f"v_cvt_pk_bf16_f32 v{PK+8*nt+i}, v{ACC+16*nt+2*i}, v{ACC+16*nt+2*i+1}")
        for h in range(2): a(f"buffer_store_dwordx4 v[{PK+8*nt+4*h}:{PK+8*nt+4*h+3}], v15, {W}, s{(8,60)[nt]} offen offset:{1024*h} sc1")
    signal(a, 0)
    a("""s_lshr_b32 s9, s3, 1
    s_lshl_b32 s9, s9, 3
    v_bfe_u32 v120, v0, 1, 3
    v_add_u32 v120, s9, v120
    v_cvt_f32_u32 v120, v120
    v_and_b32 v121, 1, v0
    v_lshrrev_b32 v6, 5, v0
    v_sub_u32 v121, v121, v6
    v_cvt_f32_i32 v121, v121
    v_mul_f32 v121, 0x3e800000, v121
    v_bfe_u32 v6, v0, 4, 1
    v_lshlrev_b32 v6, 9, v6
    s_lshl_b32 s9, s64, 2
    v_add_u32 v6, s9, v6
    v_cvt_f32_u32 v6, v6
    v_mul_f32 v122, 0x3a000000, v120
    v_fmac_f32 v121, v6, v122
    v_mul_f32 v120, 0x3d800000, v120""")
    for u in range(4):
        for p in range(4):
            c0 = (2 * p & 3) + 8 * (p >> 1)
            pre = "v_add_f32 v121, v121, v122\n" if (u and p == 0) else ""
            a(pre + f"v_fmamk_f32 v4, v120, {fhex(float(c0))}, v121\nv_add_f32 v5, v4, v120\nv_cos_f32 v4, v4\nv_cos_f32 v5, v5\ns_nop 0\nv_cvt_pk_bf16_f32 v{FP+4*u+p}, v4, v5")
    FLAGAT = int(opt("flagat", 8))
    if FLAGAT < 0:
        a(f"s_waitcnt vmcnt(0)\ns_mov_b64 exec, 1\nbuffer_store_dword v{NONCE}, off, {W}, s77 sc1\ns_mov_b64 exec, -1")
        stamp(a, 3)
    waitcnt_lds(a, 0, 8)
    KP = f"v_mov_b32 v19, 0\nbuffer_atomic_add v19, v18, {W}, s76 offen sc0 sc1"
    POLLAT = int(opt("pollat", 31))
    def qrd(s):
        F = WR + 4 * (s & 7)
        for h in range(2): a(f"ds_read_b64_tr_b16 v[{F+2*h}:{F+2*h+1}], v14 offset:{1024*s+256*h}")
    for s in range(6): qrd(s)
    for s in range(32):
        a(f"s_waitcnt lgkmcnt({2*min(5, 31-s)})")
        a(f"{MF} {vr(ACC,16)}, {vr(WR+4*(s&7),4)}, {vr(XR+4*s,4)}, {'0' if s == 0 else vr(ACC,16)}")
        if s + 6 < 32: qrd(s + 6)
        if s == FLAGAT:
            a(f"s_waitcnt vmcnt(0)\ns_mov_b64 exec, 1\nbuffer_store_dword v{NONCE}, off, {W}, s77 sc1\ns_mov_b64 exec, -1")
            stamp(a, 3)
        if s == POLLAT: a(f"s_mov_b32 s76, {FL1}\ns_mov_b64 exec, 63\n{KP}\ns_mov_b64 exec, -1")
    a(f"""s_lshl_b32 s9, s3, 10
    s_add_u32 s9, s9, {L_QB}
    v_add_u32 v4, s9, v15""")
    a.nop(9)
    for i in range(16): a(f"v_mul_f32 v{ACC+i}, {fhex(QSCALE)}, v{ACC+i}")
    for i in range(8): a(f"v_cvt_pk_bf16_f32 v{QA+i}, v{ACC+2*i}, v{ACC+2*i+1}")
    a(f"ds_write_b128 v4, v[{QB}:{QB+3}]")
    a("s_mov_b32 s15, 0\ns_mov_b64 exec, 63")
    a(f"gm_poll:\ns_add_u32 s15, s15, 1\ns_waitcnt vmcnt(0)\nv_cmp_ne_u32 vcc, s63, v19")
    a(f"s_cmp_gt_u32 s15, 0x40000\ns_cbranch_scc1 gm_polled\ns_cbranch_vccz gm_polled\ns_sleep {PSLEEP}")
    a(f"{KP}\ns_branch gm_poll")
    a("gm_polled:\ns_mov_b64 exec, -1")
    stamp(a, 4)
    a(f"s_mul_i32 s12, s3, 12288\ns_lshl_b32 s13, s7, 6")
    for t in range(3):
        a(f"s_add_u32 s11, s66, {t}\ns_cmp_lt_i32 s11, 0\ns_cselect_b32 s11, s67, s11\ns_add_u32 s11, s11, s13\ns_lshl_b32 s11, s11, 12")
        a(f"s_add_u32 m0, s12, {L_KV + 4096*t}\ns_nop 0")
        for i in range(4): a(f"buffer_load_dwordx4 v15, {W}, s11 offen offset:{1024*i} sc1 lds")
    att_setup(a)
    a(f"""s_lshl_b32 s9, s74, 1
    s_lshr_b32 s10, s3, 1
    s_add_u32 s9, s9, s10
    s_sub_u32 s10, 15, s9
    s_min_u32 s10, s10, s9
    v_and_b32 v5, 1, v0
    v_add_u32 v5, s10, v5
    v_and_b32 v5, 7, v5
    v_lshrrev_b32 v6, 1, v0
    v_lshl_add_u32 v5, v6, 3, v5
    v_lshlrev_b32 v18, 8, v5
    s_and_b32 s79, s3, 1
    s_lshl_b32 s79, s79, 15
    s_add_u32 s79, s79, {FL3}""")
    for i in range(0, 16, 2): a(f"v_mov_b64 v[{CN+i}:{CN+i+1}], 0")
    a(f"s_lshl_b32 s77, s64, 3\ns_add_u32 s77, s77, s65\ns_lshl_b32 s77, s77, 8\ns_lshl_b32 s9, s3, 2\ns_add_u32 s77, s77, s9\ns_add_u32 s77, s77, {FL3}")
    a(f"""v_lshrrev_b32 v4, 5, v0
    v_lshlrev_b32 v3, 12, v4
    v_bfe_u32 v5, v0, 4, 1
    v_lshl_add_u32 v3, v5, 9, v3
    v_and_b32 v6, 15, v0
    v_lshl_add_u32 v3, v6, 4, v3
    s_lshr_b32 s10, s3, 1
    s_and_b32 s9, s3, 1
    s_lshl_b32 s9, s9, 8
    s_add_u32 s11, s9, {L_ZX}
    v_add_u32 v3, s11, v3
    v_lshrrev_b32 v4, 4, v0
    v_mul_u32_u24 v4, {2*32*TP}, v4
    v_lshl_add_u32 v5, v6, 4, v4
    s_lshl_b32 s11, s65, 9
    s_add_u32 s9, s9, s11
    v_add_u32 v5, s9, v5
    s_mul_i32 s10, s10, {8*32*TP}
    s_mul_i32 s11, s64, {TP}
    s_add_u32 s10, s10, s11
    s_add_u32 s10, s10, {TF}
    s_add_u32 s11, s10, {32*TP}""")
    for i in range(0, 16, 2): a(f"v_mov_b64 v[{ZB+i}:{ZB+i+1}], 0")
    waitcnt_lds(a, 2, 4)
    a("s_cmp_eq_u32 s9, 0\ns_cselect_b32 exec_hi, 0xfffefffe, -1")
    def step1():
        for u in range(4): a(f"{MF16} {vr(ACC+4*u,4)}, {vr(FP+4*u,4)}, {vr(ZB+4*u,4)}, 0")
        a.nop(5)
        for r2 in range(2):
            for u in range(4): a(f"v_cvt_pk_bf16_f32 v{PK+4*r2+u}, v{ACC+4*u+2*r2}, v{ACC+4*u+2*r2+1}")
    for u in range(4): a(f"ds_read_b128 v[{ZB+4*u}:{ZB+4*u+3}], v3 offset:{1024*u}")
    a("s_waitcnt lgkmcnt(0)\ns_mov_b64 exec, -1")
    step1()
    a(f"buffer_store_dwordx4 v[{PK}:{PK+3}], v5, {W}, s10 offen sc1\nbuffer_store_dwordx4 v[{PK+4}:{PK+7}], v5, {W}, s11 offen sc1")
    a("s_waitcnt vmcnt(2)")
    signal(a, 3)
    a(f"s_cmp_lg_u32 s9, 0\ns_cbranch_scc1 {N}_nsp")
    a("s_mov_b32 exec_hi, 0")
    for u in range(4): a(f"ds_read_b128 v[{ZB+4*u}:{ZB+4*u+3}], v3 offset:{4096+1024*u}")
    a("s_mov_b64 exec, -1\nv_add_u32 v6, 4096, v4\ns_waitcnt lgkmcnt(0)")
    step1()
    a("s_mov_b32 exec_lo, 0x00010001\ns_mov_b32 exec_hi, 0x00010001")
    a(f"buffer_store_dwordx4 v[{PK}:{PK+3}], v6, {W}, s10 offen sc1\nbuffer_store_dwordx4 v[{PK+4}:{PK+7}], v6, {W}, s11 offen sc1")
    a("s_mov_b64 exec, -1")
    a.label(f"{N}_nsp")
    waitcnt_lds(a, 3, 4)

    a.label("att_body2")
    stamp(a, 5)
    q = vr(QA, 4); cn = vr(CN, 16); o = vr(O, 16); m = 3
    kslot = {8: 0, 0: 1}; vslot = {8: 0, 0: 1}
    for n in range(7): kslot[7 - n] = (2 + n) & 3; vslot[7 - n] = (2 + n) & 3
    kf = lambda j: vr(KRG + 4 * kslot[j], 4)
    vf = lambda j, ks: vr(VB + 8 * vslot[j] + 4 * ks, 4)
    def krd(j): a(f"ds_read_b128 {kf(j)}, v{AK} offset:{4096*j}")
    def vrd(js):
        a("s_mov_b64 exec, s[12:13]")
        for j in js:
            for ks in range(2): a(f"ds_read_b128 {vf(j,ks)}, v{AV} offset:{4096*j+2048+1024*ks}")
        a("s_mov_b64 exec, -1")
    def wo_dma():
        a(f"s_add_u32 m0, s75, s8\ns_lshl_b32 s9, s75, 3\nbuffer_load_dwordx4 v13, s[{sOUT}:{sOUT+3}], s9 offen lds\ns_add_u32 s75, s75, 1024")
    TPL = f"s_mov_b32 exec_hi, 0\nbuffer_load_dwordx4 v[24:27], v18, {W}, s79 offen sc1\ns_mov_b64 exec, -1"
    TCHK = "s_mov_b32 exec_hi, 0\nv_xor_b32 v24, s63, v24\nv_xor_b32 v25, s63, v25\nv_xor_b32 v26, s63, v26\nv_xor_b32 v27, s63, v27\nv_or3_b32 v24, v24, v25, v26\nv_or_b32 v24, v24, v27\nv_cmp_ne_u32 vcc, 0, v24\ns_mov_b64 exec, -1"
    a(f"""s_mov_b32 s12, 0xffff
    s_mov_b32 s13, 0xffff
    s_mov_b32 s15, 0
    s_lshl_b32 s8, s3, 13
    s_add_u32 s8, s8, {R[3]}""")
    a.label("att_retry")
    for j in (8, 0, 7, 6): krd(j)
    vrd((8, 0, 7))
    PR = opt("prio", "a")
    if PR == "a": a("s_setprio 3")
    if PR == "b": a("s_cmp_lt_u32 s3, 4\ns_cbranch_scc1 att_np\ns_setprio 1\natt_np:")
    a("s_waitcnt lgkmcnt(7)\ns_nop 0")
    a(f"{MF} {vr(SB,16)}, {kf(8)}, {q}, {cn}")
    a(f"{MF} {vr(SC_,16)}, {kf(0)}, {q}, {cn}")
    a(f"{MF} {vr(SA,16)}, {kf(7)}, {q}, {cn}")
    wo_dma()
    a("s_cmp_lg_u32 s61, 9")
    a.nop(5)
    a("s_cbranch_scc1 att_no0a")
    for i in range(16): a(f"v_bfi_b32 v{SB+i}, v{TM+i}, v{SC_+i}, v{SB+i}")
    a.label("att_no0a")
    for i in range(16): a(f"v_exp_f32 v{SB+i}, v{SB+i}")
    for i in range(8): a(f"v_cvt_pk_bf16_f32 v{P+i}, v{SB+2*i}, v{SB+2*i+1}")
    for i in range(8): a(f"v_and_b32 v{P+8+i}, v{PM+i}, v{P+i}")
    for i in range(8): a(f"v_xor_b32 v{P+i}, v{P+8+i}, v{P+i}")
    a("s_waitcnt lgkmcnt(0)\ns_cmp_lg_u32 s61, 9")
    a(f"{MF} {o}, {vf(8,0)}, {vr(P,4)}, 0")
    a(f"{MF} {o}, {vf(8,1)}, {vr(P+4,4)}, {o}")
    a("s_cbranch_scc1 att_no0b")
    a(f"{MF} {o}, {vf(0,0)}, {vr(P+8,4)}, {o}")
    a(f"{MF} {o}, {vf(0,1)}, {vr(P+12,4)}, {o}")
    a.label("att_no0b")
    a("s_cmp_ge_u32 s3, 4\ns_cbranch_scc1 att_nof3")
    a(f"v_mov_b32 v4, s63\ns_waitcnt vmcnt(1)\ns_mov_b64 exec, 1\nbuffer_store_dword v4, off, {W}, s77 sc1\ns_mov_b64 exec, -1")
    a.label("att_nof3")
    a("s_cmp_eq_u32 s61, 1\ns_cbranch_scc1 att_done")
    S = [SA, SB]
    for n in range(7):
        j = 7 - n
        s = S[n & 1]; p = P + 8 * (n & 1)
        if PR == "a" and n in (1, 3, 5): a(f"s_setprio {2 - n // 2}")
        if PR == "c" : a(f"s_setprio {(3,2,2,1,1,0,0)[n]}")
        if n < 6:
            a(f"{MF} {vr(S[(n+1)&1],16)}, {kf(j-1)}, {q}, {cn}")
            if n < 5: krd(j - 2)
            vrd((j - 1,))
        if n < 3 and (not opt('wo1')): wo_dma()
        for i in range(8): a(f"v_exp_f32 v{s+i}, v{s+i}")
        for i in range(4): a(f"v_cvt_pk_bf16_f32 v{p+i}, v{s+2*i}, v{s+2*i+1}")
        for i in range(8, 10): a(f"v_exp_f32 v{s+i}, v{s+i}")
        a(f"{MF} {o}, {vf(j,0)}, {vr(p,4)}, {o}")
        if n < 4 or not (not opt('wo1')): wo_dma()
        for i in range(10, 16): a(f"v_exp_f32 v{s+i}, v{s+i}")
        for i in range(4, 8): a(f"v_cvt_pk_bf16_f32 v{p+i}, v{s+2*i}, v{s+2*i+1}")
        a(f"s_cmp_eq_u32 s61, {n+2}\ns_waitcnt lgkmcnt(0)")
        a(f"{MF} {o}, {vf(j,1)}, {vr(p+4,4)}, {o}")
        if n < 6 and not opt("nobr"): a("s_cbranch_scc1 att_done")
    a.label("att_done")
    a(f"s_nop 0\ns_mov_b32 s14, {fhex(0.0 if FORCEFB else 2.0**90)}\nv_mov_b32 v6, 0")
    a(f"""s_lshl_b32 s101, s3, 3
    s_bfe_u32 s9, s4, 0x10003
    s_lshl_b32 s9, s9, 2
    s_add_u32 s101, s101, s9
    s_and_b32 s9, s7, 3
    s_add_u32 s101, s101, s9
    s_lshl_b32 s101, s101, 8
    s_add_u32 s101, s101, {FL2}""")
    a.nop(1)
    a(f"v_rcp_f32 v4, v{O+8}\nv_mov_b32 v7, v{O+8}")
    for i in range(8): a(f"v_fmac_f32 v7, v{O+i}, v6")
    a(f"v_fmamk_f32 v7, v4, {fhex(2.0**50)}, v7\nv_cmp_nge_f32 vcc, s14, v7\ns_cbranch_vccnz att_fb")
    a.label("att_fin")
    for i in range(8): a(f"v_mul_f32 v{O+i}, v{O+i}, v4")
    for i in range(4): a(f"v_cvt_pk_bf16_f32 v{P+i}, v{O+2*i}, v{O+2*i+1}")
    a(f"ds_write_b128 v{AO}, v[{P}:{P+3}]")
    stamp(a, 6)
    a.label("att_wo")
    a("s_cmp_ge_u32 s75, 8192\ns_cbranch_scc1 att_wo2")
    wo_dma()
    a("s_branch att_wo")
    a.label("att_wo2")
    a(f"s_setprio 0\nv_mov_b32 v4, 1\ns_waitcnt vmcnt(0)\ns_cmp_lt_u32 s3, 4\ns_cbranch_scc0 att_nt\n{TPL}\natt_nt:")
    a(f"s_waitcnt lgkmcnt(0)\ns_barrier\nds_read_b128 v[{P}:{P+3}], v{AR}\ns_waitcnt lgkmcnt(0)")
    a(f"buffer_store_dwordx4 v[{P}:{P+3}], v12, {W}, s62 offen sc1")
    def flag2(n): a(f"s_waitcnt vmcnt({n})\ns_mov_b64 exec, 1\nbuffer_atomic_add v4, off, {W}, s101 sc1\ns_mov_b64 exec, -1")
    a("s_cmp_lt_u32 s3, 4\ns_cbranch_scc1 out_comp")
    a(f"""s_sub_u32 s60, s3, 4
    s_lshr_b32 s9, s72, 1
    s_lshl_b32 s9, s9, 3
    s_lshl_b32 s10, s73, 2
    s_add_u32 s9, s9, s10
    s_add_u32 s9, s9, s60
    s_lshl_b32 s9, s9, 8
    s_add_u32 s9, s9, {FL2}
    s_mul_i32 s8, s72, {OP}
    s_lshl_b32 s10, s73, 16
    s_add_u32 s8, s8, s10
    s_lshl_b32 s10, s60, 12
    s_add_u32 s8, s8, s10
    s_add_u32 s8, s8, {OF}
    s_mov_b32 s15, 0""")
    flag2(0)
    a("s_mov_b64 exec, 1")
    PA = lambda r: f"v_mov_b32 v{r}, 0\nbuffer_atomic_add v{r}, off, {W}, s9 sc0 sc1"
    if opt("pp"):
        g = int(opt("pp"))
        a(f"{PA(6)}\ns_sleep {g}\no_poll:")
        for x, y in ((7, 6), (6, 7)):
            a(f"{PA(x)}\ns_waitcnt vmcnt(1)\nv_cmp_gt_u32 vcc, 32, v{y}\ns_add_u32 s15, s15, 1\ns_cbranch_vccz o_polled")
        a("s_cmp_lt_u32 s15, 0x80000\ns_cbranch_scc1 o_poll")
    else:
        a(f"o_poll:\n{PA(6)}\ns_add_u32 s15, s15, 1\ns_waitcnt vmcnt(0)\nv_cmp_gt_u32 vcc, 32, v6")
        a(f"s_cmp_gt_u32 s15, 0x40000\ns_cbranch_scc1 o_polled\ns_cbranch_vccz o_polled\ns_sleep {int(opt('psleep2', 0))}\ns_branch o_poll")
    a("o_polled:\ns_mov_b64 exec, -1")
    stamp(a, 7)
    def oissue(c):
        a(f"s_add_u32 m0, s10, {R[1] + 16384*c}")
        a("s_add_u32 s8, s8, 16384" if c else "s_nop 0")
        for i in range(4): a(f"buffer_load_dwordx4 v14, {W}, s8 offen offset:{1024*i} sc1 lds")
    OS_ = eval(opt("osched", "[[0,1],[2],[3],[]]"))
    ni = 0
    for c in range(4):
        for u in OS_[c]: oissue(u); ni += 1
        a(f"s_waitcnt vmcnt({4*(ni-c-1)})\ns_barrier")
    stamp_out(a, 0)
    a("s_endpgm")
    AB, AY, FR = 64, 80, 192
    a.label("out_comp")
    a("s_lshr_b32 s66, s3, 1\ns_and_b32 s67, s3, 1")
    srd(a, sOUT, 34, 2048 * 512 * 2)
    a(f"""v_and_b32 v1, 31, v0
    v_lshrrev_b32 v2, 5, v0
    s_lshl_b32 s9, s67, 5
    s_lshl_b32 s10, s73, 6
    s_add_u32 s9, s9, s10
    v_add_u32 v3, s9, v1
    v_bfe_u32 v9, v0, 3, 2
    v_lshlrev_b32 v6, 9, v9
    v_and_b32 v9, 1, v9
    v_xor_b32 v9, v9, v2
    v_lshl_add_u32 v6, v9, 7, v6
    v_and_b32 v9, 7, v0
    v_lshl_add_u32 v6, v9, 4, v6
    s_lshl_b32 s9, s67, 11
    s_add_u32 s9, s9, {R[1]}
    v_add_u32 v6, s9, v6
    v_bfe_u32 v9, v0, 2, 2
    v_lshl_add_u32 v7, v2, 2, v9
    v_lshlrev_b32 v7, 7, v7
    v_lshrrev_b32 v9, 1, v9
    v_xor_b32 v9, s66, v9
    v_lshl_add_u32 v7, v9, 6, v7
    v_and_b32 v9, 1, v0
    v_lshl_add_u32 v7, v9, 5, v7
    v_bfe_u32 v9, v0, 4, 1
    v_lshl_add_u32 v7, v9, 4, v7
    v_bfe_u32 v9, v0, 1, 1
    v_lshl_add_u32 v7, v9, 3, v7
    v_add_u32 v7, {R[3]}, v7
    v_bfe_u32 v9, v0, 2, 1
    v_lshlrev_b32 v8, 4, v9
    v_and_b32 v9, 3, v0
    v_add_u32 v8, v8, v9
    v_bfe_u32 v9, v0, 3, 2
    v_lshl_add_u32 v8, v9, 2, v8
    s_lshl_b32 s9, s66, 5
    s_lshl_b32 s10, s74, 6
    s_add_u32 s9, s9, s10
    v_add_u32 v8, s9, v8
    v_sub_u32 v9, 512, v8
    s_sub_u32 s12, 16, s72
    s_and_b32 s12, s12, 15
    s_cmp_ge_u32 s74, 4
    s_cselect_b32 s12, s12, s72
    s_cselect_b32 s13, -1, 0
    v_bfi_b32 v8, s13, v9, v8
    v_lshlrev_b32 v8, 4, v8
    v_mul_u32_u24 v9, {TP}, v2
    v_add_u32 v8, v8, v9
    s_lshl_b32 s12, s12, 1
    s_add_u32 s12, s12, s67
    s_mul_i32 s12, s12, {16*TP}
    s_add_u32 s12, s12, {TF}
    s_lshl_b32 s9, s3, 12
    v_add_u32 v29, s9, v14
    v_xor_b32 v30, 4096, v29
    v_lshlrev_b32 v28, 14, v3
    v_lshl_add_u32 v28, v2, 5, v28
    s_lshl_b32 s14, s72, 10
    s_lshl_b32 s10, s74, 7
    s_add_u32 s14, s14, s10
    s_lshl_b32 s10, s66, 6
    s_add_u32 s14, s14, s10
    v_lshlrev_b32 v5, 2, v3
    s_lshl_b32 s11, s72, 9
    s_add_u32 s11, s11, {GF}
    s_mov_b32 s15, 0""")
    ab = vr(AB, 16); ay = vr(AY, 16)
    AZ = 224
    FG0 = len(a.lines)
    a("""s_cmp_eq_u32 s72, 0
    s_cselect_b32 s9, 1, 0
    s_add_u32 s9, s9, 127
    s_lshl_b32 s10, s67, 4
    v_add_u32 v15, s10, v2
    v_cvt_f32_u32 v15, v15
    v_mul_f32 v15, 4.0, v15""")
    a("""s_sub_u32 s77, 0, s67
    s_xor_b32 s77, s77, s13
    s_and_b32 s77, s77, 0x80008000
    v_sub_u32 v10, s9, v3
    v_and_b32 v10, 127, v10
    v_bfi_b32 v10, s13, v10, v3
    v_cvt_f32_u32 v10, v10
    v_mul_f32 v10, 0x3c000000, v10
    v_mul_f32 v11, v15, v10
    v_mul_f32 v12, 0x41000000, v10
    v_cos_f32 v12, v12
    s_nop 0
    v_add_f32 v12, v12, v12""")
    WF = [96 + 4 * k for k in range(24)] + [32 + 4 * k for k in range(8)]
    early = [h for h in range(32) if 128 <= WF[h] < 160 or 36 <= WF[h] < 48] if opt("ewo", "1") == "1" else []
    eq = list(early)
    def word(h):
        a(f"ds_read_b64_tr_b16 v[{WF[h]}:{WF[h]+1}], v7 offset:{2048*h}")
        a(f"ds_read_b64_tr_b16 v[{WF[h]+2}:{WF[h]+3}], v7 offset:{2048*h+1024}")
    for k in range(8):
        r = 112 + 8 * (k & 1); o_ = 112 + 8 * (1 - (k & 1))
        for u in range(4):
            x, y = r + 2 * u, r + 2 * u + 1
            if k < 2: a(f"v_fmamk_f32 v13, v10, {fhex(float(8*k+u))}, v11\nv_cos_f32 v{x}, v13\nv_sin_f32 v{y}, v13\ns_nop 0")
            else: a(f"v_fma_f32 v{x}, v12, v{o_+2*u}, -v{x}\nv_fma_f32 v{y}, v12, v{o_+2*u+1}, -v{y}")
            a(f"v_cvt_pk_bf16_f32 v{FREG[k]+u}, v{x}, v{y}")
            d = FREG[8 + k] + u
            if u == 0: a(f"v_mov_b32 v{d}, v{FREG[k]}")
            if u == 2: a(f"v_xor_b32 v{d}, 0x80008000, v{FREG[k]+2}")
            if u == 1: a(f"v_cvt_pk_bf16_f32 v{d}, -v{y}, v{x}\nv_xor_b32 v{d}, s77, v{d}")
            if u == 3: a(f"v_cvt_pk_bf16_f32 v{d}, v{y}, -v{x}\nv_xor_b32 v{d}, s77, v{d}")
            if (u & 1) and eq: word(eq.pop(0))
    fgl = a.lines[FG0:]; del a.lines[FG0:]
    FCUT = int(opt("fcut", 70))
    a.lines += fgl[:FCUT]
    flag2(0)
    stamp(a, 7)
    a(f"t_poll:\n{TCHK}")
    a(f"s_add_u32 s15, s15, 1\ns_cmp_gt_u32 s15, 0x40000\ns_cbranch_scc1 t_polled\ns_cbranch_vccz t_polled\ns_sleep {int(opt('psleep3', 8))}\n{TPL}\ns_waitcnt vmcnt(0)\ns_branch t_poll\nt_polled:")
    for k in range(8):
        a(f"buffer_load_dwordx4 v[{FR+4*k}:{FR+4*k+3}], v8, {W}, s12 offen sc1")
        if k < 7: a(f"s_add_u32 s12, s12, {2*TP}")
    a.lines += fgl[FCUT:]
    az = vr(AZ, 16)
    for k in range(8):
        a(f"s_waitcnt vmcnt({7-k})")
        a(f"{MF} {az}, {vr(FR+4*k,4)}, {vr(FREG[8+k],4)}, {'0' if k == 0 else az}")
        a(f"{MF} {ay}, {vr(FR+4*k,4)}, {vr(FREG[k],4)}, {'0' if k == 0 else ay}")
    for h in range(32):
        if h not in early: word(h)
    for i in range(4): a(f"ds_write_b128 v29, v[{AZ+4*i}:{AZ+4*i+3}] offset:{R[0]+1024*i}")
    a("s_waitcnt lgkmcnt(0)")
    def ords(c):
        for h in range(8): a(f"ds_read_b128 v[{FR+32*(c&1)+4*h}:{FR+32*(c&1)+4*h+3}], v6 offset:{16384*c+4096*(h>>1)+256*(h&1)}")
    SPL = int(opt("spl", 3))
    a("s_barrier")
    ords(0)
    a(f"buffer_load_dword v24, v5, {W}, s11 offen sc1")
    for c in range(4):
        for h in range(8):
            if h <= SPL: a(f"s_waitcnt lgkmcnt({7-h if h < SPL else 0})")
            a(f"{MF} {ab}, {vr(WF[8*c+h],4)}, {vr(FR+32*(c&1)+4*h,4)}, {'0' if c + h == 0 else ab}")
            if h == SPL and c < 3:
                a("s_barrier")
                if c == 1:
                    for i in range(4): a(f"ds_read_b128 v[{96+4*i}:{96+4*i+3}], v30 offset:{R[0]+1024*i}")
                ords(c + 1)
            if c == 3 and h < 4:
                for i in range(4 * h, 4 * h + 4): a(f"v_add_f32 v{AY+i}, v{AY+i}, v{96+i}")
            if c == 3 and h == 4: a("s_waitcnt vmcnt(0)\nv_sub_f32 v25, 1.0, v24")
            if c == 3 and 4 <= h:
                for i in range(4 * (h - 4), 4 * (h - 3)): a(f"v_mul_f32 v{AY+i}, v{AY+i}, v24")
    a.nop(8)
    for i in range(16): a(f"v_fmac_f32 v{AY+i}, v{AB+i}, v25")
    for i in range(8): a(f"v_cvt_pk_bf16_f32 v{FR+i}, v{AY+2*i}, v{AY+2*i+1}")
    a(f"buffer_store_dwordx4 v[{FR}:{FR+3}], v28, s[{sOUT}:{sOUT+3}], s14 offen")
    a(f"buffer_store_dwordx4 v[{FR+4}:{FR+7}], v28, s[{sOUT}:{sOUT+3}], s14 offen offset:16")
    stamp_out(a, 0)
    a("s_endpgm")
    a.label("att_fb")
    a("s_cmp_lg_u32 s15, 0\ns_cbranch_scc1 att_fin\ns_mov_b32 s15, 1\ns_mov_b32 s75, 0\ns_mov_b32 s14, 0xff800000\nv_mov_b32 v3, s14")
    def fbtile(j, mask):
        a(f"ds_read_b128 {vr(KRG,4)}, v{AK} offset:{4096*j}\ns_waitcnt lgkmcnt(0)")
        a(f"{MF} {vr(SA,16)}, {vr(KRG,4)}, {q}, 0")
        a.nop(12)
        if mask == 8:
            for i in range(16): a(f"v_bfi_b32 v{SA+i}, v{TM+i}, s14, v{SA+i}")
        if mask == 0:
            for i in range(16): a(f"v_bfi_b32 v{SA+i}, v{TM+i}, v{SA+i}, s14")
        for i in range(8): a(f"v_max3_f32 v{m}, v{m}, v{SA+2*i}, v{SA+2*i+1}")
    fbtile(8, 8)
    for n in range(8):
        a(f"s_cmp_eq_u32 s61, {n+1}\ns_cbranch_scc1 att_fb2")
        fbtile(7 - n, 0 if n == 7 else None)
    a.label("att_fb2")
    a(f"v_mov_b32 v4, v{m}\ns_nop 1\nv_permlane32_swap_b32 v4, v{m}\ns_nop 0\nv_max_f32 v{m}, v4, v{m}")
    a(f"v_sub_f32 v{CN}, 0, v{m}\nv_sub_f32 v{CN+1}, 0, v{m}")
    for i in range(2, 16, 2): a(f"v_mov_b64 v[{CN+i}:{CN+i+1}], v[{CN}:{CN+1}]")
    a("s_branch att_retry")
    if opt("lpos", "end") == "end": a.lines += l_lines

def desc(name, nv):
    return f""".p2align 6
.amdhsa_kernel {name}
  .amdhsa_next_free_vgpr {nv}
  .amdhsa_next_free_sgpr 102
  .amdhsa_accum_offset {(nv+3)//4*4}
  .amdhsa_group_segment_fixed_size 0
  .amdhsa_kernarg_size 96
  .amdhsa_user_sgpr_count 2
  .amdhsa_user_sgpr_kernarg_segment_ptr 1
  .amdhsa_system_sgpr_workgroup_id_x 1
.end_amdhsa_kernel
"""

a = Asm()
ka(a)
for m in check_hazards(a.lines): print("HAZARD", m, file=sys.stderr)
hdr = """; out = g*Re(DFT_seq(DFT_hid(x))) + (1-g)*(sliding-window attention(x) @ wo), one persistent launch, 256 workgroups of 8 waves.
"""
hdr += "; @launch grid=(256,1,1) block=(512,1,1) lds=163840\n"
hdr += f'.amdgcn_target "amdgcn-amd-amdhsa--gfx950"\n.text\n.globl {NAME}\n.type {NAME},@function\n'
out = hdr + a.text() + '.section .rodata,"a"\n' + desc(NAME, 256)
fn = [x for x in sys.argv[1:] if not x.startswith("--")][0]
open(fn, "w").write(out)
```
